```python
import torch

def _softmax(x, axis=-1):
    return torch.softmax(x, dim=axis)
def _gelu(x):
    return torch.nn.functional.gelu(x, approximate="tanh")
def _silu(x):
    return torch.nn.functional.silu(x)
def _sigmoid(x):
    return torch.sigmoid(x)
def _layernorm(x, axis=-1, eps=1e-5):
    m = x.mean(dim=axis, keepdim=True)
    v = x.var(dim=axis, keepdim=True, unbiased=False)
    return (x - m) / torch.sqrt(v + eps)
def _scatter_add(tgt, idx, src, axis=0):
    return tgt.clone().index_add_(axis, idx, src)
def _segment_sum(src, seg, n):
    out = torch.zeros((n,) + src.shape[1:], dtype=src.dtype)
    return out.index_add_(0, seg, src)
def _pad(x, pw):
    flat = tuple(v for pair in reversed(pw) for v in pair)
    return torch.nn.functional.pad(x, flat)

kernel_name = 'sequential_preLN__mha_block_cached__dense_activation_squared_relu__decode'

def setup_inputs():

    _w = (lambda a: (lambda t: t.to(torch.bfloat16) if t.is_floating_point() else t)(torch.as_tensor(a)))
    def _A_setup():
        B, Sq, D = 1, 1, 448
        H, Sk, Dh = 16, 32768, 256
        return {
            "x": _w((lambda *s: torch.randn(*s, dtype=torch.bfloat16) * 0.05)(B, Sq, D)),
            "k_cache": _w((lambda *s: torch.randn(*s, dtype=torch.bfloat16) * 3.2)(B, H, Sk, Dh)),
            "v_cache": _w((lambda *s: torch.randn(*s, dtype=torch.bfloat16) * 0.4)(B, H, Sk, Dh)),
            "wq": _w((lambda *s: torch.randn(*s, dtype=torch.bfloat16) * 3.2)(D, H * Dh) * (D ** -0.5)),
            "wo": _w((lambda *s: torch.randn(*s, dtype=torch.bfloat16) * 0.4)(H * Dh, D) * ((H * Dh) ** -0.5)),
        }
    _A_in = _A_setup()

    def _B_setup():
        B, S, D, F = 1, 1, 448, 1792
        return {
            "x": _w((lambda *s: torch.randn(*s, dtype=torch.bfloat16) * 0.05)(B, S, D)),
            "w1": _w((lambda *s: torch.randn(*s, dtype=torch.bfloat16) * 0.05)(D, F)),
            "b1": _w((lambda *s: torch.randn(*s, dtype=torch.bfloat16) * 0.8)(F)),
            "w2": _w((lambda *s: torch.randn(*s, dtype=torch.bfloat16) * 0.05)(F, D)),
            "b2": _w((lambda *s: torch.randn(*s, dtype=torch.bfloat16) * 3.2)(D)),
        }
    _B_in = _B_setup()

    return {
        "A_x": _A_in["x"],
        "A_k_cache": _A_in["k_cache"],
        "A_v_cache": _A_in["v_cache"],
        "A_wq": _A_in["wq"],
        "A_wo": _A_in["wo"],
        "B_x": _B_in["x"],
        "B_w1": _B_in["w1"],
        "B_b1": _B_in["b1"],
        "B_w2": _B_in["w2"],
        "B_b2": _B_in["b2"],
    }

def reference(A_x, A_k_cache, A_v_cache, A_wq, A_wo, B_x, B_w1, B_b1, B_w2, B_b2):
    def _A_ref(x, k_cache, v_cache, wq, wo):
        B, Sq, D = x.shape
        H, Dh = 16, 256
        q = (lambda x, *d: x.permute(*d))((x @ wq).reshape(B, Sq, H, Dh), 0, 2, 1, 3)
        scores = torch.einsum("bhqd,bhkd->bhqk", q, k_cache) * (Dh ** -0.5)
        p = _softmax(scores, axis=-1)
        o = torch.einsum("bhqk,bhkd->bhqd", p, v_cache)
        return (lambda x, *d: x.permute(*d))(o, 0, 2, 1, 3).reshape(B, Sq, H * Dh) @ wo

    def _B_ref(x, w1, b1, w2, b2):
        h = torch.einsum("bsd,df->bsf", x, w1) + b1
        zero = torch.zeros_like(h)
        r = torch.where(h > zero, h, zero)
        h = r * r
        out = torch.einsum("bsf,fd->bsd", h, w2) + b2
        return out

    x = A_x
    h = x + _A_ref(_layernorm(x, axis=-1), A_k_cache, A_v_cache, A_wq, A_wo)
    h2 = h + _B_ref(_layernorm(h, axis=-1), B_w1, B_b1, B_w2, B_b2)
    return h2
```

```python
import struct, sys, math
NAME = "sequential_preLN__mha_block_cached__dense_activation_squared_relu__decode"
def f2u(x): return struct.unpack("<I", struct.pack("<f", x))[0]
CSC = f2u(0.0625 * math.log2(math.e)); EPS = f2u(1e-5); INVN = f2u(1.0 / 448.0); NEG_BIG = f2u(-3.0e38)

EPOCH = 0x0
ST = 0x200000
OP = 0x10000
HG = 0x98000
FP = 0x9A000
XG = 0x9800
QP = 0xD0000
YSTR = 32768 + 256
FSTR = 7168 + 128
YP = 0x100000
CNT = 0x1E8000
DBG = 0x300000
L_Q = 0x0; L_TAG = 0x200; L_ST = 0x400; L_OB = 0x480; L_CL = 0x4C0; L_HV = 0x600; L_AL = 0x500; L_O = 0x800; L_HP = 0x2800
L_XP = 0x2A00
L_X = 0x3000
L_AP = 0x3800
L_WO = 0x4000; L_W1 = 0x8000; L_W2 = 0x16000
LDS_BYTES = 0x26000

class Gen:
    def __init__(self): self.L = []; self.uid = 0
    def A(self, s): self.L.append("    " + s)
    def lab(self, s): self.L.append(s + ":")
    def c(self, s): self.L.append("    ; " + s)
    def new(self, p): self.uid += 1; return f"L_{p}_{self.uid}"
    def nop(self, n):
        if n > 0: self.A(f"s_nop {n-1}")

sKS = "s[4:7]"; sVS = "s[8:11]"; sWS = "s[12:15]"; sT1 = "s[16:19]"; sT2 = "s[20:23]"
sWAVE = "s24"; sH = "s25"; sS = "s26"; sTAG = "s27"; sEP = "s28"; sBASE = "s29"; sBUD = "s30"
sLAM = "s31"; sZ = "s32"; sC = "s33"; sSTEP = "s34"; sROLE = "s35"; sRI = "s36"
sBASE0 = "s59"; sMK = {2: ("s60", "s61"), 3: ("s62", "s63")}; sMC = {2: ("s76", "s77"), 3: ("s78", "s79")}
sNXT = "s52"; sV2 = "s53"; sV3 = "s54"; sLAM0 = "s55"; sROT = "s56"
vLANE = 1; vOFF = 2; vM = 4; vMC = 5; vL = 6
Q = 16; ACC = 32; RING = 96; TMP = 224
vXH = 64; vB2 = 65; vB1 = 66; vSTAMP = 251
sLOC = "s57"
R0 = RING
D = 4

def srd(g, dst, lo, nbytes):
    g.A(f"s_mov_b32 s{dst}, s{lo}"); g.A(f"s_mov_b32 s{dst+1}, s{lo+1}")
    g.A(f"s_mov_b32 s{dst+2}, {nbytes:#x}"); g.A(f"s_mov_b32 s{dst+3}, 0x20000")
def bf16r(g, dst, src, tmp=None):
    tmp = dst if tmp is None else tmp
    g.A(f"v_cvt_pk_bf16_f32 v{tmp}, v{src}, v{src}")
    g.A(f"v_and_b32 v{dst}, 0xffff0000, v{tmp}")
def dpp(g, op, dst, src0, src1, ctrl, rm=0xf, bm=0xf):
    g.A(f"{op}_dpp v{dst}, v{src0}, v{src1} {ctrl} row_mask:{rm:#x} bank_mask:{bm:#x}")
def wave_sum2(g, a, b, sa, sb):
    g.nop(2)
    for ctrl in ("row_ror:8", "row_ror:4", "row_ror:2", "row_ror:1"):
        dpp(g, "v_add_f32", a, a, a, ctrl); dpp(g, "v_add_f32", b, b, b, ctrl); g.nop(1)
    dpp(g, "v_add_f32", a, a, a, "row_bcast:15", rm=0xa); dpp(g, "v_add_f32", b, b, b, "row_bcast:15", rm=0xa); g.nop(1)
    dpp(g, "v_add_f32", a, a, a, "row_bcast:31", rm=0xc); dpp(g, "v_add_f32", b, b, b, "row_bcast:31", rm=0xc); g.nop(1)
    g.A(f"v_readlane_b32 {sa}, v{a}, 63"); g.A(f"v_readlane_b32 {sb}, v{b}, 63")
    g.nop(2)
def layernorm(g, vals, t, masked=None):
    c, s1, s2, y, mean, rs = t[:6]
    g.A(f"v_readfirstlane_b32 s37, v{vals[0]}")
    g.A(f"v_mov_b32 v{s1}, 0"); g.A(f"v_mov_b32 v{s2}, 0")
    if masked: g.A(f"s_mov_b64 exec, {masked}")
    for v in vals:
        g.A(f"v_subrev_f32 v{y}, s37, v{v}")
        g.A(f"v_add_f32 v{s1}, v{s1}, v{y}")
        g.A(f"v_fmac_f32 v{s2}, v{y}, v{y}")
    if masked: g.A("s_mov_b64 exec, -1")
    wave_sum2(g, s1, s2, "s38", "s39")
    g.A(f"s_mov_b32 s40, {INVN:#x}")
    g.A(f"v_mul_f32 v{y}, s38, v{rs}") if False else None
    g.A(f"v_mov_b32 v{y}, s38"); g.A(f"v_mov_b32 v{s2}, s39")
    g.A(f"v_mul_f32 v{y}, s40, v{y}"); g.A(f"v_mul_f32 v{s2}, s40, v{s2}")
    g.A(f"v_add_f32 v{mean}, s37, v{y}")
    g.A(f"v_fma_f32 v{s2}, -v{y}, v{y}, v{s2}")
    g.A(f"v_max_f32 v{s2}, 0, v{s2}")
    bf16r(g, mean, mean)
    bf16r(g, s2, s2)
    g.A(f"v_add_f32 v{s2}, {EPS:#x}, v{s2}")
    bf16r(g, s2, s2)
    g.A(f"v_sqrt_f32 v{s2}, v{s2}")
    for v in vals: g.A(f"v_sub_f32 v{v}, v{v}, v{mean}")
    bf16r(g, s2, s2)
    g.A(f"v_rcp_f32 v{rs}, v{s2}")
    for v in vals: bf16r(g, v, v)
    for v in vals:
        g.A(f"v_mul_f32 v{y}, v{v}, v{rs}")
        g.A(f"v_fma_f32 v{v}, -v{y}, v{s2}, v{v}")
        g.A(f"v_fma_f32 v{v}, v{v}, v{rs}, v{y}")
    for v in vals: bf16r(g, v, v)
def reduce_scatter(g, regs, stages, pre=3):
    regs = list(regs)
    g.nop(pre)
    for st in stages:
        h = len(regs) // 2
        lo, hi = regs[:h], regs[h:]
        if st in (32, 16):
            for a, b in zip(lo, hi): g.A(f"v_permlane{st}_swap_b32 v{a}, v{b}")
            g.nop(1 if h > 1 else 2)
            for a, b in zip(lo, hi): g.A(f"v_add_f32 v{a}, v{a}, v{b}")
            g.nop(max(0, 2 - (h - 1 - h // 2)))
        elif st == 8:
            for a, b in zip(lo, hi): dpp(g, "v_add_f32", a, a, a, "row_ror:8", bm=0x3)
            for a, b in zip(lo, hi): dpp(g, "v_add_f32", a, b, b, "row_ror:8", bm=0xc)
            g.nop(2)
        elif st == 4:
            for a, b in zip(lo, hi): dpp(g, "v_add_f32", a, a, a, "row_shl:4", bm=0x5)
            for a, b in zip(lo, hi): dpp(g, "v_add_f32", a, b, b, "row_shr:4", bm=0xa)
            g.nop(2)
        regs = lo
    return regs
def allreduce_low(g, r, bits, op="v_add_f32"):
    for b in bits:
        ctrl = {0: "quad_perm:[1,0,3,2]", 1: "quad_perm:[2,3,0,1]", 2: "row_half_mirror"}[b]
        dpp(g, op, r, r, r, ctrl); g.nop(2)
def allreduce_high(g, regs, tmps, op="v_add_f32"):
    if not isinstance(regs, list): regs = [regs]; tmps = [tmps]
    n = len(regs)
    for r in regs: dpp(g, op, r, r, r, "row_ror:8")
    for st in (16, 32):
        for r, t in zip(regs, tmps): g.A(f"v_mov_b32 v{t}, v{r}")
        g.nop(max(0, 3 - n) if n > 1 else 2)
        for r, t in zip(regs, tmps): g.A(f"v_permlane{st}_swap_b32 v{r}, v{t}")
        g.nop(1)
        for r, t in zip(regs, tmps): g.A(f"{op} v{r}, v{r}, v{t}")
    g.nop(2)
def poll(g, emit_loads, tagregs, t0, t1, sleep=0):
    lp = g.new("poll"); ok = g.new("ok")
    g.lab(lp)
    emit_loads()
    g.A("s_waitcnt vmcnt(0)")
    g.A(f"v_xor_b32 v{t0}, {sTAG}, v{tagregs[0]}")
    for t in tagregs[1:]:
        g.A(f"v_xor_b32 v{t1}, {sTAG}, v{t}")
        g.A(f"v_or_b32 v{t0}, v{t0}, v{t1}")
    g.A(f"v_cmp_ne_u32 vcc, 0, v{t0}")
    g.A(f"s_cbranch_vccz {ok}")
    if sleep: g.A(f"s_sleep {sleep}")
    g.A(f"s_sub_u32 {sBUD}, {sBUD}, 1")
    g.A(f"s_cbranch_scc0 {lp}")
    g.A(f"s_mov_b32 {sBUD}, 0")
    g.lab(ok)
def selpoll(g, groups, t0, t1, sflags="s49", first_issued=False, sleep=0, dbgbase=None):
    n = len(groups)
    lp = g.new("sp"); ok = g.new("spok"); chk = g.new("spchk")
    g.A(f"s_mov_b32 {sflags}, {(1 << n) - 1}")
    if first_issued: g.A(f"s_branch {chk}")
    g.lab(lp)
    for i, (ld, tags) in enumerate(groups):
        sk = g.new("sk")
        g.A(f"s_bitcmp1_b32 {sflags}, {i}"); g.A(f"s_cbranch_scc0 {sk}")
        ld()
        g.lab(sk)
    g.lab(chk)
    g.A("s_waitcnt vmcnt(0)")
    if dbgbase is not None:
        g.A("s_memrealtime s[90:91]"); g.A("s_waitcnt lgkmcnt(0)")
        g.A("s_add_u32 s92, s92, 1"); g.A(f"s_min_u32 m0, s92, {dbgbase+7}"); g.A("s_nop 0")
        g.A(f"v_writelane_b32 v{vSTAMP}, s90, m0")
    for i, (ld, tags) in enumerate(groups):
        sk = g.new("sc")
        g.A(f"s_bitcmp1_b32 {sflags}, {i}"); g.A(f"s_cbranch_scc0 {sk}")
        g.A(f"v_xor_b32 v{t0}, {sTAG}, v{tags[0]}")
        for t in tags[1:]:
            g.A(f"v_xor_b32 v{t1}, {sTAG}, v{t}"); g.A(f"v_or_b32 v{t0}, v{t0}, v{t1}")
        g.A(f"v_cmp_ne_u32 vcc, 0, v{t0}")
        g.A(f"s_cbranch_vccnz {sk}")
        g.A(f"s_bitset0_b32 {sflags}, {i}")
        g.lab(sk)
    g.A(f"s_cmp_eq_u32 {sflags}, 0"); g.A(f"s_cbranch_scc1 {ok}")
    if sleep: g.A(f"s_sleep {sleep}")
    g.A(f"s_sub_u32 {sBUD}, {sBUD}, 1")
    g.A(f"s_cbranch_scc0 {lp}")
    g.A(f"s_mov_b32 {sBUD}, 0")
    g.lab(ok)
def perm_pair(g, a, b, tmp):
    g.A(f"v_perm_b32 v{tmp}, v{b}, v{a}, s41")
    g.A(f"v_perm_b32 v{b}, v{b}, v{a}, s42")
    g.A(f"v_mov_b32 v{a}, v{tmp}")

def generate(dbg=False, HALF=0, ROT=48, BAR=1, H1SLEEP=0, PACE=4, NS=20, COMP=14, QPRE=0, PRE=4, QD=60, H1N=14, CPF=16, CPFN=3, SD=0, NOCOMP=0, FAKE=0, LOOK=1, CSTR=4352, AFL=2, GNT=0, TOUCH=0, NOLOC=0, TPF=0, PT=3, PTD=0):
    g = Gen(); A = g.A
    HF = 512 - HALF
    NIT = HF + 2*HALF
    def stepstamp():
        if dbg == 3:
            A("s_memrealtime s[90:91]"); A("s_waitcnt lgkmcnt(0)")
            A("s_add_u32 s92, s92, 1"); A("s_min_u32 m0, s92, 63"); A("s_nop 0")
            A(f"v_writelane_b32 v{vSTAMP}, s90, m0")
    def hstamp(slot, cond_id, wave=0):
        if dbg == 4:
            l = g.new("hs")
            A(f"s_cmp_lg_u32 s2, {cond_id}"); A(f"s_cbranch_scc1 {l}")
            A(f"s_cmp_lg_u32 {sWAVE}, {wave}"); A(f"s_cbranch_scc1 {l}")
            A("s_memrealtime s[90:91]"); A("s_waitcnt lgkmcnt(0)")
            A("s_mov_b32 s96, s86"); A("s_mov_b32 s97, s87"); A("s_mov_b32 s98, 256"); A("s_mov_b32 s99, 0x20000")
            A(f"v_mov_b32 v252, s90"); A(f"v_mov_b32 v253, {4*slot}")
            A("s_mov_b64 s[92:93], exec"); A("s_mov_b64 exec, 1")
            A("buffer_store_dword v252, v253, s[96:99], 0 offen")
            A("s_mov_b64 exec, s[92:93]")
            g.lab(l)
    def tst(i):
        if dbg == 5:
            A("s_memrealtime s[90:91]"); A("s_waitcnt lgkmcnt(0)")
            A(f"v_writelane_b32 v{vSTAMP}, s90, {i}")
    def code_pf(wave, lab_from, lab_to, n, vd):
        l = g.new("cpf"); lp = g.new("cpc")
        A(f"s_cmp_lg_u32 {sWAVE}, {wave}"); A(f"s_cbranch_scc1 {l}")
        A("s_getpc_b64 s[96:97]")
        g.lab(lp)
        A(f"s_add_u32 s96, s96, {lab_from}-{lp}"); A("s_addc_u32 s97, s97, 0")
        A(f"v_lshlrev_b32 v3, 7, v{vLANE}")
        A(f"s_mov_b32 s98, {lab_to}-{lab_from}")
        le = g.new("cpe")
        for i in range(n):
            A("v_cmp_gt_u32 vcc, s98, v3"); A("s_and_b64 exec, exec, vcc")
            A(f"s_cbranch_execz {le}")
            A(f"global_load_dword v{vd}, v3, s[96:97]")
            A("v_add_u32 v3, 0x2000, v3")
        g.lab(le)
        A("s_mov_b64 exec, -1")
        g.lab(l)
    def stamp(i):
        if dbg == 5:
            if i in (3, 9): tst(i)
            return
        if dbg == 4:
            if i == 2:
                hstamp(2, 0); hstamp(3, 255)
            if i == 3:
                hstamp(4, 0); hstamp(5, 77); hstamp(6, 130); hstamp(7, 255)
            if i == 9:
                hstamp(8, 3); hstamp(9, 0); hstamp(10, 19)
            return
        if dbg == 3 and i in (3, 9):
            A("s_memrealtime s[90:91]"); A("s_waitcnt lgkmcnt(0)")
            A(f"v_writelane_b32 v{vSTAMP}, s90, {i}")
        if dbg == 1 or (dbg == 2 and i in (2, 3, 9, 4, 5)) :
            A("s_memrealtime s[90:91]"); A("s_waitcnt lgkmcnt(0)")
            A(f"v_writelane_b32 v{vSTAMP}, s90, {i}")
    A("s_cmp_ge_u32 s2, 256")
    A("s_cbranch_scc1 L_exit")
    if dbg: A("s_memrealtime s[94:95]")
    A("s_load_dwordx16 s[64:79], s[0:1], 0")
    A("s_load_dwordx8 s[80:87], s[0:1], 64")
    A("s_load_dwordx2 s[88:89], s[0:1], 96")
    A(f"v_and_b32 v{vLANE}, 63, v0")
    if CPF:
        g.c("code prefetch into L2 (wave 7 of the first CPF workgroups)")
        A(f"s_cmp_ge_u32 s2, {CPF}"); A("s_cbranch_scc1 L_nocpf")
        A("v_cmp_lt_u32 vcc, 447, v0"); A("s_cbranch_vccz L_nocpf")
        A("s_getpc_b64 s[96:97]")
        g.lab("L_pc")
        A(f"v_lshlrev_b32 v3, 7, v{vLANE}")
        A("s_mov_b32 s98, L_exit-L_pc")
        for i in range(CPFN):
            A("v_cmp_gt_u32 vcc, s98, v3"); A("s_and_b64 exec, exec, vcc")
            A(f"s_cbranch_execz L_cpfend")
            A(f"global_load_dword v{252+(i&3)}, v3, s[96:97]")
            A("v_add_u32 v3, 0x2000, v3")
        g.lab("L_cpfend")
        A("s_mov_b64 exec, -1")
        g.lab("L_nocpf")
    A("v_lshrrev_b32 v3, 6, v0")
    A(f"v_lshrrev_b32 v7, 3, v{vLANE}")
    A(f"v_readfirstlane_b32 {sWAVE}, v3")
    A("v_lshlrev_b32 v7, 9, v7")
    A(f"v_and_b32 v{vOFF}, 7, v{vLANE}")
    A(f"v_lshlrev_b32 v{vOFF}, 4, v{vOFF}")
    A(f"v_add_u32 v{vOFF}, v{vOFF}, v7")
    A(f"s_lshr_b32 {sH}, s2, 4")
    A(f"s_and_b32 {sS}, s2, 15")
    A(f"s_lshl_b32 {sBASE}, {sH}, 24"); A(f"s_mov_b32 {sBASE0}, {sBASE}")
    A(f"s_mul_i32 {sROT}, {sH}, {ROT*8}")
    A(f"s_lshl_b32 {sLAM0}, {sS}, 3"); A(f"s_add_u32 {sLAM0}, {sLAM0}, {sWAVE}")
    A(f"s_mov_b32 {sZ}, 0")
    A(f"s_mov_b32 {sC}, {CSC:#x}")
    A(f"s_mov_b32 {sBUD}, 0x40000")
    A("s_waitcnt lgkmcnt(0)")
    if dbg and dbg != 4: A(f"v_mov_b32 v{vSTAMP}, 0"); A(f"v_writelane_b32 v{vSTAMP}, s94, 0")
    srd(g, 4, 66, 0x10000000); srd(g, 8, 68, 0x10000000); srd(g, 12, 88, 0x40000000)
    hstamp(0, 0); hstamp(1, 255)
    def tile_addr(vdst):
        A(f"s_lshl_b32 s46, {sZ}, 7"); A(f"s_add_u32 s46, s46, {sLAM0}")
        A(f"s_add_u32 s46, s46, {sROT}"); A("s_and_b32 s46, s46, 4095"); A("s_lshl_b32 s46, s46, 12")
        A(f"s_add_u32 s46, s46, {sBASE}")
        A(f"v_add_u32 v{vdst}, s46, v{vOFF}")
        A(f"s_add_u32 {sZ}, {sZ}, 1")
    def tile_addr_dyn(vdst, smk):
        A(f"s_lshl_b32 s46, {sNXT}, 6"); A(f"s_lshl_b32 s47, {sWAVE}, 3"); A("s_add_u32 s46, s46, s47")
        if HALF:
            A(f"s_lshl_b32 s47, {sNXT}, 5"); A(f"s_add_u32 s47, s47, {32*HF}"); A(f"s_lshl_b32 s49, {sWAVE}, 2"); A("s_add_u32 s47, s47, s49")
            A(f"s_cmp_lt_u32 {sNXT}, {HF}"); A("s_cselect_b32 s46, s46, s47")
            A(f"s_cselect_b32 {smk[1]}, -1, 0"); A(f"s_mov_b32 {smk[0]}, -1")
        else:
            A(f"s_mov_b32 {smk[0]}, -1"); A(f"s_mov_b32 {smk[1]}, -1")
        A(f"s_lshl_b32 s47, {sROT}, 3"); A("s_add_u32 s46, s46, s47"); A("s_and_b32 s46, s46, 32767"); A("s_lshl_b32 s46, s46, 9")
        A(f"s_add_u32 s46, s46, {sBASE0}")
        A(f"s_cmp_lt_u32 {sNXT}, {NIT}")
        A(f"s_cselect_b32 s46, s46, 0x80000000")
        A(f"s_cselect_b32 {smk[0]}, {smk[0]}, 1"); A(f"s_cselect_b32 {smk[1]}, {smk[1]}, 0")
        A(f"v_add_u32 v{vdst}, s46, v{vOFF}")
    def loads(b, srdn, va):
        for j in range(4):
            off = f" offset:{j*128}" if j else ""
            A(f"buffer_load_dwordx4 v[{b+4*j}:{b+4*j+3}], v{va}, {srdn}, 0 offen{off} nt")
    VA = [12, 13, 14, 15]
    KB = [RING + 32*k for k in range(D)]; VB = [RING + 32*k + 16 for k in range(D)]
    A(f"s_cmp_lg_u32 {sWAVE}, 0")
    A("s_cbranch_scc1 L_others")
    g.c("wave0: x, epoch, wq partial loads (64 cols x 112 rows)")
    A("s_setprio 3")
    srd(g, 16, 64, 896); srd(g, 20, 70, 448*8192)
    A("v_mov_b32 v8, 0")
    A(f"v_lshlrev_b32 v9, 1, v{vLANE}")
    XR = [88+k for k in range(7)]
    for k in range(7): A(f"buffer_load_ushort v{XR[k]}, v9, {sT1}, 0 offen offset:{128*k} nt")
    A(f"buffer_load_dword v95, v8, {sWS}, 0 offen sc1")
    A(f"s_mul_i32 s44, {sH}, {CSTR}"); A(f"s_add_u32 s44, s44, {CNT:#x}")
    A(f"s_cmp_lg_u32 {sS}, 0"); A("s_cbranch_scc1 L_nozero")
    A("s_mov_b64 exec, 1")
    A(f"buffer_store_dword v8, v8, {sWS}, s44 offen sc1")
    A("s_mov_b64 exec, -1")
    g.lab("L_nozero")
    A("s_and_b32 s43, s2, 3")
    A("s_lshr_b32 s44, s2, 2"); A("s_lshl_b32 s44, s44, 7")
    A(f"s_mul_i32 s45, s43, {112*8192}"); A("s_add_u32 s44, s44, s45")
    A(f"v_lshrrev_b32 v10, 3, v{vLANE}"); A("v_lshlrev_b32 v10, 13, v10")
    A(f"v_and_b32 v11, 7, v{vLANE}"); A("v_lshlrev_b32 v11, 4, v11"); A("v_add3_u32 v10, v10, v11, s44")
    WQ = 32
    for j in range(14):
        A(f"s_mov_b32 s45, {j*8*8192}")
        A(f"buffer_load_dwordx4 v[{WQ+4*j}:{WQ+4*j+3}], v10, {sT2}, s45 offen nt")
    if TOUCH & 2:
        A(f"v_lshlrev_b32 v11, 4, v{vLANE}")
        A(f"s_lshl_b32 s44, {sH}, 13"); A(f"s_add_u32 s44, s44, {QP:#x}")
        for kq in range(8):
            A(f"buffer_load_dwordx4 v[{TMP+20}:{TMP+23}], v11, {sWS}, s44 offen sc1")
            A("s_add_u32 s44, s44, 1024")
    A("s_barrier")
    g.c("wave0: layernorm(x), q partial")
    A("s_waitcnt vmcnt(15)")
    stamp(13)
    for k in range(7): A(f"v_lshlrev_b32 v{XR[k]}, 16, v{XR[k]}")
    layernorm(g, XR, [TMP, TMP+1, TMP+2, TMP+3, TMP+4, TMP+5])
    A(f"v_lshlrev_b32 v9, 2, v{vLANE}")
    for k in range(7): A(f"ds_write_b32 v9, v{XR[k]} offset:{L_X + 256*k}")
    A("s_mul_i32 s45, s43, 448")
    A(f"v_lshrrev_b32 v9, 3, v{vLANE}"); A("v_lshlrev_b32 v9, 2, v9"); A("v_add_u32 v9, s45, v9")
    A("s_waitcnt lgkmcnt(0)")
    XJ = [TMP + j for j in range(14)]
    for j in range(14): A(f"ds_read_b32 v{XJ[j]}, v9 offset:{L_X + 32*j}")
    A(f"s_waitcnt vmcnt({14 + (8 if TOUCH & 2 else 0)})")
    A(f"v_readfirstlane_b32 {sEP}, v95")
    for i in range(8): A(f"v_mov_b32 v{Q+i}, 0")
    A(f"s_mul_i32 {sTAG}, {sEP}, 0x9E3779B1")
    A(f"s_add_u32 {sTAG}, {sTAG}, 0x85EBCA6B")
    A("s_waitcnt vmcnt(0) lgkmcnt(0)")
    stamp(14)
    for j in range(14):
        xl = TMP + 14 + (j & 1)
        A(f"v_lshrrev_b32 v{xl}, 16, v{XJ[j]}")
        for i in range(4):
            A(f"v_dot2c_f32_bf16 v{Q+2*i}, v{WQ+4*j+i}, v{xl}")
            A(f"v_dot2c_f32_bf16 v{Q+2*i+1}, v{WQ+4*j+i}, v{XJ[j]}")
    r = reduce_scatter(g, [Q+i for i in range(8)], [32, 16, 8])[0]
    A(f"v_mov_b32_dpp v{r+2}, v{r} row_ror:8 row_mask:0xf bank_mask:0xf")
    A(f"v_mov_b32 v{r+1}, {sTAG}"); A(f"v_mov_b32 v{r+3}, {sTAG}")
    A(f"v_and_b32 v9, 7, v{vLANE}"); A("v_lshlrev_b32 v9, 6, v9")
    A(f"v_lshrrev_b32 v11, 3, v{vLANE}"); A("v_lshlrev_b32 v11, 3, v11"); A("v_add_u32 v9, v9, v11")
    A(f"s_lshl_b32 s44, {sH}, 13"); A("s_lshl_b32 s45, s43, 11"); A("s_add_u32 s44, s44, s45")
    A(f"s_lshr_b32 s45, {sS}, 2"); A("s_lshl_b32 s45, s45, 9"); A("s_add_u32 s44, s44, s45"); A(f"s_add_u32 s44, s44, {QP:#x}")
    A("s_mov_b32 exec_lo, 0x00ff00ff"); A("s_mov_b32 exec_hi, 0x00ff00ff")
    A(f"buffer_store_dwordx4 v[{r}:{r+3}], v9, {sWS}, s44 offen sc1")
    A("s_mov_b64 exec, -1")
    stamp(1)
    g.c("wave0: gather q partials of own head")
    A(f"v_lshlrev_b32 v9, 4, v{vLANE}")
    A(f"s_lshl_b32 s44, {sH}, 13"); A(f"s_add_u32 s44, s44, {QP:#x}")
    A("v_add_u32 v9, s44, v9")
    A(f"v_lshlrev_b32 v11, 4, v{vLANE}")
    for i in range(4): A(f"v_mov_b32 v{TMP+16+i}, 0")
    A(f"ds_write_b128 v11, v[{TMP+16}:{TMP+19}] offset:{L_XP}")
    for k in range(QPRE):
        tile_addr(VA[k]); loads(KB[k], sKS, VA[k]); loads(VB[k], sVS, VA[k])
    if QD: A(f"s_sleep {QD}")
    QG = 32
    def q_loads():
        for kq in range(4):
            A(f"s_movk_i32 s45, {kq*2048}")
            for i in range(2):
                off = f" offset:{i*1024}" if i else ""
                A(f"buffer_load_dwordx4 v[{QG+8*kq+4*i}:{QG+8*kq+4*i+3}], v9, {sWS}, s45 offen{off} sc1")
    qtags = [QG+4*m+1 for m in range(8)] + [QG+4*m+3 for m in range(8)]
    q_loads()
    A("s_barrier")
    stamp(12)
    A("s_waitcnt vmcnt(0)")
    A(f"v_xor_b32 v{TMP+5}, {sTAG}, v{qtags[0]}")
    for t in qtags[1:]:
        A(f"v_xor_b32 v{TMP+6}, {sTAG}, v{t}"); A(f"v_or_b32 v{TMP+5}, v{TMP+5}, v{TMP+6}")
    A(f"v_cmp_ne_u32 vcc, 0, v{TMP+5}")
    A("s_cbranch_vccz L_qok")
    A(f"s_sub_u32 {sBUD}, {sBUD}, 1")
    poll(g, q_loads, qtags, TMP+5, TMP+6)
    g.lab("L_qok")
    stamp(10)
    if dbg == 1: A(f"v_writelane_b32 v{vSTAMP}, {sBUD}, 11")
    for i in range(2):
        for e in (0, 2):
            A(f"v_add_f32 v{QG+4*i+e}, v{QG+4*i+e}, v{QG+8+4*i+e}")
            A(f"v_add_f32 v{QG+16+4*i+e}, v{QG+16+4*i+e}, v{QG+24+4*i+e}")
            A(f"v_add_f32 v{QG+4*i+e}, v{QG+4*i+e}, v{QG+16+4*i+e}")
        A(f"v_cvt_pk_bf16_f32 v{TMP+8+i}, v{QG+4*i}, v{QG+4*i+2}")
    A(f"v_lshlrev_b32 v9, 2, v{vLANE}")
    A(f"ds_write_b32 v9, v{TMP+8} offset:{L_Q}")
    A(f"ds_write_b32 v9, v{TMP+9} offset:{L_Q+256}")
    A(f"v_mov_b32 v{TMP+12}, {sTAG}"); A(f"v_mov_b32 v{TMP+13}, {sEP}"); A(f"v_mov_b32 v{TMP+7}, 0")
    A(f"ds_write_b64 v{TMP+7}, v[{TMP+12}:{TMP+13}] offset:{L_TAG}")
    for k in range(QPRE, D):
        tile_addr(VA[k]); loads(KB[k], sKS, VA[k]); loads(VB[k], sVS, VA[k])
    A("s_setprio 0")
    A("s_waitcnt lgkmcnt(0)")
    A("s_branch L_waitq")
    g.lab("L_others")
    A("s_barrier")
    if SD: A(f"s_sleep {SD}")
    groups = []
    for k in range(D): groups += [("K", k), ("V", k)]
    for gi, (kind, k) in enumerate(groups):
        if gi == PRE: A("s_barrier")
        if kind == "K": tile_addr(VA[k]); loads(KB[k], sKS, VA[k])
        else: loads(VB[k], sVS, VA[k])
    g.lab("L_waitq")
    A("s_barrier")
    stamp(2)
    if dbg == 5:
        A("s_memtime s[90:91]"); A("s_waitcnt lgkmcnt(0)"); A(f"v_writelane_b32 v{vSTAMP}, s90, 58")
        A("s_memrealtime s[90:91]"); A("s_waitcnt lgkmcnt(0)"); A(f"v_writelane_b32 v{vSTAMP}, s90, 59")
    A(f"v_and_b32 v7, 7, v{vLANE}"); A("v_lshlrev_b32 v7, 4, v7")
    for c in range(4): A(f"ds_read_b128 v[{Q+4*c}:{Q+4*c+3}], v7 offset:{L_Q + 128*c}")
    A("v_mov_b32 v8, 0")
    A(f"ds_read_b64 v[10:11], v8 offset:{L_TAG}")
    for i in range(32): A(f"v_mov_b32 v{ACC+i}, 0")
    A(f"v_mov_b32 v{vM}, {NEG_BIG:#x}"); A(f"v_mov_b32 v{vMC}, {NEG_BIG:#x}"); A(f"v_mov_b32 v{vL}, 0")
    A("s_and_b32 s37, s2, 7"); A(f"s_lshr_b32 {sRI}, s2, 3")
    A(f"s_mov_b32 {sROLE}, 0"); A(f"s_mov_b32 {sLOC}, 0")
    A("s_cmp_lt_u32 s2, 224"); A("s_cselect_b32 s38, 1, 0")
    A("s_cmp_eq_u32 s37, 0"); A(f"s_cselect_b32 {sROLE}, s38, 0")
    A("s_waitcnt lgkmcnt(0)")
    A(f"v_readfirstlane_b32 {sTAG}, v10"); A(f"v_readfirstlane_b32 {sEP}, v11")
    A(f"s_mov_b32 {sSTEP}, 0")
    if dbg == 3: A("s_mov_b32 s92, 15")
    resc = []
    def body(k, kwait, vwait, issue, pre=None, post=None):
        kb, vb = KB[k], VB[k]
        g.c(f"slot {k} ({issue})")
        if pre: pre()
        stepstamp()
        A(f"s_waitcnt vmcnt({kwait})")
        for r_ in range(4): A(f"v_dot2_f32_bf16 v{7+r_}, v{kb+r_}, v{Q+r_}, 0")
        for r_ in range(4, 16 if not NOCOMP else 4): A(f"v_dot2c_f32_bf16 v{7+(r_&3)}, v{kb+r_}, v{Q+r_}")
        if issue == "static": tile_addr(VA[k]); loads(kb, sKS, VA[k])
        elif issue == "dyn":
            tile_addr_dyn(VA[k], sMK[k])
            A(f"s_mov_b64 exec, s[{sMK[k][0][1:]}:{sMK[k][1][1:]}]"); loads(kb, sKS, VA[k]); A("s_mov_b64 exec, -1")
        else: g.nop(3)
        A("v_add_f32 v7, v7, v8"); A("v_add_f32 v9, v9, v10"); A("v_add_f32 v7, v7, v9"); g.nop(2)
        allreduce_low(g, 7, [0, 1, 2])
        A("v_cvt_pk_bf16_f32 v8, v7, v7")
        A("v_lshlrev_b32 v7, 16, v8")
        if issue == "dyn" and HALF:
            A(f"v_cndmask_b32 v7, v3, v7, s[{sMC[k][0][1:]}:{sMC[k][1][1:]}]")
        A(f"v_cmp_gt_f32 vcc, v7, v{vM}")
        lr, lc = g.new("resc"), g.new("cont")
        A(f"s_cbranch_vccnz {lr}")
        g.lab(lc)
        A(f"v_fma_f32 v8, v7, {sC}, -v{vMC}")
        A("v_exp_f32 v8, v8"); g.nop(1)
        A(f"v_add_f32 v{vL}, v{vL}, v8")
        A("v_cvt_pk_bf16_f32 v9, v8, 0")
        A("v_cvt_pk_bf16_f32 v10, 0, v8")
        A(f"s_waitcnt vmcnt({vwait})")
        for c in range(4 if not NOCOMP else 0):
            for i in range(4):
                A(f"v_dot2c_f32_bf16 v{ACC+8*c+2*i}, v{vb+4*c+i}, v9")
                A(f"v_dot2c_f32_bf16 v{ACC+8*c+2*i+1}, v{vb+4*c+i}, v10")
        if issue == "static": loads(vb, sVS, VA[k])
        elif issue == "dyn":
            A(f"s_mov_b64 exec, s[{sMK[k][0][1:]}:{sMK[k][1][1:]}]"); loads(vb, sVS, VA[k]); A("s_mov_b64 exec, -1")
            if HALF: A(f"s_mov_b64 s[{sMC[k][0][1:]}:{sMC[k][1][1:]}], s[{sMK[k][0][1:]}:{sMK[k][1][1:]}]")
        if post: post()
        resc.append((lr, lc))
    g.lab("L_loop")
    for k in range(D):
        body(k, 28, 28, "static", pre=(lambda: A("s_barrier")) if (BAR == 1 or (BAR == 4 and k == 0) or (BAR == 2 and k % 2 == 0)) else None)
    A(f"s_add_u32 {sSTEP}, {sSTEP}, 4")
    A(f"s_cmp_eq_u32 {sSTEP}, 8"); A("s_cbranch_scc1 L_wload")
    A(f"s_cmp_eq_u32 {sSTEP}, 12"); A("s_cbranch_scc1 L_xgload")
    g.lab("L_loop_back")
    A(f"s_cmp_lt_u32 {sSTEP}, {NS-4}"); A("s_cbranch_scc1 L_loop")
    g.c("transition: consume slots 0,1 without issue")
    A(f"s_add_u32 s37, {sS}, {16*NS}"); A(f"v_mov_b32 v{TMP}, s37"); A(f"v_mov_b32 v{TMP+1}, 0")
    A(f"ds_write_b32 v{TMP+1}, v{TMP} offset:{L_CL}")
    A(f"s_mov_b32 {sV2}, 1"); A(f"s_mov_b32 {sV3}, 1"); A("s_mov_b32 s58, 0")
    A("s_mov_b64 s[76:77], -1"); A("s_mov_b64 s[78:79], -1"); A(f"v_mov_b32 v3, {NEG_BIG:#x}")
    if LOOK == 2: A(f"s_sub_u32 s37, {sS}, 16"); A(f"v_mov_b32 v{TMP+5}, s37")
    A(f"s_mul_i32 s48, {sH}, {CSTR}"); A(f"s_add_u32 s48, s48, {CNT:#x}")
    def xg_check():
        l = g.new("xgs"); l2 = g.new("xgok")
        A(f"s_cmp_eq_u32 {sROLE}, 0"); A(f"s_cbranch_scc1 {l}")
        A("s_mov_b32 exec_lo, 0x0fffffff"); A("s_mov_b32 exec_hi, 0")
        A(f"v_cmp_ne_u32 vcc, {sTAG}, v{TMP+13}")
        A(f"s_cbranch_vccz {l2}")
        A(f"v_lshlrev_b32 v{TMP+14}, 3, v{vLANE}"); A(f"v_add_u32 v{TMP+14}, {XG:#x}, v{TMP+14}")
        poll(g, lambda: A(f"buffer_load_dwordx2 v[{TMP+12}:{TMP+13}], v{TMP+14}, {sWS}, 0 offen sc1"), [TMP+13], TMP+8, TMP+9, sleep=2)
        g.lab(l2)
        A("s_getreg_b32 s37, hwreg(HW_REG_XCC_ID)"); A("s_and_b32 s37, s37, 15")
        A(f"v_cmp_ne_u32 vcc, s37, v{TMP+12}")
        A("s_cmp_eq_u64 vcc, 0"); A(f"s_cselect_b32 {sLOC}, 1, 0")
        if NOLOC: A(f"s_mov_b32 {sLOC}, 0")
        A("s_mov_b64 exec, -1")
        g.lab(l)
    body(0, 28, 24, "none", pre=lambda: A("s_barrier"), post=xg_check)
    body(1, 20, 16, "none", pre=lambda: A("s_barrier"), post=lambda: A("s_waitcnt lgkmcnt(0)"))
    if dbg == 2: stamp(5)
    if TPF & 1: code_pf(6, "L_s0", "L_exit", 2, TMP+20)
    g.lab("L_dyn")
    for k in (2, 3):
        p = k & 1
        sV = sV2 if k == 2 else sV3
        RA = [TMP+3, TMP+5]
        def pre(k=k, p=p, sV=sV):
            A("s_barrier")
            A(f"ds_read_b32 v{TMP+2}, v{TMP+1} offset:{L_CL + 4*p}")
            A(f"s_cmp_eq_u32 {sV}, 0"); A("s_cbranch_scc1 L_s0")
            A("s_waitcnt lgkmcnt(0)")
            A(f"v_readfirstlane_b32 {sNXT}, v{TMP+2}")
            l = g.new("noclaim")
            A(f"s_cmp_lg_u32 {sWAVE}, 0"); A(f"s_cbranch_scc1 {l}")
            A(f"s_cmp_ge_u32 {sNXT}, {NIT}"); A(f"s_cbranch_scc1 {l}")
            ra = RA[p] if LOOK == 2 else RA[0]
            A(f"v_mov_b32 v{ra}, 1")
            A("s_mov_b64 exec, 1")
            if FAKE in (0, 3): A(f"buffer_atomic_add v{ra}, v{TMP+1}, {sWS}, s48 offen {['sc0', 'sc0 sc1', 'sc0 nt', 'sc0 sc1 nt'][AFL]}")
            elif FAKE == 2: A(f"buffer_load_dword v{ra}, v{TMP+1}, {sWS}, s48 offen sc1")
            A("s_mov_b64 exec, -1")
            g.lab(l)
        def post(k=k, p=p, sV=sV):
            A(f"s_cmp_lt_u32 {sNXT}, {NIT}"); A(f"s_cselect_b32 {sV}, 1, 0")
            if dbg: A(f"s_add_u32 {sSTEP}, {sSTEP}, {sV}")
            if PT & 4:
                lt = g.new("ept")
                A(f"s_cmp_lg_u32 {sWAVE}, 4"); A(f"s_cbranch_scc1 {lt}")
                A(f"s_cmp_lt_u32 {sNXT}, {NIT}"); A(f"s_cbranch_scc1 {lt}")
                A(f"s_cmp_eq_u32 s58, 1"); A(f"s_cbranch_scc1 {lt}")
                A("s_mov_b32 s58, 1")
                A(f"v_lshlrev_b32 v{TMP+8}, 4, v{vLANE}")
                A(f"s_lshl_b32 s38, {sH}, 15"); A(f"s_lshl_b32 s39, {sS}, 11"); A("s_add_u32 s38, s38, s39"); A(f"s_add_u32 s38, s38, {OP:#x}")
                A(f"buffer_load_dwordx4 v[{TMP+20}:{TMP+23}], v{TMP+8}, {sWS}, s38 offen sc1")
                A(f"buffer_load_dwordx4 v[{TMP+20}:{TMP+23}], v{TMP+8}, {sWS}, s38 offen offset:1024 sc1")
                A(f"s_lshl_b32 s38, {sH}, 12"); A(f"s_lshl_b32 s39, {sS}, 8"); A("s_add_u32 s38, s38, s39"); A(f"s_add_u32 s38, s38, {ST:#x}")
                A("s_mov_b64 exec, 0xffff")
                A(f"buffer_load_dwordx4 v[{TMP+20}:{TMP+23}], v{TMP+8}, {sWS}, s38 offen sc1")
                A("s_mov_b64 exec, -1")
                g.lab(lt)
            l = g.new("nopub")
            A(f"s_cmp_lg_u32 {sWAVE}, 0"); A(f"s_cbranch_scc1 {l}")
            ra = RA[p^1] if LOOK == 2 else RA[0]
            A(f"s_waitcnt vmcnt({17 if LOOK == 2 else 8})")
            if FAKE: A(f"s_add_u32 s49, {sNXT}, 16"); A(f"v_mov_b32 v{ra}, s49")
            else: A(f"v_add_u32 v{ra}, {16*(NS+LOOK)}, v{ra}")
            A(f"v_mov_b32 v{TMP+4}, 0xffff")
            A(f"s_cmp_lt_u32 {sNXT}, {NIT}"); A("s_cselect_b64 vcc, -1, 0")
            A(f"v_cndmask_b32 v{TMP+4}, v{TMP+4}, v{ra}, vcc")
            A("s_mov_b64 exec, 1")
            A(f"ds_write_b32 v{TMP+1}, v{TMP+4} offset:{L_CL + 4*(p^1)}")
            A("s_mov_b64 exec, -1")
            A("s_waitcnt lgkmcnt(0)")
            g.lab(l)
        body(k, 12, 12, "dyn", pre=pre, post=post)
    A("s_branch L_dyn")
    for lr, lc in resc:
        g.lab(lr)
        A("v_mov_b32 v8, v7"); g.nop(2)
        dpp(g, "v_max_f32", 8, 8, 8, "row_ror:8"); g.nop(2)
        dpp(g, "v_max_f32", 8, 8, 8, "row_bcast:15", rm=0xa); g.nop(2)
        dpp(g, "v_max_f32", 8, 8, 8, "row_bcast:31", rm=0xc); g.nop(1)
        A("v_readlane_b32 s47, v8, 63"); g.nop(2)
        A(f"v_max_f32 v9, s47, v{vM}")
        A(f"v_sub_f32 v10, v{vM}, v9")
        A(f"v_mul_f32 v10, {sC}, v10")
        A("v_exp_f32 v10, v10")
        A(f"v_mov_b32 v{vM}, v9")
        A(f"v_mul_f32 v{vMC}, {sC}, v9")
        A(f"v_mul_f32 v{vL}, v10, v{vL}")
        for i in range(32): A(f"v_mul_f32 v{ACC+i}, v10, v{ACC+i}")
        A(f"s_branch {lc}")
    g.lab("L_wload")
    if dbg == 2: stamp(4)
    g.c("wo rows 2w,2w+1 of this WG's 16-row slice -> LDS")
    srd(g, 16, 72, 4096*896)
    A(f"v_lshlrev_b32 v{TMP}, 4, v{vLANE}")
    A(f"s_lshl_b32 s37, s2, 4"); A(f"s_lshl_b32 s38, {sWAVE}, 1"); A("s_add_u32 s37, s37, s38"); A("s_mul_i32 s37, s37, 896")
    A(f"s_lshl_b32 s38, {sWAVE}, 11"); A(f"s_add_u32 s38, s38, {L_WO}")
    for j in range(2):
        A("s_mov_b32 m0, s38"); A("s_nop 0")
        A(f"buffer_load_dwordx4 v{TMP}, {sT1}, s37 offen nt lds")
        A("s_add_u32 s37, s37, 896"); A("s_add_u32 s38, s38, 1024")
    A(f"s_cmp_eq_u32 {sROLE}, 0"); A("s_cbranch_scc1 L_loop_back")
    g.c("role WG: w1[:, 64a..+64) (wave w rows 56w + 8j + (l>>3), chunk l&7), w2 rows 64a + 8w + j, b1, x, b2, xcc granule")
    srd(g, 16, 76, 448*3584); srd(g, 20, 80, 1792*896)
    A(f"v_lshrrev_b32 v{TMP}, 3, v{vLANE}"); A("s_movk_i32 s37, 3584"); A(f"v_mul_lo_u32 v{TMP}, v{TMP}, s37")
    A(f"v_and_b32 v{TMP+1}, 7, v{vLANE}"); A(f"v_lshlrev_b32 v{TMP+1}, 4, v{TMP+1}"); A(f"v_add_u32 v{TMP}, v{TMP}, v{TMP+1}")
    A(f"s_mul_i32 s37, {sWAVE}, {56*3584}"); A(f"s_lshl_b32 s38, {sRI}, 7"); A("s_add_u32 s37, s37, s38")
    A(f"s_mul_i32 s38, {sWAVE}, {7*1024}"); A(f"s_add_u32 s38, s38, {L_W1}")
    for j in range(7):
        A("s_mov_b32 m0, s38"); A("s_nop 0")
        A(f"buffer_load_dwordx4 v{TMP}, {sT1}, s37 offen nt lds")
        A(f"s_add_u32 s37, s37, {8*3584}"); A("s_add_u32 s38, s38, 1024")
    A(f"v_lshlrev_b32 v{TMP+2}, 4, v{vLANE}")
    A(f"s_lshl_b32 s37, {sRI}, 6"); A(f"s_lshl_b32 s38, {sWAVE}, 3"); A("s_add_u32 s37, s37, s38"); A("s_mul_i32 s37, s37, 896")
    A(f"s_lshl_b32 s38, {sWAVE}, 13"); A(f"s_add_u32 s38, s38, {L_W2}")
    for j in range(8):
        A("s_mov_b32 m0, s38"); A("s_nop 0")
        A(f"buffer_load_dwordx4 v{TMP+2}, {sT2}, s37 offen nt lds")
        A("s_add_u32 s37, s37, 896"); A("s_add_u32 s38, s38, 1024")
    srd(g, 16, 78, 1792*2)
    A(f"v_and_b32 v{TMP+1}, 7, v{vLANE}"); A(f"v_lshlrev_b32 v{TMP+1}, 3, v{TMP+1}"); A(f"v_lshrrev_b32 v{TMP+3}, 3, v{vLANE}"); A(f"v_add_u32 v{TMP+1}, v{TMP+1}, v{TMP+3}")
    A(f"v_lshlrev_b32 v{TMP+1}, 1, v{TMP+1}"); A(f"s_lshl_b32 s37, {sRI}, 7"); A(f"v_add_u32 v{TMP+1}, s37, v{TMP+1}")
    A(f"buffer_load_ushort v{vB1}, v{TMP+1}, {sT1}, 0 offen nt")
    srd(g, 16, 64, 896); srd(g, 20, 82, 896)
    A(f"v_and_b32 v{TMP+1}, 15, v{vLANE}"); A(f"v_lshlrev_b32 v{TMP+1}, 1, v{TMP+1}"); A(f"s_lshl_b32 s37, {sRI}, 5"); A(f"v_add_u32 v{TMP+1}, s37, v{TMP+1}")
    A(f"buffer_load_ushort v{vXH}, v{TMP+1}, {sT1}, 0 offen nt")
    A(f"v_and_b32 v{TMP+3}, 7, v{vLANE}"); A(f"v_lshlrev_b32 v{TMP+3}, 1, v{TMP+3}"); A(f"v_lshrrev_b32 v{TMP+4}, 5, v{vLANE}"); A(f"v_add_u32 v{TMP+3}, v{TMP+3}, v{TMP+4}")
    A(f"v_lshlrev_b32 v{TMP+3}, 1, v{TMP+3}"); A(f"v_add_u32 v{TMP+3}, s37, v{TMP+3}")
    A(f"buffer_load_ushort v{vB2}, v{TMP+3}, {sT2}, 0 offen nt")
    A(f"s_cmp_lg_u32 {sWAVE}, 0"); A("s_cbranch_scc1 L_loop_back")
    A("s_getreg_b32 s37, hwreg(HW_REG_XCC_ID)"); A("s_and_b32 s37, s37, 15")
    A(f"v_mov_b32 v{TMP+6}, s37"); A(f"v_mov_b32 v{TMP+7}, {sTAG}"); A(f"s_lshl_b32 s37, {sRI}, 3"); A(f"s_add_u32 s37, s37, {XG:#x}"); A(f"v_mov_b32 v{TMP+5}, 0")
    A("s_mov_b64 exec, 1")
    A(f"buffer_store_dwordx2 v[{TMP+6}:{TMP+7}], v{TMP+5}, {sWS}, s37 offen sc1")
    A("s_mov_b64 exec, -1")
    A("s_branch L_loop_back")
    g.lab("L_xgload")
    A(f"s_cmp_eq_u32 {sROLE}, 0"); A("s_cbranch_scc1 L_loop_back")
    A(f"v_lshlrev_b32 v{TMP+14}, 3, v{vLANE}"); A(f"v_add_u32 v{TMP+14}, {XG:#x}, v{TMP+14}")
    A(f"buffer_load_dwordx2 v[{TMP+12}:{TMP+13}], v{TMP+14}, {sWS}, 0 offen sc1")
    A("s_branch L_loop_back")
    g.lab("L_s0")
    stamp(3)
    if dbg and dbg != 4: A(f"v_writelane_b32 v{vSTAMP}, {sSTEP}, 15")
    g.c("S0: in-wave reduce")
    T = TMP
    allreduce_high(g, vL, T)
    reduce_scatter(g, [ACC+i for i in range(32)], [32, 16, 8])
    A(f"v_lshrrev_b32 v7, 4, v{vLANE}"); A("v_lshlrev_b32 v7, 8, v7")
    A(f"v_and_b32 v8, 7, v{vLANE}"); A("v_lshlrev_b32 v8, 5, v8")
    A(f"v_bfe_u32 v9, v{vLANE}, 3, 1"); A("v_lshlrev_b32 v9, 4, v9")
    A("v_add3_u32 v7, v7, v8, v9")
    A(f"s_lshl_b32 s37, {sWAVE}, 10"); A("v_add_u32 v7, s37, v7")
    A(f"ds_write_b128 v7, v[{ACC}:{ACC+3}] offset:{L_O}")
    A(f"v_mov_b32 v8, v{vM}"); A(f"v_mov_b32 v9, v{vL}")
    A(f"s_lshl_b32 s37, {sWAVE}, 3"); A("v_mov_b32 v10, s37")
    A(f"ds_write_b64 v10, v[8:9] offset:{L_ST}")
    A("s_mov_b32 s41, 0x05040100"); A("s_mov_b32 s42, 0x07060302")
    A("s_waitcnt vmcnt(0) lgkmcnt(0)")
    A("s_barrier")
    tst(16)
    if dbg == 5:
        A("s_memtime s[90:91]"); A("s_waitcnt lgkmcnt(0)"); A(f"v_writelane_b32 v{vSTAMP}, s90, 56")
    if TPF & 2: code_pf(6, "L_post", "L_exit", 2, TMP+20)
    if PT:
        g.c("role WGs: idle waves pre-touch the lines that will be polled later")
        lpt = g.new("pt"); l7 = g.new("pt7"); l5 = g.new("pt5")
        A(f"s_cmp_eq_u32 {sROLE}, 0"); A(f"s_cbranch_scc1 {lpt}")
        A(f"s_cmp_lt_u32 {sWAVE}, 5"); A(f"s_cbranch_scc1 {lpt}")
        if PTD: A(f"s_sleep {PTD}")
        A(f"v_lshlrev_b32 v7, 4, v{vLANE}")
        DM = R0 + 120
        if PT & 1:
            A(f"s_cmp_lg_u32 {sWAVE}, 7"); A(f"s_cbranch_scc1 {l7}")
            A(f"s_mul_i32 s37, {sRI}, {FSTR}"); A(f"s_add_u32 s37, s37, {FP:#x}")
            for k in range(7):
                A(f"buffer_load_dwordx4 v[{DM}:{DM+3}], v7, {sWS}, s37 offen sc1"); A("s_add_u32 s37, s37, 1024")
            g.lab(l7)
            A(f"s_cmp_lg_u32 {sWAVE}, 5"); A(f"s_cbranch_scc1 {l5}")
            A(f"s_mov_b32 s37, {HG:#x}")
            A(f"buffer_load_dwordx4 v[{DM}:{DM+3}], v7, {sWS}, s37 offen sc1"); A(f"buffer_load_dwordx4 v[{DM}:{DM+3}], v7, {sWS}, s37 offen offset:1024 sc1")
            g.lab(l5)
        if PT & 2:
            A(f"s_mul_i32 s37, {sRI}, {YSTR}"); A(f"s_add_u32 s37, s37, {YP:#x}")
            A(f"s_sub_u32 s38, {sWAVE}, 5"); A("s_mul_i32 s38, s38, 11264"); A("s_add_u32 s37, s37, s38")
            for k in range(11):
                A(f"buffer_load_dwordx4 v[{DM}:{DM+3}], v7, {sWS}, s37 offen sc1"); A("s_add_u32 s37, s37, 1024")
        g.lab(lpt)
    A(f"s_cmp_eq_u32 {sWAVE}, 4"); A("s_cbranch_scc1 L_hop1")
    A(f"s_cmp_gt_u32 {sWAVE}, 3"); A("s_cbranch_scc1 L_post")
    A(f"s_cmp_gt_u32 {sWAVE}, 1"); A("s_cbranch_scc1 L_woprep")
    g.c("waves 0-1: cross-wave combine + publish (thread t: dims 2t, 2t+1)")
    A("v_mov_b32 v7, 0")
    for i in range(4): A(f"ds_read_b128 v[{T+4*i}:{T+4*i+3}], v7 offset:{L_ST+16*i}")
    A("v_lshlrev_b32 v8, 3, v0")
    OW = R0 + 64
    for w in range(8): A(f"ds_read_b64 v[{OW+2*w}:{OW+2*w+1}], v8 offset:{L_O+1024*w}")
    A("s_waitcnt lgkmcnt(8)")
    A(f"v_max3_f32 v9, v{T}, v{T+2}, v{T+4}"); A(f"v_max3_f32 v10, v{T+6}, v{T+8}, v{T+10}"); A(f"v_max3_f32 v9, v9, v{T+12}, v{T+14}"); A(f"v_max_f32 v9, v9, v10")
    for w in range(8): A(f"v_sub_f32 v{T+2*w}, v{T+2*w}, v9")
    for w in range(8): A(f"v_mul_f32 v{T+2*w}, {sC}, v{T+2*w}")
    for w in range(8): A(f"v_exp_f32 v{T+2*w}, v{T+2*w}")
    A("v_lshrrev_b32 v7, 3, v0"); A("v_lshlrev_b32 v7, 11, v7")
    A("v_and_b32 v8, 7, v0"); A("v_lshlrev_b32 v8, 4, v8"); A("v_add_u32 v7, v7, v8")
    A(f"s_lshl_b32 s37, {sH}, 15"); A(f"s_lshl_b32 s38, {sS}, 7"); A("s_add_u32 s37, s37, s38"); A(f"s_add_u32 s37, s37, {OP:#x}")
    A("s_waitcnt lgkmcnt(0)")
    A(f"v_mul_f32 v{T+24}, v{T}, v{OW}"); A(f"v_mul_f32 v{T+26}, v{T}, v{OW+1}"); A(f"v_mul_f32 v10, v{T}, v{T+1}")
    for w in range(1, 8):
        A(f"v_fmac_f32 v{T+24}, v{T+2*w}, v{OW+2*w}"); A(f"v_fmac_f32 v{T+26}, v{T+2*w}, v{OW+2*w+1}"); A(f"v_fmac_f32 v10, v{T+2*w}, v{T+2*w+1}")
    A(f"v_mov_b32 v{T+25}, {sTAG}"); A(f"v_mov_b32 v{T+27}, {sTAG}") if vSTAMP != T+27 or not dbg else None
    if vSTAMP == T+27 and dbg:
        A(f"v_mov_b32 v{R0+84}, v{T+24}"); A(f"v_mov_b32 v{R0+85}, {sTAG}"); A(f"v_mov_b32 v{R0+86}, v{T+26}"); A(f"v_mov_b32 v{R0+87}, {sTAG}")
        A(f"buffer_store_dwordx4 v[{R0+84}:{R0+87}], v7, {sWS}, s37 offen sc1")
    else:
        A(f"buffer_store_dwordx4 v[{T+24}:{T+27}], v7, {sWS}, s37 offen sc1")
    A(f"v_mov_b32 v{T+28}, v9"); A(f"v_mov_b32 v{T+29}, v10"); A(f"v_mov_b32 v{T+30}, {sTAG}"); A(f"v_mov_b32 v{T+31}, {sTAG}")
    A(f"s_lshl_b32 s37, {sH}, 12"); A(f"s_lshl_b32 s38, {sS}, 4"); A("s_add_u32 s37, s37, s38"); A(f"s_add_u32 s37, s37, {ST:#x}")
    A(f"v_lshlrev_b32 v7, 8, v{vLANE}")
    A(f"s_cmp_lg_u32 {sWAVE}, 0"); A("s_cbranch_scc1 L_nostat")
    A("s_mov_b64 exec, 0xffff")
    A(f"buffer_store_dwordx4 v[{T+28}:{T+31}], v7, {sWS}, s37 offen sc1")
    A("s_mov_b64 exec, -1")
    g.lab("L_nostat")
    tst(17)
    g.lab("L_woprep")
    g.c("wo rows -> regs, pair interleave")
    WOR = R0
    A("v_lshlrev_b32 v8, 2, v0")
    for i in range(8): A(f"ds_read2st64_b32 v[{WOR+2*i}:{WOR+2*i+1}], v8 offset0:{(L_WO + 2048*i)//256} offset1:{(L_WO + 2048*i)//256 + 4}")
    A(f"v_lshrrev_b32 v{R0+80}, 3, v0"); A(f"s_mov_b32 s38, {YSTR}"); A(f"v_mul_lo_u32 v{R0+80}, v{R0+80}, s38"); A("v_and_b32 v9, 7, v0"); A("v_lshlrev_b32 v9, 4, v9"); A(f"v_add_u32 v{R0+80}, v{R0+80}, v9")
    A("s_waitcnt lgkmcnt(0)")
    for i in range(8): perm_pair(g, WOR+2*i, WOR+2*i+1, 9)
    A("s_branch L_post")
    g.lab("L_hop1")
    A(f"v_lshrrev_b32 v7, 3, v{vLANE}"); A("v_lshlrev_b32 v7, 4, v7")
    A(f"s_lshl_b32 s37, {sH}, 12"); A(f"s_lshl_b32 s38, {sS}, 8"); A("s_add_u32 s37, s37, s38"); A(f"s_add_u32 s37, s37, {ST:#x}")
    A("v_add_u32 v7, s37, v7")
    A(f"v_lshlrev_b32 v8, 4, v{vLANE}")
    A(f"s_lshl_b32 s38, {sH}, 15"); A(f"s_lshl_b32 s39, {sS}, 11"); A("s_add_u32 s38, s38, s39"); A(f"s_add_u32 s38, s38, {OP:#x}")
    A("v_add_u32 v8, s38, v8")
    def g0():
        A(f"buffer_load_dwordx4 v[{T}:{T+3}], v7, {sWS}, 0 offen sc1")
        A(f"buffer_load_dwordx4 v[{T+8}:{T+11}], v8, {sWS}, 0 offen sc1")
    def g1():
        A(f"buffer_load_dwordx4 v[{T+4}:{T+7}], v7, {sWS}, 0 offen offset:128 sc1")
        A(f"buffer_load_dwordx4 v[{T+12}:{T+15}], v8, {sWS}, 0 offen offset:1024 sc1")
    if dbg == 5: A("s_mov_b32 s92, 47"); tst(47)
    selpoll(g, [(g0, [T+2, T+9, T+11]), (g1, [T+6, T+13, T+15])], 9, 10, sleep=H1SLEEP, dbgbase=48 if dbg == 5 else None)
    tst(18)
    A(f"v_max_f32 v9, v{T}, v{T+4}"); g.nop(2)
    allreduce_high(g, 9, 10, op="v_max_f32")
    A(f"v_sub_f32 v{T}, v{T}, v9"); A(f"v_sub_f32 v{T+4}, v{T+4}, v9")
    A(f"v_mul_f32 v{T}, {sC}, v{T}"); A(f"v_mul_f32 v{T+4}, {sC}, v{T+4}")
    A(f"v_exp_f32 v{T}, v{T}"); A(f"v_exp_f32 v{T+4}, v{T+4}"); g.nop(1)
    A(f"v_mul_f32 v{T+16}, v{T}, v{T+1}"); A(f"v_mul_f32 v{T+17}, v{T}, v{T+8}"); A(f"v_mul_f32 v{T+18}, v{T}, v{T+10}")
    A(f"v_fmac_f32 v{T+16}, v{T+4}, v{T+5}"); A(f"v_fmac_f32 v{T+17}, v{T+4}, v{T+12}"); A(f"v_fmac_f32 v{T+18}, v{T+4}, v{T+14}")
    g.nop(2)
    allreduce_high(g, [T+16, T+17, T+18], [T+19, T+20, T+21])
    A(f"v_rcp_f32 v{T+16}, v{T+16}")
    A(f"v_lshlrev_b32 v7, 2, v{vLANE}")
    A(f"v_mul_f32 v{T+17}, v{T+17}, v{T+16}"); A(f"v_mul_f32 v{T+18}, v{T+18}, v{T+16}")
    A(f"v_cvt_pk_bf16_f32 v{T+20}, v{T+17}, v{T+18}")
    A("s_mov_b64 exec, 0xff")
    A(f"ds_write_b32 v7, v{T+20} offset:{L_OB}")
    A("s_mov_b64 exec, -1")
    A("s_waitcnt lgkmcnt(0)")
    tst(19)
    g.lab("L_post")
    A("s_barrier")
    tst(20)
    A(f"s_cmp_gt_u32 {sWAVE}, 3"); A("s_cbranch_scc1 L_role")
    A("v_mov_b32 v7, 0")
    A(f"ds_read_b128 v[{T}:{T+3}], v7 offset:{L_OB}"); A(f"ds_read_b128 v[{T+4}:{T+7}], v7 offset:{L_OB+16}")
    for i in range(4): A(f"v_mov_b32 v{T+8+i}, 0")
    A(f"s_lshl_b32 s37, s2, 7"); A(f"s_add_u32 s37, s37, {YP:#x}")
    A(f"v_mov_b32 v{T+13}, {sTAG}"); A(f"v_mov_b32 v{T+15}, {sTAG}")
    A("v_cmp_gt_u32 vcc, 224, v0")
    A("s_waitcnt lgkmcnt(0)")
    for i in range(8):
        A(f"v_dot2c_f32_bf16 v{T+8+(i&1)}, v{WOR+2*i}, v{T+i}")
        A(f"v_dot2c_f32_bf16 v{T+10+(i&1)}, v{WOR+2*i+1}, v{T+i}")
    A("s_and_saveexec_b64 s[50:51], vcc"); g.nop(2)
    A(f"v_add_f32 v{T+12}, v{T+8}, v{T+9}"); A(f"v_add_f32 v{T+14}, v{T+10}, v{T+11}")
    A(f"buffer_store_dwordx4 v[{T+12}:{T+15}], v{R0+80}, {sWS}, s37 offen sc1")
    A("s_mov_b64 exec, -1")
    tst(21)
    g.lab("L_role")
    A(f"s_cmp_eq_u32 {sROLE}, 0"); A("s_cbranch_scc1 L_end")
    def lstore(text):
        l1, l2 = g.new("ls"), g.new("ls")
        A(f"s_cmp_eq_u32 {sLOC}, 0"); A(f"s_cbranch_scc1 {l1}")
        A(text); A(f"s_branch {l2}")
        g.lab(l1); A(text + " sc1"); g.lab(l2)
    g.c("HR: gather y partials for 16 columns (first round issued, then weights LDS -> regs)")
    YG = T
    A(f"v_lshlrev_b32 v{R0+81}, 4, v0")
    A(f"s_mul_i32 s37, {sRI}, {YSTR}"); A(f"s_add_u32 s37, s37, {YP:#x}"); A(f"v_add_u32 v{R0+81}, s37, v{R0+81}")
    A("s_movk_i32 s43, 0x2000"); A("s_movk_i32 s44, 0x4000"); A("s_movk_i32 s45, 0x6000")
    def yp_loads():
        for k, so in enumerate(("0", "s43", "s44", "s45")):
            A(f"buffer_load_dwordx4 v[{YG+4*k}:{YG+4*k+3}], v{R0+81}, {sWS}, {so} offen sc1")
    yp_loads()
    W1R = R0 + 16; W2R = R0 + 48; XPR = R0 + 84; APR = R0 + 88; AC = R0 + 104; XA = [R0 + 112 + i for i in range(8)]
    A(f"v_lshlrev_b32 v7, 4, v{vLANE}"); A(f"s_mul_i32 s37, {sWAVE}, {7*1024}"); A("v_add_u32 v7, s37, v7")
    for j in range(7): A(f"ds_read_b128 v[{W1R+4*j}:{W1R+4*j+3}], v7 offset:{L_W1 + 1024*j}")
    for i in range(4): A(f"v_mov_b32 v{W1R+28+i}, 0")
    A(f"s_and_b32 s37, {sWAVE}, 3"); A("s_lshl_b32 s37, s37, 8"); A(f"s_lshr_b32 s38, {sWAVE}, 2"); A("s_lshl_b32 s38, s38, 15"); A("s_add_u32 s37, s37, s38"); A(f"s_add_u32 s37, s37, {L_W2}")
    A(f"v_lshlrev_b32 v8, 2, v{vLANE}"); A("v_add_u32 v8, s37, v8")
    for i in range(16): A(f"ds_read2st64_b32 v[{W2R+2*i}:{W2R+2*i+1}], v8 offset0:{8*i} offset1:{8*i+4}")
    for r_ in (vXH, vB2, vB1): A(f"v_lshlrev_b32 v{r_}, 16, v{r_}")
    for k in range(2):
        for e in range(4):
            x = XA[4*k+e]
            A(f"v_lshlrev_b32 v{x}, 2, v{vLANE}"); A(f"v_add_u32 v{x}, {4*56*k + e}, v{x}")
            A("s_movk_i32 s37, 1171"); A(f"v_mul_u32_u24 v9, s37, v{x}"); A("v_lshrrev_b32 v9, 16, v9")
            A(f"v_mul_u32_u24 v10, 56, v9"); A(f"v_sub_u32 v10, v{x}, v10")
            A(f"v_lshrrev_b32 v11, 4, v10"); A(f"v_lshl_add_u32 v9, v9, 2, v11")
            A("v_and_b32 v11, 7, v10"); A("v_lshl_add_u32 v9, v9, 3, v11")
            A("v_bfe_u32 v11, v10, 3, 1"); A("v_lshlrev_b32 v11, 1, v11"); A(f"v_lshl_add_u32 v{x}, v9, 2, v11")
    A("s_waitcnt lgkmcnt(0)")
    for jj in range(4):
        for i in range(4): perm_pair(g, W1R+8*jj+i, W1R+8*jj+4+i, 9)
    for i in range(16): perm_pair(g, W2R+2*i, W2R+2*i+1, 9)
    vFA = R0 + 82; vC = R0 + 83
    A(f"s_and_b32 s37, {sWAVE}, 3"); A("s_lshl_b32 s37, s37, 6"); A(f"v_add_u32 v{vC}, s37, v{vLANE}")
    A(f"v_lshrrev_b32 v{vFA}, 3, v{vC}"); A(f"s_movk_i32 s38, {FSTR}"); A(f"v_mul_lo_u32 v{vFA}, v{vFA}, s38"); A(f"v_and_b32 v9, 7, v{vC}"); A("v_lshlrev_b32 v9, 4, v9"); A(f"v_add_u32 v{vFA}, v{vFA}, v9")
    A(f"s_lshl_b32 s37, {sRI}, 1"); A(f"s_lshr_b32 s38, {sWAVE}, 2"); A("s_add_u32 s37, s37, s38"); A("s_lshl_b32 s37, s37, 7"); A(f"s_add_u32 s37, s37, {FP:#x}"); A(f"v_add_u32 v{vFA}, s37, v{vFA}")
    def mk(k, so):
        return lambda: A(f"buffer_load_dwordx4 v[{YG+4*k}:{YG+4*k+3}], v{R0+81}, {sWS}, {so} offen sc1")
    if dbg == 5: A("s_mov_b32 s92, 31"); tst(31)
    selpoll(g, [(mk(k, so), [YG+4*k+1, YG+4*k+3]) for k, so in enumerate(("0", "s43", "s44", "s45"))], 9, 10, first_issued=True, dbgbase=32 if dbg == 5 else None)
    tst(22)
    A(f"v_add_f32 v{YG}, v{YG}, v{YG+4}"); A(f"v_add_f32 v{YG+2}, v{YG+2}, v{YG+6}")
    A(f"v_add_f32 v{YG+8}, v{YG+8}, v{YG+12}"); A(f"v_add_f32 v{YG+10}, v{YG+10}, v{YG+14}")
    A(f"v_add_f32 v{YG}, v{YG}, v{YG+8}"); A(f"v_add_f32 v{YG+2}, v{YG+2}, v{YG+10}")
    def red16(a_, b_, t_):
        g.nop(2)
        A(f"v_permlane32_swap_b32 v{a_}, v{b_}"); g.nop(1)
        A(f"v_add_f32 v{a_}, v{a_}, v{b_}")
        A(f"v_mov_b32 v{t_}, v{a_}"); g.nop(2)
        A(f"v_permlane16_swap_b32 v{a_}, v{t_}"); g.nop(1)
        A(f"v_add_f32 v{a_}, v{a_}, v{t_}"); g.nop(2)
        dpp(g, "v_add_f32", a_, a_, a_, "row_ror:8"); g.nop(1)
    A(f"v_and_b32 v7, 7, v{vLANE}"); A("v_lshlrev_b32 v7, 3, v7"); A(f"v_lshrrev_b32 v8, 5, v{vLANE}"); A("v_lshlrev_b32 v8, 2, v8"); A("v_add_u32 v7, v7, v8")
    A(f"s_lshl_b32 s37, {sWAVE}, 6"); A("v_add_u32 v7, s37, v7")
    red16(YG, YG+2, 9)
    A("s_mov_b32 exec_lo, 0xff"); A("s_mov_b32 exec_hi, 0xff")
    A(f"ds_write_b32 v7, v{YG} offset:{L_HP}")
    A("s_mov_b64 exec, -1")
    A("s_waitcnt lgkmcnt(0)")
    A("s_barrier")
    tst(23)
    A(f"s_cmp_eq_u32 {sWAVE}, 5"); A("s_cbranch_scc1 L_a_ln")
    A(f"s_cmp_lg_u32 {sWAVE}, 0"); A("s_cbranch_scc1 L_a_wait")
    g.c("wave 0: h columns, publish")
    A(f"v_lshlrev_b32 v7, 2, v{vLANE}")
    A(f"ds_read_b32 v{T}, v7 offset:{L_HP}"); A(f"ds_read_b32 v{T+1}, v7 offset:{L_HP+256}")
    A(f"v_lshlrev_b32 v8, 2, v{vLANE}")
    A(f"s_lshl_b32 s37, {sRI}, 6"); A(f"s_add_u32 s37, s37, {HG:#x}")
    A(f"v_mov_b32 v{T+5}, {sTAG}"); A(f"v_mov_b32 v{T+7}, {sTAG}")
    A("s_waitcnt lgkmcnt(0)")
    A(f"v_add_f32 v{T}, v{T}, v{T+1}")
    for st in (16, 32):
        A(f"v_mov_b32 v9, v{T}"); g.nop(2)
        A(f"v_permlane{st}_swap_b32 v{T}, v9"); g.nop(1)
        A(f"v_add_f32 v{T}, v{T}, v9")
    bf16r(g, T, T)
    A(f"v_add_f32 v{T}, v{T}, v{vXH}")
    bf16r(g, T, T); g.nop(2)
    A(f"v_mov_b32_dpp v9, v{T} quad_perm:[1,0,3,2] row_mask:0xf bank_mask:0xf")
    A(f"v_lshrrev_b32 v{T+4}, 16, v{T}")
    A(f"v_or_b32 v{T+4}, v{T+4}, v9"); g.nop(2)
    A(f"v_mov_b32_dpp v{T+6}, v{T+4} quad_perm:[2,3,0,1] row_mask:0xf bank_mask:0xf")
    A("s_mov_b64 exec, 0x1111")
    lstore(f"buffer_store_dwordx4 v[{T+4}:{T+7}], v8, {sWS}, s37 offen")
    A("s_mov_b64 exec, 0xffff")
    A(f"ds_write_b32 v7, v{T} offset:{L_HV}")
    A("s_mov_b64 exec, -1")
    tst(24)
    A("s_branch L_a_wait")
    g.lab("L_a_ln")
    g.c("wave 5: gather h, layernorm, write xln pairs")
    A(f"v_lshlrev_b32 v7, 4, v{vLANE}"); A(f"v_add_u32 v7, {HG:#x}, v7")
    for i in range(8): A(f"v_mov_b32 v{T+i}, {sTAG}")
    A("s_mov_b32 exec_lo, -1"); A("s_mov_b32 exec_hi, 0x00ffffff")
    def hg_loads():
        A(f"buffer_load_dwordx4 v[{T}:{T+3}], v7, {sWS}, 0 offen sc1")
        A(f"buffer_load_dwordx4 v[{T+4}:{T+7}], v7, {sWS}, 0 offen offset:896 sc1")
    poll(g, hg_loads, [T+1, T+3, T+5, T+7], 9, 10)
    A("s_mov_b64 exec, -1")
    tst(25)
    HV = [T+8+i for i in range(8)]
    for p in range(4):
        A(f"v_lshlrev_b32 v{HV[2*p]}, 16, v{T+2*p}")
        A(f"v_and_b32 v{HV[2*p+1]}, 0xffff0000, v{T+2*p}")
    A("s_mov_b32 s44, -1"); A("s_mov_b32 s45, 0x00ffffff")
    layernorm(g, HV, [7, 8, 9, 10, 11, 3], masked="s[44:45]")
    A("s_mov_b64 exec, s[44:45]")
    for i in range(8): A(f"ds_write_b16_d16_hi v{XA[i]}, v{HV[i]} offset:{L_XP}")
    A("s_mov_b64 exec, -1")
    A("s_waitcnt lgkmcnt(0)")
    g.lab("L_a_wait")
    A(f"v_lshrrev_b32 v7, 3, v{vLANE}"); A("v_lshlrev_b32 v7, 2, v7"); A(f"s_lshl_b32 s37, {sWAVE}, 7"); A("v_add_u32 v7, s37, v7")
    for i in range(8): A(f"v_mov_b32 v{AC+i}, 0")
    A("s_waitcnt lgkmcnt(0)")
    A("s_barrier")
    tst(26)
    for jj in range(4): A(f"ds_read_b32 v{XPR+jj}, v7 offset:{L_XP + 32*jj}")
    A(f"v_lshlrev_b32 v10, 2, v{vLANE}"); A(f"s_lshl_b32 s37, {sWAVE}, 8"); A("v_add_u32 v11, s37, v10")
    A("s_waitcnt lgkmcnt(0)")
    for jj in range(4):
        for i in range(4):
            A(f"v_dot2c_f32_bf16 v{AC+2*i}, v{W1R+8*jj+i}, v{XPR+jj}")
            A(f"v_dot2c_f32_bf16 v{AC+2*i+1}, v{W1R+8*jj+4+i}, v{XPR+jj}")
    r = reduce_scatter(g, [AC+i for i in range(8)], [32, 16, 8])[0]
    A(f"ds_write_b32 v11, v{r} offset:{L_AP}")
    A(f"v_and_b32 v8, 7, v{vLANE}"); A("v_lshlrev_b32 v8, 4, v8"); A(f"v_lshrrev_b32 v9, 3, v{vLANE}"); A("v_lshlrev_b32 v9, 1, v9"); A("v_add_u32 v8, v8, v9")
    A(f"s_lshr_b32 s37, {sWAVE}, 2"); A("s_lshl_b32 s37, s37, 6"); A("v_mov_b32 v9, s37")
    A("s_waitcnt lgkmcnt(0)")
    A("s_barrier")
    tst(27)
    for w in range(8): A(f"ds_read_b32 v{AC+w}, v10 offset:{L_AP + 256*w}")
    A(f"v_mov_b32 v{T+1}, {sTAG}"); A(f"v_mov_b32 v{T+3}, {sTAG}")
    A(f"v_cmp_gt_u32 vcc, 224, v{vC}")
    A("s_waitcnt lgkmcnt(0)")
    for st in (4, 2, 1):
        for i in range(st): A(f"v_add_f32 v{AC+i}, v{AC+i}, v{AC+i+st}")
    bf16r(g, AC, AC)
    A(f"v_add_f32 v{AC}, v{AC}, v{vB1}")
    bf16r(g, AC, AC)
    A(f"v_max_f32 v{AC}, 0, v{AC}")
    A(f"v_mul_f32 v{AC}, v{AC}, v{AC}")
    A(f"v_cvt_pk_bf16_f32 v{AC}, v{AC}, v{AC}")
    A(f"ds_write_b16 v8, v{AC} offset:{L_AL}")
    A("s_waitcnt lgkmcnt(0)")
    for i in range(4): A(f"ds_read_b128 v[{APR+4*i}:{APR+4*i+3}], v9 offset:{L_AL + 16*i}")
    for i in range(8): A(f"v_mov_b32 v{AC+i}, 0")
    A("s_waitcnt lgkmcnt(0)")
    for i in range(16):
        A(f"v_dot2c_f32_bf16 v{AC+(i&3)}, v{W2R+2*i}, v{APR+i}")
        A(f"v_dot2c_f32_bf16 v{AC+4+(i&3)}, v{W2R+2*i+1}, v{APR+i}")
    A("s_and_saveexec_b64 s[50:51], vcc"); g.nop(2)
    A(f"v_add_f32 v{AC}, v{AC}, v{AC+1}"); A(f"v_add_f32 v{AC+2}, v{AC+2}, v{AC+3}"); A(f"v_add_f32 v{AC+4}, v{AC+4}, v{AC+5}"); A(f"v_add_f32 v{AC+6}, v{AC+6}, v{AC+7}")
    A(f"v_add_f32 v{T}, v{AC}, v{AC+2}"); A(f"v_add_f32 v{T+2}, v{AC+4}, v{AC+6}")
    A("s_cbranch_execz L_a_nost")
    lstore(f"buffer_store_dwordx4 v[{T}:{T+3}], v{vFA}, {sWS}, 0 offen")
    g.lab("L_a_nost")
    A("s_mov_b64 exec, -1")
    tst(28)
    A(f"s_cmp_lg_u32 {sWAVE}, 7"); A("s_cbranch_scc1 L_end")
    g.c("wave 7: final reduce of the 56 partials for 16 columns")
    FG = R0
    A(f"v_lshlrev_b32 v7, 4, v{vLANE}")
    A(f"s_mul_i32 s37, {sRI}, {FSTR}"); A(f"s_add_u32 s37, s37, {FP:#x}"); A("v_add_u32 v7, s37, v7")
    A("s_movk_i32 s43, 0x1000")
    FG = R0 + 16
    def fp_loads():
        for k in range(7):
            so = "0" if k < 4 else "s43"
            off = f" offset:{1024*(k&3)}" if (k & 3) else ""
            A(f"buffer_load_dwordx4 v[{FG+4*k}:{FG+4*k+3}], v7, {sWS}, {so} offen{off} sc1")
    A(f"v_and_b32 v8, 7, v{vLANE}"); A("v_lshlrev_b32 v8, 1, v8"); A(f"v_lshrrev_b32 v11, 5, v{vLANE}"); A("v_add_u32 v8, v8, v11")
    A(f"v_lshlrev_b32 v11, 2, v8"); A(f"ds_read_b32 v{T+8}, v11 offset:{L_HV}")
    A(f"v_lshlrev_b32 v{T+9}, 1, v8")
    srd(g, 16, 84, 896)
    def mkf(k):
        so = "0" if k < 4 else "s43"
        off = f" offset:{1024*(k&3)}" if (k & 3) else ""
        return lambda: A(f"buffer_load_dwordx4 v[{FG+4*k}:{FG+4*k+3}], v7, {sWS}, {so} offen{off} sc1")
    if dbg == 5: A("s_mov_b32 s92, 39"); tst(30)
    selpoll(g, [(mkf(k), [FG+4*k+1, FG+4*k+3]) for k in range(7)], 9, 10, dbgbase=40 if dbg == 5 else None)
    tst(29)
    if dbg == 5:
        A("s_memtime s[90:91]"); A("s_waitcnt lgkmcnt(0)"); A(f"v_writelane_b32 v{vSTAMP}, s90, 57")
    for e in (0, 2):
        A(f"v_add_f32 v{FG+e}, v{FG+e}, v{FG+4+e}"); A(f"v_add_f32 v{FG+8+e}, v{FG+8+e}, v{FG+12+e}"); A(f"v_add_f32 v{FG+16+e}, v{FG+16+e}, v{FG+20+e}")
    for e in (0, 2):
        A(f"v_add_f32 v{FG+e}, v{FG+e}, v{FG+8+e}"); A(f"v_add_f32 v{FG+16+e}, v{FG+16+e}, v{FG+24+e}")
    for e in (0, 2): A(f"v_add_f32 v{FG+e}, v{FG+e}, v{FG+16+e}")
    red16(FG, FG+2, 9)
    bf16r(g, FG, FG)
    A(f"v_add_f32 v{FG}, v{FG}, v{vB2}")
    bf16r(g, FG, FG)
    A("s_waitcnt lgkmcnt(0)")
    A(f"v_add_f32 v{FG}, v{FG}, v{T+8}")
    A(f"v_cvt_pk_bf16_f32 v{FG}, v{FG}, v{FG}")
    A(f"s_lshl_b32 s37, {sRI}, 5")
    A("s_mov_b32 exec_lo, 0xff"); A("s_mov_b32 exec_hi, 0xff")
    A(f"buffer_store_short v{FG}, v{T+9}, {sT1}, s37 offen")
    A(f"s_cmp_lg_u32 {sRI}, 0"); A("s_cbranch_scc1 L_end")
    A(f"s_add_u32 s38, {sEP}, 1"); A("v_mov_b32 v8, s38"); A("v_mov_b32 v9, 0")
    A("s_mov_b64 exec, 1")
    A(f"buffer_store_dword v8, v9, {sWS}, 0 offen sc1")
    g.lab("L_end")
    if dbg == 4:
        A("s_mov_b64 exec, -1")
        stamp(9)
    if dbg and dbg != 4:
        A("s_mov_b64 exec, -1")
        stamp(9)
        if dbg not in (3, 5): A("s_mov_b64 exec, 0xffff")
        A(f"s_lshl_b32 s37, s2, 3"); A(f"s_add_u32 s37, s37, {sWAVE}"); A(f"s_lshl_b32 s37, s37, {8 if dbg in (3, 5) else 6}"); A(f"s_add_u32 s37, s37, {DBG:#x}")
        A(f"v_lshlrev_b32 v7, 2, v{vLANE}")
        A(f"buffer_store_dword v{vSTAMP}, v7, {sWS}, s37 offen")
    g.lab("L_exit")
    A("s_endpgm")
    if GNT:
        for i, l in enumerate(g.L):
            if l.rstrip().endswith("sc1"):
                if "buffer_store" in l and (GNT & 1): g.L[i] = l + " nt"
                if "buffer_load" in l and (GNT & 2): g.L[i] = l + " nt"
    hdr = open("cdna_kernels/" + NAME + ".s.ref").read().split("\n")
    head = []
    for l in hdr:
        if l.startswith("; @launch"): head.append(f"; @launch grid=(256,1,1) block=(512,1,1) lds={LDS_BYTES}")
        elif l.startswith(";"): head.append(l)
        else: break
    return "\n".join(head) + f"""
.amdgcn_target "amdgcn-amd-amdhsa--gfx950"
.text
.globl {NAME}_kernel
.p2align 8
.type {NAME}_kernel,@function
{NAME}_kernel:
""" + "\n".join(g.L) + f"""
.section .rodata,"a"
.p2align 6
.amdhsa_kernel {NAME}_kernel
  .amdhsa_next_free_vgpr 256
  .amdhsa_next_free_sgpr 102
  .amdhsa_accum_offset 256
  .amdhsa_group_segment_fixed_size 0
  .amdhsa_kernarg_size 104
  .amdhsa_user_sgpr_count 2
  .amdhsa_user_sgpr_kernarg_segment_ptr 1
  .amdhsa_system_sgpr_workgroup_id_x 1
  .amdhsa_float_denorm_mode_32 3
.end_amdhsa_kernel
"""
if __name__ == "__main__":
    out = sys.argv[1] if len(sys.argv) > 1 else "k/v3.s"
    kw = {}
    for a in sys.argv[2:]:
        k, v = a.split("="); kw[k] = int(v)
    open(out, "w").write(generate(**kw))
    open(out.replace(".s", "_dbg.s"), "w").write(generate(dbg=1, **kw))
    open(out.replace(".s", "_lt.s"), "w").write(generate(dbg=2, **kw))
    open(out.replace(".s", "_st.s"), "w").write(generate(dbg=3, **kw))
    open(out.replace(".s", "_hb.s"), "w").write(generate(dbg=4, **kw))
    open(out.replace(".s", "_tl.s"), "w").write(generate(dbg=5, **kw))
    print("wrote", out)
```

```python
import struct, sys, math
NAME = "sequential_preLN__mha_block_cached__dense_activation_squared_relu__decode"
def f2u(x): return struct.unpack("<I", struct.pack("<f", x))[0]
CSC = f2u(0.0625 * math.log2(math.e)); EPS = f2u(1e-5); INVN = f2u(1.0 / 448.0); NEG_BIG = f2u(-3.0e38)

EPOCH = 0x0
ST = 0x200000
OP = 0x10000
HG = 0x98000
FP = 0x9A000
XG = 0x9800
QP = 0xD0000
YSTR = 4096 + 128
FSTR = 7168 + 128
YP = 0x100000
CNT = 0x1E8000
DBG = 0x300000
L_Q = 0x0; L_TAG = 0x200; L_ST = 0x400; L_OB = 0x480; L_CL = 0x4C0; L_HV = 0x600; L_AL = 0x500; L_O = 0x800; L_HP = 0x2800
L_XP = 0x2A00
L_X = 0x3000
L_AP = 0x3800
L_YW = 0x4000; L_W1 = 0x8000; L_W2 = 0x16000
LDS_BYTES = 0x26000

class Gen:
    def __init__(self): self.L = []; self.uid = 0
    def A(self, s): self.L.append("    " + s)
    def lab(self, s): self.L.append(s + ":")
    def c(self, s): self.L.append("    ; " + s)
    def new(self, p): self.uid += 1; return f"L_{p}_{self.uid}"
    def nop(self, n):
        if n > 0: self.A(f"s_nop {n-1}")

sKS = "s[4:7]"; sVS = "s[8:11]"; sWS = "s[12:15]"; sT1 = "s[16:19]"; sT2 = "s[20:23]"
sWAVE = "s24"; sH = "s25"; sS = "s26"; sTAG = "s27"; sEP = "s28"; sBASE = "s29"; sBUD = "s30"
sLAM = "s31"; sZ = "s32"; sC = "s33"; sSTEP = "s34"; sROLE = "s35"; sRI = "s36"
sLIM = "s74"; sDC = "s75"; sBASE0 = "s59"; sMK = {2: ("s60", "s61"), 3: ("s62", "s63")}; sMC = {2: ("s76", "s77"), 3: ("s78", "s79")}
sNXT = "s52"; sV2 = "s53"; sV3 = "s54"; sLAM0 = "s55"; sROT = "s56"
vLANE = 1; vOFF = 2; vM = 4; vMC = 5; vL = 6
Q = 16; ACC = 32; RING = 96; TMP = 224
vXH = 64; vB2 = 65; vB1 = 66; vSTAMP = 251
sLOC = "s57"
R0 = RING
D = 4

def srd(g, dst, lo, nbytes):
    g.A(f"s_mov_b32 s{dst}, s{lo}"); g.A(f"s_mov_b32 s{dst+1}, s{lo+1}")
    g.A(f"s_mov_b32 s{dst+2}, {nbytes:#x}"); g.A(f"s_mov_b32 s{dst+3}, 0x20000")
def bf16r(g, dst, src, tmp=None):
    tmp = dst if tmp is None else tmp
    g.A(f"v_cvt_pk_bf16_f32 v{tmp}, v{src}, v{src}")
    g.A(f"v_and_b32 v{dst}, 0xffff0000, v{tmp}")
def dpp(g, op, dst, src0, src1, ctrl, rm=0xf, bm=0xf):
    g.A(f"{op}_dpp v{dst}, v{src0}, v{src1} {ctrl} row_mask:{rm:#x} bank_mask:{bm:#x}")
def wave_sum2(g, a, b, sa, sb):
    g.nop(2)
    for ctrl in ("row_ror:8", "row_ror:4", "row_ror:2", "row_ror:1"):
        dpp(g, "v_add_f32", a, a, a, ctrl); dpp(g, "v_add_f32", b, b, b, ctrl); g.nop(1)
    dpp(g, "v_add_f32", a, a, a, "row_bcast:15", rm=0xa); dpp(g, "v_add_f32", b, b, b, "row_bcast:15", rm=0xa); g.nop(1)
    dpp(g, "v_add_f32", a, a, a, "row_bcast:31", rm=0xc); dpp(g, "v_add_f32", b, b, b, "row_bcast:31", rm=0xc); g.nop(1)
    g.A(f"v_readlane_b32 {sa}, v{a}, 63"); g.A(f"v_readlane_b32 {sb}, v{b}, 63")
    g.nop(2)
def layernorm(g, vals, t, masked=None):
    c, s1, s2, y, mean, rs = t[:6]
    g.A(f"v_readfirstlane_b32 s37, v{vals[0]}")
    g.A(f"v_mov_b32 v{s1}, 0"); g.A(f"v_mov_b32 v{s2}, 0")
    if masked: g.A(f"s_mov_b64 exec, {masked}")
    for v in vals:
        g.A(f"v_subrev_f32 v{y}, s37, v{v}")
        g.A(f"v_add_f32 v{s1}, v{s1}, v{y}")
        g.A(f"v_fmac_f32 v{s2}, v{y}, v{y}")
    if masked: g.A("s_mov_b64 exec, -1")
    wave_sum2(g, s1, s2, "s38", "s39")
    g.A(f"s_mov_b32 s40, {INVN:#x}")
    g.A(f"v_mul_f32 v{y}, s38, v{rs}") if False else None
    g.A(f"v_mov_b32 v{y}, s38"); g.A(f"v_mov_b32 v{s2}, s39")
    g.A(f"v_mul_f32 v{y}, s40, v{y}"); g.A(f"v_mul_f32 v{s2}, s40, v{s2}")
    g.A(f"v_add_f32 v{mean}, s37, v{y}")
    g.A(f"v_fma_f32 v{s2}, -v{y}, v{y}, v{s2}")
    g.A(f"v_max_f32 v{s2}, 0, v{s2}")
    bf16r(g, mean, mean)
    bf16r(g, s2, s2)
    g.A(f"v_add_f32 v{s2}, {EPS:#x}, v{s2}")
    bf16r(g, s2, s2)
    g.A(f"v_sqrt_f32 v{s2}, v{s2}")
    for v in vals: g.A(f"v_sub_f32 v{v}, v{v}, v{mean}")
    bf16r(g, s2, s2)
    g.A(f"v_rcp_f32 v{rs}, v{s2}")
    for v in vals: bf16r(g, v, v)
    for v in vals:
        g.A(f"v_mul_f32 v{y}, v{v}, v{rs}")
        g.A(f"v_fma_f32 v{v}, -v{y}, v{s2}, v{v}")
        g.A(f"v_fma_f32 v{v}, v{v}, v{rs}, v{y}")
    for v in vals: bf16r(g, v, v)
def layernorm_pk(g, pk, w, t, masked):
    c, s1, s2, y, mean, rs = t[:6]
    for i in range(4):
        g.A(f"v_lshlrev_b32 v{w+2*i}, 16, v{pk[i]}"); g.A(f"v_and_b32 v{w+2*i+1}, 0xffff0000, v{pk[i]}")
    g.A(f"v_readfirstlane_b32 s37, v{w}")
    g.A(f"v_mov_b32 v{s1}, 0"); g.A(f"v_mov_b32 v{s2}, 0")
    g.A(f"s_mov_b64 exec, {masked}")
    for i in range(8):
        g.A(f"v_subrev_f32 v{y}, s37, v{w+i}")
        g.A(f"v_add_f32 v{s1}, v{s1}, v{y}")
        g.A(f"v_fmac_f32 v{s2}, v{y}, v{y}")
    g.A("s_mov_b64 exec, -1")
    wave_sum2(g, s1, s2, "s38", "s39")
    g.A(f"s_mov_b32 s40, {INVN:#x}")
    g.A(f"v_mov_b32 v{y}, s38"); g.A(f"v_mov_b32 v{s2}, s39")
    g.A(f"v_mul_f32 v{y}, s40, v{y}"); g.A(f"v_mul_f32 v{s2}, s40, v{s2}")
    g.A(f"v_add_f32 v{mean}, s37, v{y}")
    g.A(f"v_fma_f32 v{s2}, -v{y}, v{y}, v{s2}")
    g.A(f"v_cvt_pk_bf16_f32 v{mean}, v{mean}, v{mean}")
    g.A(f"v_max_f32 v{s2}, 0, v{s2}")
    g.A(f"v_and_b32 v{mean}, 0xffff0000, v{mean}")
    bf16r(g, s2, s2)
    g.A(f"v_add_f32 v{s2}, {EPS:#x}, v{s2}")
    for i in range(0, 4): g.A(f"v_sub_f32 v{w+i}, v{w+i}, v{mean}")
    bf16r(g, s2, s2)
    g.A(f"v_sqrt_f32 v{s2}, v{s2}")
    for i in range(4, 8): g.A(f"v_sub_f32 v{w+i}, v{w+i}, v{mean}")
    bf16r(g, s2, s2)
    g.A(f"v_rcp_f32 v{rs}, v{s2}")
    for i in range(4): g.A(f"v_cvt_pk_bf16_f32 v{pk[i]}, v{w+2*i}, v{w+2*i+1}")
    for i in range(4):
        g.A(f"v_lshlrev_b32 v{w+2*i}, 16, v{pk[i]}"); g.A(f"v_and_b32 v{w+2*i+1}, 0xffff0000, v{pk[i]}")
    for i in range(8): g.A(f"v_mul_f32 v{w+8+i}, v{w+i}, v{rs}")
    for i in range(8): g.A(f"v_fma_f32 v{w+i}, -v{w+8+i}, v{s2}, v{w+i}")
    for i in range(8): g.A(f"v_fma_f32 v{w+i}, v{w+i}, v{rs}, v{w+8+i}")
    for i in range(4): g.A(f"v_cvt_pk_bf16_f32 v{pk[i]}, v{w+2*i}, v{w+2*i+1}")
def reduce_scatter(g, regs, stages, pre=3):
    regs = list(regs)
    g.nop(pre)
    for st in stages:
        h = len(regs) // 2
        lo, hi = regs[:h], regs[h:]
        if st in (32, 16):
            for a, b in zip(lo, hi): g.A(f"v_permlane{st}_swap_b32 v{a}, v{b}")
            g.nop(1 if h > 1 else 2)
            if h >= 2 and lo[0] % 2 == 0 and hi[0] % 2 == 0 and lo == list(range(lo[0], lo[0] + h)) and hi == list(range(hi[0], hi[0] + h)):
                for j in range(0, h, 2): g.A(f"v_pk_add_f32 v[{lo[j]}:{lo[j]+1}], v[{lo[j]}:{lo[j]+1}], v[{hi[j]}:{hi[j]+1}]")
                g.nop(2)
            else:
                for a, b in zip(lo, hi): g.A(f"v_add_f32 v{a}, v{a}, v{b}")
                g.nop(max(0, 2 - (h - 1 - h // 2)))
        elif st == 8:
            for a, b in zip(lo, hi): dpp(g, "v_add_f32", a, a, a, "row_ror:8", bm=0x3)
            for a, b in zip(lo, hi): dpp(g, "v_add_f32", a, b, b, "row_ror:8", bm=0xc)
            g.nop(2)
        elif st == 4:
            for a, b in zip(lo, hi): dpp(g, "v_add_f32", a, a, a, "row_shl:4", bm=0x5)
            for a, b in zip(lo, hi): dpp(g, "v_add_f32", a, b, b, "row_shr:4", bm=0xa)
            g.nop(2)
        regs = lo
    return regs
def allreduce_low(g, r, bits, op="v_add_f32"):
    for b in bits:
        ctrl = {0: "quad_perm:[1,0,3,2]", 1: "quad_perm:[2,3,0,1]", 2: "row_half_mirror"}[b]
        dpp(g, op, r, r, r, ctrl); g.nop(2)
def allreduce_high(g, regs, tmps, op="v_add_f32"):
    if not isinstance(regs, list): regs = [regs]; tmps = [tmps]
    n = len(regs)
    for r in regs: dpp(g, op, r, r, r, "row_ror:8")
    for st in (16, 32):
        for r, t in zip(regs, tmps): g.A(f"v_mov_b32 v{t}, v{r}")
        g.nop(max(0, 3 - n) if n > 1 else 2)
        for r, t in zip(regs, tmps): g.A(f"v_permlane{st}_swap_b32 v{r}, v{t}")
        g.nop(1)
        for r, t in zip(regs, tmps): g.A(f"{op} v{r}, v{r}, v{t}")
    g.nop(2)
def poll(g, emit_loads, tagregs, t0, t1, sleep=0):
    lp = g.new("poll"); ok = g.new("ok")
    g.lab(lp)
    emit_loads()
    g.A("s_waitcnt vmcnt(0)")
    g.A(f"v_xor_b32 v{t0}, {sTAG}, v{tagregs[0]}")
    for t in tagregs[1:]:
        g.A(f"v_xor_b32 v{t1}, {sTAG}, v{t}")
        g.A(f"v_or_b32 v{t0}, v{t0}, v{t1}")
    g.A(f"v_cmp_ne_u32 vcc, 0, v{t0}")
    g.A(f"s_cbranch_vccz {ok}")
    if sleep: g.A(f"s_sleep {sleep}")
    g.A(f"s_sub_u32 {sBUD}, {sBUD}, 1")
    g.A(f"s_cbranch_scc0 {lp}")
    g.A(f"s_mov_b32 {sBUD}, 0")
    g.lab(ok)
def selpoll(g, groups, t0, t1, sflags="s49", first_issued=False, sleep=0, dbgbase=None):
    n = len(groups)
    lp = g.new("sp"); ok = g.new("spok"); chk = g.new("spchk")
    g.A(f"s_mov_b32 {sflags}, {(1 << n) - 1}")
    if first_issued: g.A(f"s_branch {chk}")
    g.lab(lp)
    for i, (ld, tags) in enumerate(groups):
        sk = g.new("sk")
        g.A(f"s_bitcmp1_b32 {sflags}, {i}"); g.A(f"s_cbranch_scc0 {sk}")
        ld()
        g.lab(sk)
    g.lab(chk)
    g.A("s_waitcnt vmcnt(0)")
    if dbgbase is not None:
        g.A("s_memrealtime s[90:91]"); g.A("s_waitcnt lgkmcnt(0)")
        g.A("s_add_u32 s92, s92, 1"); g.A(f"s_min_u32 m0, s92, {dbgbase+7}"); g.A("s_nop 0")
        g.A(f"v_writelane_b32 v{vSTAMP}, s90, m0")
    for i, (ld, tags) in enumerate(groups):
        sk = g.new("sc")
        g.A(f"s_bitcmp1_b32 {sflags}, {i}"); g.A(f"s_cbranch_scc0 {sk}")
        g.A(f"v_xor_b32 v{t0}, {sTAG}, v{tags[0]}")
        for t in tags[1:]:
            g.A(f"v_xor_b32 v{t1}, {sTAG}, v{t}"); g.A(f"v_or_b32 v{t0}, v{t0}, v{t1}")
        g.A(f"v_cmp_ne_u32 vcc, 0, v{t0}")
        g.A(f"s_cbranch_vccnz {sk}")
        g.A(f"s_bitset0_b32 {sflags}, {i}")
        g.lab(sk)
    g.A(f"s_cmp_eq_u32 {sflags}, 0"); g.A(f"s_cbranch_scc1 {ok}")
    if sleep: g.A(f"s_sleep {sleep}")
    g.A(f"s_sub_u32 {sBUD}, {sBUD}, 1")
    g.A(f"s_cbranch_scc0 {lp}")
    g.A(f"s_mov_b32 {sBUD}, 0")
    g.lab(ok)
def pipepoll(g, n, emit_load, final, setA, setB, tagoffs, t0, scratch, stagger, first_in_final=False, sflags="s49"):
    done = g.new("ppd"); lp = g.new("ppl")
    def check(base, copy):
        for i in range(n):
            sk = g.new("pc")
            g.A(f"s_bitcmp1_b32 {sflags}, {i}"); g.A(f"s_cbranch_scc0 {sk}")
            r = base + 4*i
            if len(tagoffs) == 1:
                g.A(f"v_cmp_ne_u32 vcc, {sTAG}, v{r+tagoffs[0]}")
            else:
                g.A(f"v_xor_b32 v{t0}, {sTAG}, v{r+tagoffs[0]}"); g.A(f"v_xor_b32 v{t0+1}, {sTAG}, v{r+tagoffs[1]}")
                g.A(f"v_or_b32 v{t0}, v{t0}, v{t0+1}"); g.A(f"v_cmp_ne_u32 vcc, 0, v{t0}")
            g.A(f"s_cbranch_vccnz {sk}")
            g.A(f"s_bitset0_b32 {sflags}, {i}")
            if copy:
                for e in range(4):
                    if e not in tagoffs: g.A(f"v_mov_b32 v{final+4*i+e}, v{r+e}")
            g.lab(sk)
    def issue(base):
        for i in range(n):
            dm = g.new("pi"); nx = g.new("pn")
            g.A(f"s_bitcmp1_b32 {sflags}, {i}"); g.A(f"s_cbranch_scc0 {dm}")
            emit_load(i, base + 4*i); g.A(f"s_branch {nx}")
            g.lab(dm)
            g.A("s_mov_b64 exec, 1"); g.A(f"buffer_load_dword v{scratch}, v{scratch+1}, {sWS}, 0 offen"); g.A("s_mov_b64 exec, -1")
            g.lab(nx)
    g.A(f"s_mov_b32 {sflags}, {(1 << n) - 1}")
    g.A(f"v_mov_b32 v{scratch+1}, 0x7ff00000")
    if first_in_final:
        g.A("s_waitcnt vmcnt(0)")
        check(final, False)
        g.A(f"s_cmp_eq_u32 {sflags}, 0"); g.A(f"s_cbranch_scc1 {done}")
    issue(setA)
    if stagger: g.A(f"s_sleep {stagger}")
    g.lab(lp)
    issue(setB)
    g.A(f"s_waitcnt vmcnt({n})")
    check(setA, True)
    g.A(f"s_cmp_eq_u32 {sflags}, 0"); g.A(f"s_cbranch_scc1 {done}")
    issue(setA)
    g.A(f"s_waitcnt vmcnt({n})")
    check(setB, True)
    g.A(f"s_cmp_eq_u32 {sflags}, 0"); g.A(f"s_cbranch_scc1 {done}")
    g.A(f"s_sub_u32 {sBUD}, {sBUD}, 1")
    g.A(f"s_cbranch_scc0 {lp}")
    g.A(f"s_mov_b32 {sBUD}, 0")
    g.lab(done)
def perm_pair(g, a, b, tmp):
    g.A(f"v_perm_b32 v{tmp}, v{b}, v{a}, s41")
    g.A(f"v_perm_b32 v{b}, v{b}, v{a}, s42")
    g.A(f"v_mov_b32 v{a}, v{tmp}")

def generate(dbg=False, HALF=0, RWX=16, ROT=48, BAR=1, H1SLEEP=0, PACE=4, NS=24, COMP=14, QPRE=0, PRE=4, QD=60, H1N=14, CPF=16, CPFN=3, SD=0, NOCOMP=0, FAKE=0, LOOK=1, CSTR=4352, AFL=2, GNT=0, TOUCH=0, NOLOC=0, TPF=0, PT=3, PTD=0, PP=3, PPS1=5, PPS2=7):
    g = Gen(); A = g.A
    HF = 512 - HALF
    NIT = HF + 2*HALF
    def stepstamp():
        if dbg == 3:
            A("s_memrealtime s[90:91]"); A("s_waitcnt lgkmcnt(0)")
            A("s_add_u32 s92, s92, 1"); A("s_min_u32 m0, s92, 63"); A("s_nop 0")
            A(f"v_writelane_b32 v{vSTAMP}, s90, m0")
    def hstamp(slot, cond_id, wave=0):
        if dbg == 4:
            l = g.new("hs")
            A(f"s_cmp_lg_u32 s2, {cond_id}"); A(f"s_cbranch_scc1 {l}")
            A(f"s_cmp_lg_u32 {sWAVE}, {wave}"); A(f"s_cbranch_scc1 {l}")
            A("s_memrealtime s[90:91]"); A("s_waitcnt lgkmcnt(0)")
            A("s_mov_b32 s96, s86"); A("s_mov_b32 s97, s87"); A("s_mov_b32 s98, 256"); A("s_mov_b32 s99, 0x20000")
            A(f"v_mov_b32 v252, s90"); A(f"v_mov_b32 v253, {4*slot}")
            A("s_mov_b64 s[92:93], exec"); A("s_mov_b64 exec, 1")
            A("buffer_store_dword v252, v253, s[96:99], 0 offen")
            A("s_mov_b64 exec, s[92:93]")
            g.lab(l)
    def tst(i):
        if dbg == 5:
            A("s_memrealtime s[90:91]"); A("s_waitcnt lgkmcnt(0)")
            A(f"v_writelane_b32 v{vSTAMP}, s90, {i}")
    def code_pf(wave, lab_from, lab_to, n, vd):
        l = g.new("cpf"); lp = g.new("cpc")
        A(f"s_cmp_lg_u32 {sWAVE}, {wave}"); A(f"s_cbranch_scc1 {l}")
        A("s_getpc_b64 s[96:97]")
        g.lab(lp)
        A(f"s_add_u32 s96, s96, {lab_from}-{lp}"); A("s_addc_u32 s97, s97, 0")
        A(f"v_lshlrev_b32 v3, 7, v{vLANE}")
        A(f"s_mov_b32 s98, {lab_to}-{lab_from}")
        le = g.new("cpe")
        for i in range(n):
            A("v_cmp_gt_u32 vcc, s98, v3"); A("s_and_b64 exec, exec, vcc")
            A(f"s_cbranch_execz {le}")
            A(f"global_load_dword v{vd}, v3, s[96:97]")
            A("v_add_u32 v3, 0x2000, v3")
        g.lab(le)
        A("s_mov_b64 exec, -1")
        g.lab(l)
    def stamp(i):
        if dbg == 5:
            if i in (3, 9): tst(i)
            return
        if dbg == 4:
            if i == 2:
                hstamp(2, 0); hstamp(3, 255)
            if i == 3:
                hstamp(4, 0); hstamp(5, 77); hstamp(6, 130); hstamp(7, 255)
            if i == 9:
                hstamp(8, 3); hstamp(9, 0); hstamp(10, 19)
            return
        if dbg == 3 and i in (3, 9):
            A("s_memrealtime s[90:91]"); A("s_waitcnt lgkmcnt(0)")
            A(f"v_writelane_b32 v{vSTAMP}, s90, {i}")
        if dbg == 1 or (dbg == 2 and i in (2, 3, 9, 4, 5)) :
            A("s_memrealtime s[90:91]"); A("s_waitcnt lgkmcnt(0)")
            A(f"v_writelane_b32 v{vSTAMP}, s90, {i}")
    A("s_cmp_ge_u32 s2, 256")
    A("s_cbranch_scc1 L_exit")
    if dbg: A("s_memrealtime s[94:95]")
    A("s_load_dwordx16 s[64:79], s[0:1], 0")
    A("s_load_dwordx8 s[80:87], s[0:1], 64")
    A("s_load_dwordx2 s[88:89], s[0:1], 96")
    A(f"v_and_b32 v{vLANE}, 63, v0")
    if CPF:
        g.c("code prefetch into L2 (wave 7 of the first CPF workgroups)")
        A(f"s_cmp_ge_u32 s2, {CPF}"); A("s_cbranch_scc1 L_nocpf")
        A("v_cmp_lt_u32 vcc, 447, v0"); A("s_cbranch_vccz L_nocpf")
        A("s_getpc_b64 s[96:97]")
        g.lab("L_pc")
        A(f"v_lshlrev_b32 v3, 7, v{vLANE}")
        A("s_mov_b32 s98, L_exit-L_pc")
        for i in range(CPFN):
            A("v_cmp_gt_u32 vcc, s98, v3"); A("s_and_b64 exec, exec, vcc")
            A(f"s_cbranch_execz L_cpfend")
            A(f"global_load_dword v{252+(i&3)}, v3, s[96:97]")
            A("v_add_u32 v3, 0x2000, v3")
        g.lab("L_cpfend")
        A("s_mov_b64 exec, -1")
        g.lab("L_nocpf")
    A("v_lshrrev_b32 v3, 6, v0")
    A(f"v_lshrrev_b32 v7, 3, v{vLANE}")
    A(f"v_readfirstlane_b32 {sWAVE}, v3")
    A("v_lshlrev_b32 v7, 9, v7")
    A(f"v_and_b32 v{vOFF}, 7, v{vLANE}")
    A(f"v_lshlrev_b32 v{vOFF}, 4, v{vOFF}")
    A(f"v_add_u32 v{vOFF}, v{vOFF}, v7")
    A(f"s_lshr_b32 {sH}, s2, 4")
    A(f"s_and_b32 {sS}, s2, 15")
    A(f"s_lshl_b32 {sBASE}, {sH}, 24"); A(f"s_mov_b32 {sBASE0}, {sBASE}")
    A(f"s_mul_i32 {sROT}, {sH}, {ROT*8}")
    A(f"s_lshl_b32 {sLAM0}, {sS}, 3"); A(f"s_add_u32 {sLAM0}, {sLAM0}, {sWAVE}")
    A(f"s_mov_b32 {sZ}, 0")
    A(f"s_mov_b32 {sC}, {CSC:#x}")
    A(f"s_mov_b32 {sBUD}, 0x40000")
    A("s_waitcnt lgkmcnt(0)")
    if dbg and dbg != 4: A(f"v_mov_b32 v{vSTAMP}, 0"); A(f"v_writelane_b32 v{vSTAMP}, s94, 0")
    srd(g, 4, 66, 0x10000000); srd(g, 8, 68, 0x10000000); srd(g, 12, 88, 0x40000000)
    hstamp(0, 0); hstamp(1, 255)
    def tile_addr(vdst):
        A(f"s_lshl_b32 s46, {sZ}, 7"); A(f"s_add_u32 s46, s46, {sLAM0}")
        A(f"s_add_u32 s46, s46, {sROT}"); A("s_and_b32 s46, s46, 4095"); A("s_lshl_b32 s46, s46, 12")
        A(f"s_add_u32 s46, s46, {sBASE}")
        A(f"v_add_u32 v{vdst}, s46, v{vOFF}")
        A(f"s_add_u32 {sZ}, {sZ}, 1")
    def tile_addr_dyn(vdst, smk):
        A(f"s_lshl_b32 s46, {sNXT}, 6"); A(f"s_lshl_b32 s47, {sWAVE}, 3"); A("s_add_u32 s46, s46, s47")
        if HALF:
            A(f"s_lshl_b32 s47, {sNXT}, 5"); A(f"s_add_u32 s47, s47, {32*HF}"); A(f"s_lshl_b32 s49, {sWAVE}, 2"); A("s_add_u32 s47, s47, s49")
            A(f"s_cmp_lt_u32 {sNXT}, {HF}"); A("s_cselect_b32 s46, s46, s47")
            A(f"s_cselect_b32 {smk[1]}, -1, 0"); A(f"s_mov_b32 {smk[0]}, -1")
        else:
            A(f"s_mov_b32 {smk[0]}, -1"); A(f"s_mov_b32 {smk[1]}, -1")
        A(f"s_lshl_b32 s47, {sROT}, 3"); A("s_add_u32 s46, s46, s47"); A("s_and_b32 s46, s46, 32767"); A("s_lshl_b32 s46, s46, 9")
        A(f"s_add_u32 s46, s46, {sBASE0}")
        A(f"s_cmp_lt_u32 {sNXT}, {NIT}")
        A(f"s_cselect_b32 s46, s46, 0x80000000")
        A(f"s_cselect_b32 {smk[0]}, {smk[0]}, 1"); A(f"s_cselect_b32 {smk[1]}, {smk[1]}, 0")
        A(f"v_add_u32 v{vdst}, s46, v{vOFF}")
    def loads(b, srdn, va):
        for j in range(4):
            off = f" offset:{j*128}" if j else ""
            A(f"buffer_load_dwordx4 v[{b+4*j}:{b+4*j+3}], v{va}, {srdn}, 0 offen{off} nt")
    VA = [12, 13, 14, 15]
    KB = [RING + 32*k for k in range(D)]; VB = [RING + 32*k + 16 for k in range(D)]
    A(f"s_cmp_lg_u32 {sWAVE}, 0")
    A("s_cbranch_scc1 L_others")
    g.c("wave0: x, epoch, wq partial loads (64 cols x 112 rows)")
    A("s_setprio 3")
    srd(g, 16, 64, 896); srd(g, 20, 70, 448*8192)
    A("v_mov_b32 v8, 0")
    A(f"v_lshlrev_b32 v9, 1, v{vLANE}")
    XR = [88+k for k in range(7)]
    for k in range(7): A(f"buffer_load_ushort v{XR[k]}, v9, {sT1}, 0 offen offset:{128*k} nt")
    A(f"buffer_load_dword v95, v8, {sWS}, 0 offen sc1")
    A(f"s_mul_i32 s44, {sH}, {CSTR}"); A(f"s_add_u32 s44, s44, {CNT:#x}")
    A(f"s_cmp_lg_u32 {sS}, 0"); A("s_cbranch_scc1 L_nozero")
    A("s_mov_b64 exec, 1")
    A(f"buffer_store_dword v8, v8, {sWS}, s44 offen sc1")
    A("s_mov_b64 exec, -1")
    g.lab("L_nozero")
    A("s_and_b32 s43, s2, 3")
    A("s_lshr_b32 s44, s2, 2"); A("s_lshl_b32 s44, s44, 7")
    A(f"s_mul_i32 s45, s43, {112*8192}"); A("s_add_u32 s44, s44, s45")
    A(f"v_lshrrev_b32 v10, 3, v{vLANE}"); A("v_lshlrev_b32 v10, 13, v10")
    A(f"v_and_b32 v11, 7, v{vLANE}"); A("v_lshlrev_b32 v11, 4, v11"); A("v_add3_u32 v10, v10, v11, s44")
    WQ = 32
    for j in range(14):
        A(f"s_mov_b32 s45, {j*8*8192}")
        A(f"buffer_load_dwordx4 v[{WQ+4*j}:{WQ+4*j+3}], v10, {sT2}, s45 offen nt")
    if TOUCH & 2:
        A(f"v_lshlrev_b32 v11, 4, v{vLANE}")
        A(f"s_lshl_b32 s44, {sH}, 13"); A(f"s_add_u32 s44, s44, {QP:#x}")
        for kq in range(8):
            A(f"buffer_load_dwordx4 v[{TMP+20}:{TMP+23}], v11, {sWS}, s44 offen sc1")
            A("s_add_u32 s44, s44, 1024")
    A("s_barrier")
    g.c("wave0: layernorm(x), q partial")
    A("s_waitcnt vmcnt(15)")
    stamp(13)
    for k in range(7): A(f"v_lshlrev_b32 v{XR[k]}, 16, v{XR[k]}")
    layernorm(g, XR, [TMP, TMP+1, TMP+2, TMP+3, TMP+4, TMP+5])
    A(f"v_lshlrev_b32 v9, 2, v{vLANE}")
    for k in range(7): A(f"ds_write_b32 v9, v{XR[k]} offset:{L_X + 256*k}")
    A("s_mul_i32 s45, s43, 448")
    A(f"v_lshrrev_b32 v9, 3, v{vLANE}"); A("v_lshlrev_b32 v9, 2, v9"); A("v_add_u32 v9, s45, v9")
    A("s_waitcnt lgkmcnt(0)")
    XJ = [TMP + j for j in range(14)]
    for j in range(14): A(f"ds_read_b32 v{XJ[j]}, v9 offset:{L_X + 32*j}")
    A(f"s_waitcnt vmcnt({14 + (8 if TOUCH & 2 else 0)})")
    A(f"v_readfirstlane_b32 {sEP}, v95")
    for i in range(8): A(f"v_mov_b32 v{Q+i}, 0")
    A(f"s_mul_i32 {sTAG}, {sEP}, 0x9E3779B1")
    A(f"s_add_u32 {sTAG}, {sTAG}, 0x85EBCA6B")
    A("s_waitcnt vmcnt(0) lgkmcnt(0)")
    stamp(14)
    for j in range(14):
        xl = TMP + 14 + (j & 1)
        A(f"v_lshrrev_b32 v{xl}, 16, v{XJ[j]}")
        for i in range(4):
            A(f"v_dot2c_f32_bf16 v{Q+2*i}, v{WQ+4*j+i}, v{xl}")
            A(f"v_dot2c_f32_bf16 v{Q+2*i+1}, v{WQ+4*j+i}, v{XJ[j]}")
    r = reduce_scatter(g, [Q+i for i in range(8)], [32, 16, 8])[0]
    A(f"v_mov_b32_dpp v{r+2}, v{r} row_ror:8 row_mask:0xf bank_mask:0xf")
    A(f"v_mov_b32 v{r+1}, {sTAG}"); A(f"v_mov_b32 v{r+3}, {sTAG}")
    A(f"v_and_b32 v9, 7, v{vLANE}"); A("v_lshlrev_b32 v9, 6, v9")
    A(f"v_lshrrev_b32 v11, 3, v{vLANE}"); A("v_lshlrev_b32 v11, 3, v11"); A("v_add_u32 v9, v9, v11")
    A(f"s_lshl_b32 s44, {sH}, 13"); A("s_lshl_b32 s45, s43, 11"); A("s_add_u32 s44, s44, s45")
    A(f"s_lshr_b32 s45, {sS}, 2"); A("s_lshl_b32 s45, s45, 9"); A("s_add_u32 s44, s44, s45"); A(f"s_add_u32 s44, s44, {QP:#x}")
    A("s_mov_b32 exec_lo, 0x00ff00ff"); A("s_mov_b32 exec_hi, 0x00ff00ff")
    A(f"buffer_store_dwordx4 v[{r}:{r+3}], v9, {sWS}, s44 offen sc1")
    A("s_mov_b64 exec, -1")
    stamp(1)
    g.c("wave0: gather q partials of own head")
    A(f"v_lshlrev_b32 v9, 4, v{vLANE}")
    A(f"s_lshl_b32 s44, {sH}, 13"); A(f"s_add_u32 s44, s44, {QP:#x}")
    A("v_add_u32 v9, s44, v9")
    A(f"v_lshlrev_b32 v11, 4, v{vLANE}")
    for i in range(4): A(f"v_mov_b32 v{TMP+16+i}, 0")
    A(f"ds_write_b128 v11, v[{TMP+16}:{TMP+19}] offset:{L_XP}")
    for k in range(QPRE):
        tile_addr(VA[k]); loads(KB[k], sKS, VA[k]); loads(VB[k], sVS, VA[k])
    if QD: A(f"s_sleep {QD}")
    QG = 32
    def q_loads():
        for kq in range(4):
            A(f"s_movk_i32 s45, {kq*2048}")
            for i in range(2):
                off = f" offset:{i*1024}" if i else ""
                A(f"buffer_load_dwordx4 v[{QG+8*kq+4*i}:{QG+8*kq+4*i+3}], v9, {sWS}, s45 offen{off} sc1")
    qtags = [QG+4*m+1 for m in range(8)] + [QG+4*m+3 for m in range(8)]
    q_loads()
    A("s_barrier")
    stamp(12)
    A("s_waitcnt vmcnt(0)")
    A(f"v_xor_b32 v{TMP+5}, {sTAG}, v{qtags[0]}")
    for t in qtags[1:]:
        A(f"v_xor_b32 v{TMP+6}, {sTAG}, v{t}"); A(f"v_or_b32 v{TMP+5}, v{TMP+5}, v{TMP+6}")
    A(f"v_cmp_ne_u32 vcc, 0, v{TMP+5}")
    A("s_cbranch_vccz L_qok")
    A(f"s_sub_u32 {sBUD}, {sBUD}, 1")
    poll(g, q_loads, qtags, TMP+5, TMP+6)
    g.lab("L_qok")
    stamp(10)
    if dbg == 1: A(f"v_writelane_b32 v{vSTAMP}, {sBUD}, 11")
    for i in range(2):
        for e in (0, 2):
            A(f"v_add_f32 v{QG+4*i+e}, v{QG+4*i+e}, v{QG+8+4*i+e}")
            A(f"v_add_f32 v{QG+16+4*i+e}, v{QG+16+4*i+e}, v{QG+24+4*i+e}")
            A(f"v_add_f32 v{QG+4*i+e}, v{QG+4*i+e}, v{QG+16+4*i+e}")
        A(f"v_cvt_pk_bf16_f32 v{TMP+8+i}, v{QG+4*i}, v{QG+4*i+2}")
    A(f"v_lshlrev_b32 v9, 2, v{vLANE}")
    A(f"ds_write_b32 v9, v{TMP+8} offset:{L_Q}")
    A(f"ds_write_b32 v9, v{TMP+9} offset:{L_Q+256}")
    A(f"v_mov_b32 v{TMP+12}, {sTAG}"); A(f"v_mov_b32 v{TMP+13}, {sEP}"); A(f"v_mov_b32 v{TMP+7}, 0")
    A(f"ds_write_b64 v{TMP+7}, v[{TMP+12}:{TMP+13}] offset:{L_TAG}")
    for k in range(QPRE, D):
        tile_addr(VA[k]); loads(KB[k], sKS, VA[k]); loads(VB[k], sVS, VA[k])
    A("s_setprio 0")
    A("s_waitcnt lgkmcnt(0)")
    A("s_branch L_waitq")
    g.lab("L_others")
    A("s_barrier")
    if SD: A(f"s_sleep {SD}")
    groups = []
    for k in range(D): groups += [("K", k), ("V", k)]
    for gi, (kind, k) in enumerate(groups):
        if gi == PRE: A("s_barrier")
        if kind == "K": tile_addr(VA[k]); loads(KB[k], sKS, VA[k])
        else: loads(VB[k], sVS, VA[k])
    g.lab("L_waitq")
    A("s_barrier")
    stamp(2)
    if dbg == 5:
        A("s_memtime s[90:91]"); A("s_waitcnt lgkmcnt(0)"); A(f"v_writelane_b32 v{vSTAMP}, s90, 58")
        A("s_memrealtime s[90:91]"); A("s_waitcnt lgkmcnt(0)"); A(f"v_writelane_b32 v{vSTAMP}, s90, 59")
    A(f"v_and_b32 v7, 7, v{vLANE}"); A("v_lshlrev_b32 v7, 4, v7")
    for c in range(4): A(f"ds_read_b128 v[{Q+4*c}:{Q+4*c+3}], v7 offset:{L_Q + 128*c}")
    A("v_mov_b32 v8, 0")
    A(f"ds_read_b64 v[10:11], v8 offset:{L_TAG}")
    for i in range(32): A(f"v_mov_b32 v{ACC+i}, 0")
    A(f"v_mov_b32 v{vM}, {NEG_BIG:#x}"); A(f"v_mov_b32 v{vMC}, {NEG_BIG:#x}"); A(f"v_mov_b32 v{vL}, 0")
    A("s_and_b32 s37, s2, 7"); A(f"s_lshr_b32 {sRI}, s2, 3")
    A(f"s_mov_b32 {sLOC}, 0")
    A("s_cmp_lt_u32 s2, 224"); A("s_cselect_b32 s38, 2, 1")
    A("s_cmp_eq_u32 s37, 0"); A(f"s_cselect_b32 {sROLE}, s38, 0")
    A("s_waitcnt lgkmcnt(0)")
    A(f"v_readfirstlane_b32 {sTAG}, v10"); A(f"v_readfirstlane_b32 {sEP}, v11")
    A(f"s_mov_b32 {sSTEP}, 0")
    if dbg == 3: A("s_mov_b32 s92, 15")
    resc = []
    def body(k, kwait, vwait, issue, pre=None, post=None):
        kb, vb = KB[k], VB[k]
        g.c(f"slot {k} ({issue})")
        if pre: pre()
        stepstamp()
        A(f"s_waitcnt vmcnt({kwait})")
        for r_ in range(4): A(f"v_dot2_f32_bf16 v{7+r_}, v{kb+r_}, v{Q+r_}, 0")
        for r_ in range(4, 16 if not NOCOMP else 4): A(f"v_dot2c_f32_bf16 v{7+(r_&3)}, v{kb+r_}, v{Q+r_}")
        if issue == "static": tile_addr(VA[k]); loads(kb, sKS, VA[k])
        elif issue == "dyn":
            tile_addr_dyn(VA[k], sMK[k])
            A(f"s_mov_b64 exec, s[{sMK[k][0][1:]}:{sMK[k][1][1:]}]"); loads(kb, sKS, VA[k]); A("s_mov_b64 exec, -1")
        else: g.nop(3)
        A("v_add_f32 v7, v7, v8"); A("v_add_f32 v9, v9, v10"); A("v_add_f32 v7, v7, v9"); g.nop(2)
        allreduce_low(g, 7, [0, 1, 2])
        A("v_cvt_pk_bf16_f32 v8, v7, v7")
        A("v_lshlrev_b32 v7, 16, v8")
        if issue == "dyn" and HALF:
            A(f"v_cndmask_b32 v7, v3, v7, s[{sMC[k][0][1:]}:{sMC[k][1][1:]}]")
        A(f"v_cmp_gt_f32 vcc, v7, v{vM}")
        lr, lc = g.new("resc"), g.new("cont")
        A(f"s_cbranch_vccnz {lr}")
        g.lab(lc)
        A(f"v_fma_f32 v8, v7, {sC}, -v{vMC}")
        A("v_exp_f32 v8, v8"); g.nop(1)
        A(f"v_add_f32 v{vL}, v{vL}, v8")
        A("v_cvt_pk_bf16_f32 v9, v8, 0")
        A("v_cvt_pk_bf16_f32 v10, 0, v8")
        A(f"s_waitcnt vmcnt({vwait})")
        for c in range(4 if not NOCOMP else 0):
            for i in range(4):
                A(f"v_dot2c_f32_bf16 v{ACC+8*c+2*i}, v{vb+4*c+i}, v9")
                A(f"v_dot2c_f32_bf16 v{ACC+8*c+2*i+1}, v{vb+4*c+i}, v10")
        if issue == "static": loads(vb, sVS, VA[k])
        elif issue == "dyn":
            A(f"s_mov_b64 exec, s[{sMK[k][0][1:]}:{sMK[k][1][1:]}]"); loads(vb, sVS, VA[k]); A("s_mov_b64 exec, -1")
            if HALF: A(f"s_mov_b64 s[{sMC[k][0][1:]}:{sMC[k][1][1:]}], s[{sMK[k][0][1:]}:{sMK[k][1][1:]}]")
        if post: post()
        resc.append((lr, lc))
    g.lab("L_loop")
    for k in range(D):
        body(k, 28, 28, "static", pre=(lambda: A("s_barrier")) if (BAR == 1 or (BAR == 4 and k == 0) or (BAR == 2 and k % 2 == 0)) else None)
    A(f"s_add_u32 {sSTEP}, {sSTEP}, 4")
    A(f"s_cmp_eq_u32 {sSTEP}, 8"); A("s_cbranch_scc1 L_wload")
    A(f"s_cmp_eq_u32 {sSTEP}, 12"); A("s_cbranch_scc1 L_xgload")
    g.lab("L_loop_back")
    A(f"s_cmp_lt_u32 {sSTEP}, {NS-4}"); A("s_cbranch_scc1 L_loop")
    g.c("transition: consume slots 0,1 without issue")
    A(f"s_add_u32 s37, {sS}, {16*NS}"); A(f"v_mov_b32 v{TMP}, s37"); A(f"v_mov_b32 v{TMP+1}, 0")
    A(f"ds_write_b32 v{TMP+1}, v{TMP} offset:{L_CL}")
    A(f"s_mov_b32 {sV2}, 1"); A(f"s_mov_b32 {sV3}, 1"); A("s_mov_b32 s58, 0")
    A("s_mov_b64 s[76:77], -1"); A("s_mov_b64 s[78:79], -1"); A(f"v_mov_b32 v3, {NEG_BIG:#x}")
    A(f"s_cmp_eq_u32 {sROLE}, 0"); A(f"s_cselect_b32 {sLIM}, 0, {RWX}"); A(f"s_sub_u32 {sLIM}, {NIT}, {sLIM}"); A(f"s_mov_b32 {sDC}, 0")
    A("s_mov_b32 s41, 0x05040100"); A("s_mov_b32 s42, 0x07060302")
    if LOOK == 2: A(f"s_sub_u32 s37, {sS}, 16"); A(f"v_mov_b32 v{TMP+5}, s37")
    A(f"s_mul_i32 s48, {sH}, {CSTR}"); A(f"s_add_u32 s48, s48, {CNT:#x}")
    def xg_check():
        l = g.new("xgs"); l2 = g.new("xgok")
        A(f"s_cmp_eq_u32 {sROLE}, 0"); A(f"s_cbranch_scc1 {l}")
        A("s_mov_b32 exec_lo, -1"); A("s_mov_b32 exec_hi, 0")
        A(f"v_cmp_ne_u32 vcc, {sTAG}, v{TMP+13}")
        A(f"s_cbranch_vccz {l2}")
        A(f"v_lshlrev_b32 v{TMP+14}, 3, v{vLANE}"); A(f"v_add_u32 v{TMP+14}, {XG:#x}, v{TMP+14}")
        poll(g, lambda: A(f"buffer_load_dwordx2 v[{TMP+12}:{TMP+13}], v{TMP+14}, {sWS}, 0 offen sc1"), [TMP+13], TMP+8, TMP+9, sleep=2)
        g.lab(l2)
        A("s_getreg_b32 s37, hwreg(HW_REG_XCC_ID)"); A("s_and_b32 s37, s37, 15")
        A(f"v_cmp_ne_u32 vcc, s37, v{TMP+12}")
        A("s_cmp_eq_u64 vcc, 0"); A(f"s_cselect_b32 {sLOC}, 1, 0")
        if NOLOC: A(f"s_mov_b32 {sLOC}, 0")
        A("s_mov_b64 exec, -1")
        g.lab(l)
    def wo_load():
        l = g.new("wol")
        A("s_waitcnt lgkmcnt(0)")
        A(f"s_cmp_eq_u32 {sROLE}, 0"); A(f"s_cbranch_scc1 {l}")
        srd(g, 16, 72, 4096*896)
        A(f"s_lshl_b32 s37, {sH}, 4"); A(f"s_and_b32 s38, {sS}, 8"); A("s_add_u32 s37, s37, s38"); A(f"s_add_u32 s37, s37, {sWAVE}")
        A(f"s_mul_i32 s37, s37, {16*896}")
        A(f"v_lshlrev_b32 v{TMP+8}, 4, v{vLANE}")
        for i in range(16):
            A(f"buffer_load_dwordx4 v[{R0+4*i}:{R0+4*i+3}], v{TMP+8}, {sT1}, s37 offen nt")
            A("s_add_u32 s37, s37, 896")
        g.lab(l)
    body(0, 28, 24, "none", pre=lambda: A("s_barrier"), post=xg_check)
    body(1, 20, 16, "none", pre=lambda: A("s_barrier"), post=wo_load)
    if dbg == 2: stamp(5)
    if TPF & 1: code_pf(6, "L_s0", "L_exit", 2, TMP+20)
    g.lab("L_dyn")
    for k in (2, 3):
        p = k & 1
        sV = sV2 if k == 2 else sV3
        RA = [TMP+3, TMP+5]
        def pre(k=k, p=p, sV=sV):
            A("s_barrier")
            A(f"ds_read_b32 v{TMP+2}, v{TMP+1} offset:{L_CL + 4*p}")
            A(f"s_cmp_eq_u32 {sV}, 0"); A("s_cbranch_scc1 L_s0")
            A("s_waitcnt lgkmcnt(0)")
            A(f"v_readfirstlane_b32 {sNXT}, v{TMP+2}")
            l = g.new("noclaim")
            A(f"s_cmp_lg_u32 {sWAVE}, 0"); A(f"s_cbranch_scc1 {l}")
            A(f"s_cmp_ge_u32 {sNXT}, {sLIM}"); A(f"s_cbranch_scc1 {l}")
            ra = RA[p] if LOOK == 2 else RA[0]
            A(f"v_mov_b32 v{ra}, 1")
            A("s_mov_b64 exec, 1")
            if FAKE in (0, 3): A(f"buffer_atomic_add v{ra}, v{TMP+1}, {sWS}, s48 offen {['sc0', 'sc0 sc1', 'sc0 nt', 'sc0 sc1 nt'][AFL]}")
            elif FAKE == 2: A(f"buffer_load_dword v{ra}, v{TMP+1}, {sWS}, s48 offen sc1")
            A("s_mov_b64 exec, -1")
            g.lab(l)
        def post(k=k, p=p, sV=sV):
            A(f"s_cmp_lt_u32 {sNXT}, {NIT}"); A(f"s_cselect_b32 {sV}, 1, 0")
            if dbg: A(f"s_add_u32 {sSTEP}, {sSTEP}, {sV}")
            if PT & 4:
                lt = g.new("ept")
                A(f"s_cmp_lg_u32 {sWAVE}, 4"); A(f"s_cbranch_scc1 {lt}")
                A(f"s_cmp_lt_u32 {sNXT}, {NIT}"); A(f"s_cbranch_scc1 {lt}")
                A(f"s_cmp_eq_u32 s58, 1"); A(f"s_cbranch_scc1 {lt}")
                A("s_mov_b32 s58, 1")
                A(f"v_lshlrev_b32 v{TMP+8}, 4, v{vLANE}")
                A(f"s_lshl_b32 s38, {sH}, 15"); A(f"s_lshl_b32 s39, {sS}, 11"); A("s_add_u32 s38, s38, s39"); A(f"s_add_u32 s38, s38, {OP:#x}")
                A(f"buffer_load_dwordx4 v[{TMP+20}:{TMP+23}], v{TMP+8}, {sWS}, s38 offen sc1")
                A(f"buffer_load_dwordx4 v[{TMP+20}:{TMP+23}], v{TMP+8}, {sWS}, s38 offen offset:1024 sc1")
                g.lab(lt)
            lp_ = g.new("wop")
            A(f"s_add_u32 {sDC}, {sDC}, 1"); A(f"s_cmp_lg_u32 {sDC}, 2"); A(f"s_cbranch_scc1 {lp_}")
            A(f"s_cmp_eq_u32 {sROLE}, 0"); A(f"s_cbranch_scc1 {lp_}")
            if k == 3:
                for i in range(8):
                    for e in range(4): perm_pair(g, R0+8*i+e, R0+8*i+4+e, 9)
            g.lab(lp_)
            l = g.new("nopub")
            A(f"s_cmp_lg_u32 {sWAVE}, 0"); A(f"s_cbranch_scc1 {l}")
            ra = RA[p^1] if LOOK == 2 else RA[0]
            A(f"s_waitcnt vmcnt({17 if LOOK == 2 else 8})")
            if FAKE: A(f"s_add_u32 s49, {sNXT}, 16"); A(f"v_mov_b32 v{ra}, s49")
            else: A(f"v_add_u32 v{ra}, {16*(NS+LOOK)}, v{ra}")
            A(f"v_mov_b32 v{TMP+4}, 0xffff")
            A(f"s_cmp_lt_u32 {sNXT}, {sLIM}"); A("s_cselect_b64 vcc, -1, 0")
            A(f"v_cndmask_b32 v{TMP+4}, v{TMP+4}, v{ra}, vcc")
            A("s_mov_b64 exec, 1")
            A(f"ds_write_b32 v{TMP+1}, v{TMP+4} offset:{L_CL + 4*(p^1)}")
            A("s_mov_b64 exec, -1")
            A("s_waitcnt lgkmcnt(0)")
            g.lab(l)
        body(k, 12, 12, "dyn", pre=pre, post=post)
    A("s_branch L_dyn")
    for lr, lc in resc:
        g.lab(lr)
        A("v_mov_b32 v8, v7"); g.nop(2)
        dpp(g, "v_max_f32", 8, 8, 8, "row_ror:8"); g.nop(2)
        dpp(g, "v_max_f32", 8, 8, 8, "row_bcast:15", rm=0xa); g.nop(2)
        dpp(g, "v_max_f32", 8, 8, 8, "row_bcast:31", rm=0xc); g.nop(1)
        A("v_readlane_b32 s47, v8, 63"); g.nop(2)
        A(f"v_max_f32 v9, s47, v{vM}")
        A(f"v_sub_f32 v10, v{vM}, v9")
        A(f"v_mul_f32 v10, {sC}, v10")
        A("v_exp_f32 v10, v10")
        A(f"v_mov_b32 v{vM}, v9")
        A(f"v_mul_f32 v{vMC}, {sC}, v9")
        A(f"v_mul_f32 v{vL}, v10, v{vL}")
        for i in range(32): A(f"v_mul_f32 v{ACC+i}, v10, v{ACC+i}")
        A(f"s_branch {lc}")
    g.lab("L_wload")
    if dbg == 2: stamp(4)
    A(f"s_cmp_eq_u32 {sROLE}, 0"); A("s_cbranch_scc1 L_loop_back")
    A(f"s_cmp_eq_u32 {sROLE}, 1"); A("s_cbranch_scc1 L_xgpub")
    g.c("role WG: w1[:, 64a..+64) (wave w rows 56w + 8j + (l>>3), chunk l&7), w2 rows 64a + 8w + j, b1, x, b2, xcc granule")
    srd(g, 16, 76, 448*3584); srd(g, 20, 80, 1792*896)
    A(f"v_lshrrev_b32 v{TMP}, 3, v{vLANE}"); A("s_movk_i32 s37, 3584"); A(f"v_mul_lo_u32 v{TMP}, v{TMP}, s37")
    A(f"v_and_b32 v{TMP+1}, 7, v{vLANE}"); A(f"v_lshlrev_b32 v{TMP+1}, 4, v{TMP+1}"); A(f"v_add_u32 v{TMP}, v{TMP}, v{TMP+1}")
    A(f"s_mul_i32 s37, {sWAVE}, {56*3584}"); A(f"s_lshl_b32 s38, {sRI}, 7"); A("s_add_u32 s37, s37, s38")
    A(f"s_mul_i32 s38, {sWAVE}, {7*1024}"); A(f"s_add_u32 s38, s38, {L_W1}")
    for j in range(7):
        A("s_mov_b32 m0, s38"); A("s_nop 0")
        A(f"buffer_load_dwordx4 v{TMP}, {sT1}, s37 offen nt lds")
        A(f"s_add_u32 s37, s37, {8*3584}"); A("s_add_u32 s38, s38, 1024")
    A(f"v_lshlrev_b32 v{TMP+2}, 4, v{vLANE}")
    A(f"s_lshl_b32 s37, {sRI}, 6"); A(f"s_lshl_b32 s38, {sWAVE}, 3"); A("s_add_u32 s37, s37, s38"); A("s_mul_i32 s37, s37, 896")
    A(f"s_lshl_b32 s38, {sWAVE}, 13"); A(f"s_add_u32 s38, s38, {L_W2}")
    for j in range(8):
        A("s_mov_b32 m0, s38"); A("s_nop 0")
        A(f"buffer_load_dwordx4 v{TMP+2}, {sT2}, s37 offen nt lds")
        A("s_add_u32 s37, s37, 896"); A("s_add_u32 s38, s38, 1024")
    srd(g, 16, 78, 1792*2)
    A(f"v_and_b32 v{TMP+1}, 7, v{vLANE}"); A(f"v_lshlrev_b32 v{TMP+1}, 3, v{TMP+1}"); A(f"v_lshrrev_b32 v{TMP+3}, 3, v{vLANE}"); A(f"v_add_u32 v{TMP+1}, v{TMP+1}, v{TMP+3}")
    A(f"v_lshlrev_b32 v{TMP+1}, 1, v{TMP+1}"); A(f"s_lshl_b32 s37, {sRI}, 7"); A(f"v_add_u32 v{TMP+1}, s37, v{TMP+1}")
    A(f"buffer_load_ushort v{vB1}, v{TMP+1}, {sT1}, 0 offen nt")
    srd(g, 16, 64, 896); srd(g, 20, 82, 896)
    A(f"s_lshl_b32 s37, {sRI}, 5")
    A(f"v_and_b32 v{TMP+3}, 7, v{vLANE}"); A(f"v_lshlrev_b32 v{TMP+3}, 1, v{TMP+3}"); A(f"v_lshrrev_b32 v{TMP+4}, 5, v{vLANE}"); A(f"v_add_u32 v{TMP+3}, v{TMP+3}, v{TMP+4}")
    A(f"v_lshlrev_b32 v{TMP+3}, 1, v{TMP+3}"); A(f"v_add_u32 v{TMP+3}, s37, v{TMP+3}")
    A(f"buffer_load_ushort v{vB2}, v{TMP+3}, {sT2}, 0 offen nt")
    A(f"buffer_load_ushort v{vXH}, v{TMP+3}, {sT1}, 0 offen nt")
    g.lab("L_xgpub")
    A(f"s_cmp_lg_u32 {sWAVE}, 0"); A("s_cbranch_scc1 L_loop_back")
    A("s_getreg_b32 s37, hwreg(HW_REG_XCC_ID)"); A("s_and_b32 s37, s37, 15")
    A(f"v_mov_b32 v{TMP+6}, s37"); A(f"v_mov_b32 v{TMP+7}, {sTAG}"); A(f"s_lshl_b32 s37, {sRI}, 3"); A(f"s_add_u32 s37, s37, {XG:#x}"); A(f"v_mov_b32 v{TMP+5}, 0")
    A("s_mov_b64 exec, 1")
    A(f"buffer_store_dwordx2 v[{TMP+6}:{TMP+7}], v{TMP+5}, {sWS}, s37 offen sc1")
    A("s_mov_b64 exec, -1")
    A("s_branch L_loop_back")
    g.lab("L_xgload")
    A(f"s_cmp_eq_u32 {sROLE}, 0"); A("s_cbranch_scc1 L_loop_back")
    A(f"v_lshlrev_b32 v{TMP+14}, 3, v{vLANE}"); A(f"v_add_u32 v{TMP+14}, {XG:#x}, v{TMP+14}")
    A(f"buffer_load_dwordx2 v[{TMP+12}:{TMP+13}], v{TMP+14}, {sWS}, 0 offen sc1")
    A("s_branch L_loop_back")
    g.lab("L_s0")
    stamp(3)
    if dbg and dbg != 4: A(f"v_writelane_b32 v{vSTAMP}, {sSTEP}, 15")
    g.c("S0: in-wave reduce")
    T = TMP
    allreduce_high(g, vL, T)
    reduce_scatter(g, [ACC+i for i in range(32)], [32, 16, 8])
    A(f"v_lshrrev_b32 v7, 4, v{vLANE}"); A("v_lshlrev_b32 v7, 8, v7")
    A(f"v_and_b32 v8, 7, v{vLANE}"); A("v_lshlrev_b32 v8, 5, v8")
    A(f"v_bfe_u32 v9, v{vLANE}, 3, 1"); A("v_lshlrev_b32 v9, 4, v9")
    A("v_add3_u32 v7, v7, v8, v9")
    A(f"s_lshl_b32 s37, {sWAVE}, 10"); A("v_add_u32 v7, s37, v7")
    A(f"ds_write_b128 v7, v[{ACC}:{ACC+3}] offset:{L_O}")
    A(f"v_mov_b32 v8, v{vM}"); A(f"v_mov_b32 v9, v{vL}")
    A(f"s_lshl_b32 s37, {sWAVE}, 3"); A("v_mov_b32 v10, s37")
    A(f"ds_write_b64 v10, v[8:9] offset:{L_ST}")
    A("s_mov_b32 s41, 0x05040100"); A("s_mov_b32 s42, 0x07060302")
    A("s_waitcnt vmcnt(0) lgkmcnt(0)")
    A("s_barrier")
    tst(16)
    A(f"s_cmp_gt_u32 {sWAVE}, 1"); A("s_cbranch_scc1 L_rw")
    g.c("waves 0-1: cross-wave combine + publish (thread t: dims 2t, 2t+1)")
    OW = 68
    A("v_mov_b32 v7, 0")
    for i in range(4): A(f"ds_read_b128 v[{T+4*i}:{T+4*i+3}], v7 offset:{L_ST+16*i}")
    A("v_lshlrev_b32 v8, 3, v0")
    for w in range(8): A(f"ds_read_b64 v[{OW+2*w}:{OW+2*w+1}], v8 offset:{L_O+1024*w}")
    A("s_waitcnt lgkmcnt(8)")
    A(f"v_max3_f32 v9, v{T}, v{T+2}, v{T+4}"); A(f"v_max3_f32 v10, v{T+6}, v{T+8}, v{T+10}"); A(f"v_max3_f32 v9, v9, v{T+12}, v{T+14}"); A(f"v_max_f32 v9, v9, v10")
    A(f"v_mul_f32 v11, {sC}, v9")
    for w in range(8): A(f"v_fma_f32 v{T+2*w}, v{T+2*w}, {sC}, -v11")
    for w in range(8): A(f"v_exp_f32 v{T+2*w}, v{T+2*w}")
    A("v_lshrrev_b32 v7, 3, v0"); A("v_lshlrev_b32 v7, 11, v7")
    A("v_and_b32 v8, 7, v0"); A("v_cmp_eq_u32 vcc, 0, v8"); A("v_lshlrev_b32 v8, 4, v8"); A("v_add_u32 v7, v7, v8")
    A(f"s_lshl_b32 s37, {sH}, 15"); A(f"s_lshl_b32 s38, {sS}, 7"); A("s_add_u32 s37, s37, s38"); A(f"s_add_u32 s37, s37, {OP:#x}")
    PG = 84
    A(f"v_mov_b32 v{PG+3}, {sTAG}")
    A("s_waitcnt lgkmcnt(0)")
    A(f"v_mul_f32 v{PG}, v{T}, v{OW}"); A(f"v_mul_f32 v{PG+1}, v{T}, v{OW+1}"); A(f"v_mul_f32 v10, v{T}, v{T+1}")
    for w in range(1, 8):
        A(f"v_fmac_f32 v{PG}, v{T+2*w}, v{OW+2*w}"); A(f"v_fmac_f32 v{PG+1}, v{T+2*w}, v{OW+2*w+1}"); A(f"v_fmac_f32 v10, v{T+2*w}, v{T+2*w+1}")
    A(f"v_cndmask_b32 v{PG+2}, v10, v9, vcc")
    A(f"buffer_store_dwordx4 v[{PG}:{PG+3}], v7, {sWS}, s37 offen sc1")
    tst(17)
    if dbg == 5: A("s_waitcnt vmcnt(0)"); tst(61)
    g.lab("L_rw")
    A(f"s_cmp_eq_u32 {sROLE}, 0"); A("s_cbranch_scc1 L_end")
    def lstore(text):
        l1, l2 = g.new("ls"), g.new("ls")
        A(f"s_cmp_eq_u32 {sLOC}, 0"); A(f"s_cbranch_scc1 {l1}")
        A(text); A(f"s_branch {l2}")
        g.lab(l1); A(text + " sc1"); g.lab(l2)
    g.c("first gather round of this wave's 16-dim slice, pre-touch of later hand-off lines, weight preparation")
    vOA = 50
    A(f"v_lshlrev_b32 v{vOA}, 4, v{vLANE}")
    A(f"s_and_b32 s39, {sS}, 8"); A(f"s_add_u32 s39, s39, {sWAVE}"); A("s_lshl_b32 s39, s39, 11")
    A(f"s_lshl_b32 s38, {sH}, 15"); A("s_add_u32 s38, s38, s39"); A(f"s_add_u32 s38, s38, {OP:#x}")
    A(f"v_add_u32 v{vOA}, s38, v{vOA}")
    def g0(): A(f"buffer_load_dwordx4 v[{T+8}:{T+11}], v{vOA}, {sWS}, 0 offen sc1")
    def g1(): A(f"buffer_load_dwordx4 v[{T+12}:{T+15}], v{vOA}, {sWS}, 0 offen offset:1024 sc1")
    g0(); g1()
    if PT:
        lpt = g.new("pt"); l7 = g.new("pt7"); l5 = g.new("pt5"); l6 = g.new("pt6")
        A(f"s_cmp_lt_u32 {sROLE}, 2"); A(f"s_cbranch_scc1 {lpt}")
        A(f"v_lshlrev_b32 v7, 4, v{vLANE}")
        DM = 88
        A(f"s_cmp_lg_u32 {sWAVE}, 7"); A(f"s_cbranch_scc1 {l7}")
        A(f"s_mul_i32 s37, {sRI}, {FSTR}"); A(f"s_add_u32 s37, s37, {FP:#x}")
        for k in range(7):
            A(f"buffer_load_dwordx4 v[{DM}:{DM+3}], v7, {sWS}, s37 offen sc1"); A("s_add_u32 s37, s37, 1024")
        g.lab(l7)
        A(f"s_cmp_lg_u32 {sWAVE}, 5"); A(f"s_cbranch_scc1 {l5}")
        A(f"s_mov_b32 s37, {HG:#x}")
        A(f"buffer_load_dwordx4 v[{DM}:{DM+3}], v7, {sWS}, s37 offen sc1"); A(f"buffer_load_dwordx4 v[{DM}:{DM+3}], v7, {sWS}, s37 offen offset:1024 sc1")
        g.lab(l5)
        A(f"s_cmp_lg_u32 {sWAVE}, 6"); A(f"s_cbranch_scc1 {l6}")
        A(f"s_mul_i32 s37, {sRI}, {YSTR}"); A(f"s_add_u32 s37, s37, {YP:#x}")
        for k in range(4):
            A(f"buffer_load_dwordx4 v[{DM}:{DM+3}], v7, {sWS}, s37 offen sc1"); A("s_add_u32 s37, s37, 1024")
        g.lab(l6)
        g.lab(lpt)
    W1R = R0 + 64; W2R = R0 + 96; XPR = 68; APR = 72; AC = 88; XA = [ACC + i for i in range(8)]; PA = ACC + 8
    vFA = 48; vC = 49; vYA = 51
    def ffn_prep():
        A(f"v_lshlrev_b32 v7, 4, v{vLANE}"); A(f"s_mul_i32 s37, {sWAVE}, {7*1024}"); A("v_add_u32 v7, s37, v7")
        for j in range(7): A(f"ds_read_b128 v[{W1R+4*j}:{W1R+4*j+3}], v7 offset:{L_W1 + 1024*j}")
        for i in range(4): A(f"v_mov_b32 v{W1R+28+i}, 0")
        A(f"s_and_b32 s37, {sWAVE}, 3"); A("s_lshl_b32 s37, s37, 8"); A(f"s_lshr_b32 s38, {sWAVE}, 2"); A("s_lshl_b32 s38, s38, 15"); A("s_add_u32 s37, s37, s38"); A(f"s_add_u32 s37, s37, {L_W2}")
        A(f"v_lshlrev_b32 v8, 2, v{vLANE}"); A("v_add_u32 v8, s37, v8")
        for i in range(16): A(f"ds_read2st64_b32 v[{W2R+2*i}:{W2R+2*i+1}], v8 offset0:{8*i} offset1:{8*i+4}")
        for r_ in (vXH, vB2, vB1): A(f"v_lshlrev_b32 v{r_}, 16, v{r_}")
        for k in range(2):
            for e in range(4):
                x = XA[4*k+e]
                A(f"v_lshlrev_b32 v{x}, 2, v{vLANE}"); A(f"v_add_u32 v{x}, {4*56*k + e}, v{x}")
                A("s_movk_i32 s37, 1171"); A(f"v_mul_u32_u24 v9, s37, v{x}"); A("v_lshrrev_b32 v9, 16, v9")
                A(f"v_mul_u32_u24 v10, 56, v9"); A(f"v_sub_u32 v10, v{x}, v10")
                A(f"v_lshrrev_b32 v11, 4, v10"); A(f"v_lshl_add_u32 v9, v9, 2, v11")
                A("v_and_b32 v11, 7, v10"); A("v_lshl_add_u32 v9, v9, 3, v11")
                A("v_bfe_u32 v11, v10, 3, 1"); A("v_lshlrev_b32 v11, 1, v11"); A(f"v_lshl_add_u32 v{x}, v9, 2, v11")
        A("s_waitcnt lgkmcnt(0)")
        for jj in range(4):
            for i in range(4): perm_pair(g, W1R+8*jj+i, W1R+8*jj+4+i, 9)
        for i in range(16): perm_pair(g, W2R+2*i, W2R+2*i+1, 9)
        A(f"s_and_b32 s37, {sWAVE}, 3"); A("s_lshl_b32 s37, s37, 6"); A(f"v_add_u32 v{vC}, s37, v{vLANE}")
        A(f"v_lshrrev_b32 v{vFA}, 3, v{vC}"); A(f"s_movk_i32 s38, {FSTR}"); A(f"v_mul_lo_u32 v{vFA}, v{vFA}, s38"); A(f"v_and_b32 v9, 7, v{vC}"); A("v_lshlrev_b32 v9, 4, v9"); A(f"v_add_u32 v{vFA}, v{vFA}, v9")
        A(f"s_lshl_b32 s37, {sRI}, 1"); A(f"s_lshr_b32 s38, {sWAVE}, 2"); A("s_add_u32 s37, s37, s38"); A("s_lshl_b32 s37, s37, 7"); A(f"s_add_u32 s37, s37, {FP:#x}"); A(f"v_add_u32 v{vFA}, s37, v{vFA}")
    lnf = g.new("noffn")
    A(f"s_cmp_lt_u32 {sROLE}, 2"); A(f"s_cbranch_scc1 {lnf}")
    A(f"s_cmp_eq_u32 {sWAVE}, 5"); A(f"s_cselect_b32 s37, 1, 0"); A(f"s_cmp_eq_u32 {sWAVE}, 6"); A(f"s_cselect_b32 s37, 1, s37")
    A("s_cmp_eq_u32 s37, 0"); A(f"s_cbranch_scc1 {lnf}")
    ffn_prep()
    g.lab(lnf)
    A(f"v_lshrrev_b32 v{vYA}, 3, v0"); A(f"s_movk_i32 s38, {YSTR}"); A(f"v_mul_lo_u32 v{vYA}, v{vYA}, s38"); A("v_and_b32 v9, 7, v0"); A("v_lshlrev_b32 v9, 4, v9"); A(f"v_add_u32 v{vYA}, v{vYA}, v9")
    A(f"s_lshl_b32 s37, {sRI}, 7"); A(f"s_add_u32 s37, s37, {YP:#x}"); A(f"v_add_u32 v{vYA}, s37, v{vYA}")
    for i in range(8): A(f"v_mov_b32 v{PA+i}, 0")
    vLW = 52
    A(f"v_lshlrev_b32 v{vLW}, 5, v{vLANE}"); A(f"s_mul_i32 s37, {sWAVE}, 1792"); A(f"v_add_u32 v{vLW}, s37, v{vLW}")
    g.c("hop 1: combine the 16 partials of this wave's 16 dims")
    if dbg == 5: A("s_mov_b32 s92, 47"); tst(47)
    selpoll(g, [(g0, [T+11]), (g1, [T+15])], 9, 10, first_issued=True, sleep=H1SLEEP, dbgbase=48 if dbg == 5 else None)
    tst(18)
    for dst, src, ln in ((T, T+10, 0), (T+4, T+14, 0), (T+1, T+10, 1), (T+5, T+14, 1)):
        A(f"v_mov_b32_dpp v{dst}, v{src} row_newbcast:{ln} row_mask:0xf bank_mask:0x3")
    for dst, src, ln in ((T, T+10, 8), (T+4, T+14, 8), (T+1, T+10, 9), (T+5, T+14, 9)):
        A(f"v_mov_b32_dpp v{dst}, v{src} row_newbcast:{ln} row_mask:0xf bank_mask:0xc")
    A(f"v_max_f32 v9, v{T}, v{T+4}"); g.nop(2)
    allreduce_high(g, 9, 10, op="v_max_f32")
    A(f"v_sub_f32 v{T}, v{T}, v9"); A(f"v_sub_f32 v{T+4}, v{T+4}, v9")
    A(f"v_mul_f32 v{T}, {sC}, v{T}"); A(f"v_mul_f32 v{T+4}, {sC}, v{T+4}")
    A(f"v_exp_f32 v{T}, v{T}"); A(f"v_exp_f32 v{T+4}, v{T+4}"); g.nop(1)
    A(f"v_mul_f32 v{T+16}, v{T}, v{T+1}"); A(f"v_mul_f32 v{T+17}, v{T}, v{T+8}"); A(f"v_mul_f32 v{T+18}, v{T}, v{T+9}")
    A(f"v_fmac_f32 v{T+16}, v{T+4}, v{T+5}"); A(f"v_fmac_f32 v{T+17}, v{T+4}, v{T+12}"); A(f"v_fmac_f32 v{T+18}, v{T+4}, v{T+13}")
    g.nop(2)
    allreduce_high(g, [T+16, T+17, T+18], [T+19, T+20, T+21])
    A(f"v_rcp_f32 v{T+16}, v{T+16}"); g.nop(1)
    A(f"v_mul_f32 v{T+17}, v{T+17}, v{T+16}"); A(f"v_mul_f32 v{T+18}, v{T+18}, v{T+16}")
    A(f"v_cvt_pk_bf16_f32 v{T+20}, v{T+17}, v{T+18}"); g.nop(1)
    for i in range(8): A(f"v_readlane_b32 s{64+i}, v{T+20}, {i}")
    g.nop(1)
    tst(19)
    g.c("wo product for this wave's 16 rows (lanes < 56: 8 columns each)")
    for i in range(8):
        for e in range(4):
            A(f"v_dot2c_f32_bf16 v{PA+2*e}, s{64+i}, v{R0+8*i+e}")
            A(f"v_dot2c_f32_bf16 v{PA+2*e+1}, s{64+i}, v{R0+8*i+4+e}")
    A("s_mov_b32 exec_lo, -1"); A("s_mov_b32 exec_hi, 0x00ffffff"); g.nop(2)
    A(f"ds_write_b128 v{vLW}, v[{PA}:{PA+3}] offset:{L_YW}"); A(f"ds_write_b128 v{vLW}, v[{PA+4}:{PA+7}] offset:{L_YW+16}")
    A("s_mov_b64 exec, -1")
    A("s_waitcnt lgkmcnt(0)")
    A("s_barrier")
    tst(20)
    A(f"s_cmp_gt_u32 {sWAVE}, 3"); A("s_cbranch_scc1 L_ysent")
    A("v_lshlrev_b32 v8, 3, v0")
    for w in range(8): A(f"ds_read_b64 v[{T+2*w}:{T+2*w+1}], v8 offset:{L_YW+1792*w}")
    A(f"v_mov_b32 v{T+17}, {sTAG}"); A(f"v_mov_b32 v{T+19}, {sTAG}")
    A("v_cmp_gt_u32 vcc, 224, v0")
    A("s_waitcnt lgkmcnt(0)")
    for st in (4, 2, 1):
        for i in range(st): A(f"v_pk_add_f32 v[{T+2*i}:{T+2*i+1}], v[{T+2*i}:{T+2*i+1}], v[{T+2*(i+st)}:{T+2*(i+st)+1}]")
    A(f"v_mov_b32 v{T+16}, v{T}"); A(f"v_mov_b32 v{T+18}, v{T+1}")
    A("s_and_saveexec_b64 s[50:51], vcc")
    lstore(f"buffer_store_dwordx4 v[{T+16}:{T+19}], v{vYA}, {sWS}, 0 offen")
    A("s_mov_b64 exec, -1")
    tst(21)
    g.lab("L_ysent")
    A(f"s_cmp_lt_u32 {sROLE}, 2"); A("s_cbranch_scc1 L_end")
    def red16(a_, b_, t_):
        g.nop(2)
        A(f"v_permlane32_swap_b32 v{a_}, v{b_}"); g.nop(1)
        A(f"v_add_f32 v{a_}, v{a_}, v{b_}")
        A(f"v_mov_b32 v{t_}, v{a_}"); g.nop(2)
        A(f"v_permlane16_swap_b32 v{a_}, v{t_}"); g.nop(1)
        A(f"v_add_f32 v{a_}, v{a_}, v{t_}"); g.nop(2)
        dpp(g, "v_add_f32", a_, a_, a_, "row_ror:8"); g.nop(1)
    A(f"s_cmp_eq_u32 {sWAVE}, 5"); A("s_cbranch_scc1 L_a_ln")
    A(f"s_cmp_eq_u32 {sWAVE}, 6"); A("s_cbranch_scc1 L_yred")
    ffn_prep()
    A("s_branch L_a_wait")
    g.lab("L_yred")
    g.c("wave 6: reduce the 32 y partials of 16 columns -> h, publish")
    YG = T
    A(f"v_lshlrev_b32 v7, 4, v{vLANE}")
    A(f"s_mul_i32 s37, {sRI}, {YSTR}"); A(f"s_add_u32 s37, s37, {YP:#x}"); A("v_add_u32 v7, s37, v7")
    A(f"v_and_b32 v8, 7, v{vLANE}"); A("v_lshlrev_b32 v8, 1, v8"); A(f"v_lshrrev_b32 v11, 5, v{vLANE}"); A("v_add_u32 v8, v8, v11"); A("v_lshlrev_b32 v8, 2, v8")
    A(f"v_lshlrev_b32 v11, 3, v{vLANE}")
    A(f"s_lshl_b32 s46, {sRI}, 6"); A(f"s_add_u32 s46, s46, {HG:#x}")
    def mky(k):
        return lambda: A(f"buffer_load_dwordx4 v[{YG+4*k}:{YG+4*k+3}], v7, {sWS}, 0 offen{(' offset:%d' % (1024*k)) if k else ''} sc1")
    if dbg == 5: A("s_mov_b32 s92, 31"); tst(31)
    selpoll(g, [(mky(k), [YG+4*k+1, YG+4*k+3]) for k in range(4)], 9, 10, dbgbase=32 if dbg == 5 else None)
    tst(22)
    A(f"v_add_f32 v{YG}, v{YG}, v{YG+4}"); A(f"v_add_f32 v{YG+2}, v{YG+2}, v{YG+6}")
    A(f"v_add_f32 v{YG+8}, v{YG+8}, v{YG+12}"); A(f"v_add_f32 v{YG+10}, v{YG+10}, v{YG+14}")
    A(f"v_add_f32 v{YG}, v{YG}, v{YG+8}"); A(f"v_add_f32 v{YG+2}, v{YG+2}, v{YG+10}")
    red16(YG, YG+2, 9)
    bf16r(g, YG, YG)
    A(f"v_add_f32 v{YG}, v{YG}, v{vXH}")
    bf16r(g, YG, YG)
    A(f"v_mov_b32 v9, v{YG}"); A(f"v_mov_b32 v10, v{YG}")
    A(f"v_mov_b32 v{T+5}, {sTAG}"); A(f"v_mov_b32 v{T+7}, {sTAG}")
    A("v_permlane32_swap_b32 v9, v10"); g.nop(1)
    A(f"v_lshrrev_b32 v{T+4}, 16, v9"); A(f"v_or_b32 v{T+4}, v{T+4}, v10"); g.nop(2)
    A(f"v_mov_b32_dpp v{T+6}, v{T+4} quad_perm:[1,0,3,2] row_mask:0xf bank_mask:0xf")
    A("s_mov_b64 exec, 0x55")
    lstore(f"buffer_store_dwordx4 v[{T+4}:{T+7}], v11, {sWS}, s46 offen")
    A("s_mov_b32 exec_lo, 0xff"); A("s_mov_b32 exec_hi, 0xff")
    A(f"ds_write_b32 v8, v{YG} offset:{L_HV}")
    A("s_mov_b64 exec, -1")
    tst(24)
    A("s_branch L_a_wait")
    g.lab("L_a_ln")
    g.c("wave 5: gather h, layernorm, write xln pairs")
    A(f"v_lshlrev_b32 v7, 4, v{vLANE}"); A(f"v_add_u32 v7, {HG:#x}, v7")
    for i in range(8): A(f"v_mov_b32 v{T+i}, {sTAG}")
    A("s_mov_b32 exec_lo, -1"); A("s_mov_b32 exec_hi, 0x00ffffff")
    def hg_loads():
        A(f"buffer_load_dwordx4 v[{T}:{T+3}], v7, {sWS}, 0 offen sc1")
        A(f"buffer_load_dwordx4 v[{T+4}:{T+7}], v7, {sWS}, 0 offen offset:896 sc1")
    poll(g, hg_loads, [T+1, T+3, T+5, T+7], 9, 10)
    A("s_mov_b64 exec, -1")
    tst(25)
    A("s_mov_b32 s44, -1"); A("s_mov_b32 s45, 0x00ffffff")
    PK = [T, T+2, T+4, T+6]
    layernorm_pk(g, PK, T+8, [7, 8, 9, 10, 11, 3], "s[44:45]")
    A("s_mov_b64 exec, s[44:45]")
    for p in range(4):
        A(f"ds_write_b16 v{XA[2*p]}, v{PK[p]} offset:{L_XP}")
        A(f"ds_write_b16_d16_hi v{XA[2*p+1]}, v{PK[p]} offset:{L_XP}")
    A("s_mov_b64 exec, -1")
    g.lab("L_a_wait")
    A(f"v_lshrrev_b32 v7, 3, v{vLANE}"); A("v_lshlrev_b32 v7, 2, v7"); A(f"s_lshl_b32 s37, {sWAVE}, 7"); A("v_add_u32 v7, s37, v7")
    for i in range(8): A(f"v_mov_b32 v{AC+i}, 0")
    A("s_waitcnt lgkmcnt(0)")
    A("s_barrier")
    tst(26)
    for jj in range(4): A(f"ds_read_b32 v{XPR+jj}, v7 offset:{L_XP + 32*jj}")
    A(f"v_lshlrev_b32 v10, 2, v{vLANE}"); A(f"s_lshl_b32 s37, {sWAVE}, 8"); A("v_add_u32 v11, s37, v10")
    A("s_waitcnt lgkmcnt(0)")
    for jj in range(4):
        for i in range(4):
            A(f"v_dot2c_f32_bf16 v{AC+2*i}, v{W1R+8*jj+i}, v{XPR+jj}")
            A(f"v_dot2c_f32_bf16 v{AC+2*i+1}, v{W1R+8*jj+4+i}, v{XPR+jj}")
    r = reduce_scatter(g, [AC+i for i in range(8)], [32, 16, 8])[0]
    A(f"ds_write_b32 v11, v{r} offset:{L_AP}")
    A(f"v_and_b32 v8, 7, v{vLANE}"); A("v_lshlrev_b32 v8, 4, v8"); A(f"v_lshrrev_b32 v9, 3, v{vLANE}"); A("v_lshlrev_b32 v9, 1, v9"); A("v_add_u32 v8, v8, v9")
    A(f"s_lshr_b32 s37, {sWAVE}, 2"); A("s_lshl_b32 s37, s37, 6"); A("v_mov_b32 v9, s37")
    A("s_waitcnt lgkmcnt(0)")
    A("s_barrier")
    tst(27)
    for w in range(8): A(f"ds_read_b32 v{AC+w}, v10 offset:{L_AP + 256*w}")
    A(f"v_mov_b32 v{T+1}, {sTAG}"); A(f"v_mov_b32 v{T+3}, {sTAG}")
    A(f"v_cmp_gt_u32 vcc, 224, v{vC}")
    A("s_waitcnt lgkmcnt(0)")
    for st in (4, 2, 1):
        for i in range(st): A(f"v_add_f32 v{AC+i}, v{AC+i}, v{AC+i+st}")
    bf16r(g, AC, AC)
    A(f"v_add_f32 v{AC}, v{AC}, v{vB1}")
    bf16r(g, AC, AC)
    A(f"v_max_f32 v{AC}, 0, v{AC}")
    A(f"v_mul_f32 v{AC}, v{AC}, v{AC}")
    A(f"v_cvt_pk_bf16_f32 v{AC}, v{AC}, v{AC}")
    A(f"ds_write_b16 v8, v{AC} offset:{L_AL}")
    A("s_waitcnt lgkmcnt(0)")
    for i in range(4): A(f"ds_read_b128 v[{APR+4*i}:{APR+4*i+3}], v9 offset:{L_AL + 16*i}")
    for i in range(8): A(f"v_mov_b32 v{AC+i}, 0")
    A("s_waitcnt lgkmcnt(0)")
    for i in range(16):
        A(f"v_dot2c_f32_bf16 v{AC+(i&3)}, v{W2R+2*i}, v{APR+i}")
        A(f"v_dot2c_f32_bf16 v{AC+4+(i&3)}, v{W2R+2*i+1}, v{APR+i}")
    A("s_and_saveexec_b64 s[50:51], vcc"); g.nop(2)
    A(f"v_add_f32 v{AC}, v{AC}, v{AC+1}"); A(f"v_add_f32 v{AC+2}, v{AC+2}, v{AC+3}"); A(f"v_add_f32 v{AC+4}, v{AC+4}, v{AC+5}"); A(f"v_add_f32 v{AC+6}, v{AC+6}, v{AC+7}")
    A(f"v_add_f32 v{T}, v{AC}, v{AC+2}"); A(f"v_add_f32 v{T+2}, v{AC+4}, v{AC+6}")
    A("s_cbranch_execz L_a_nost")
    lstore(f"buffer_store_dwordx4 v[{T}:{T+3}], v{vFA}, {sWS}, 0 offen")
    g.lab("L_a_nost")
    A("s_mov_b64 exec, -1")
    tst(28)
    A(f"s_cmp_lg_u32 {sWAVE}, 7"); A("s_cbranch_scc1 L_end")
    g.c("wave 7: final reduce of the 56 partials for 16 columns")
    FG = R0
    A(f"v_lshlrev_b32 v7, 4, v{vLANE}")
    A(f"s_mul_i32 s37, {sRI}, {FSTR}"); A(f"s_add_u32 s37, s37, {FP:#x}"); A("v_add_u32 v7, s37, v7")
    A("s_movk_i32 s43, 0x1000")
    A(f"v_and_b32 v8, 7, v{vLANE}"); A("v_lshlrev_b32 v8, 1, v8"); A(f"v_lshrrev_b32 v11, 5, v{vLANE}"); A("v_add_u32 v8, v8, v11")
    A(f"v_lshlrev_b32 v11, 2, v8"); A(f"ds_read_b32 v{T+8}, v11 offset:{L_HV}")
    A(f"v_lshlrev_b32 v{T+9}, 1, v8")
    srd(g, 16, 84, 896)
    def mkf(k):
        so = "0" if k < 4 else "s43"
        off = f" offset:{1024*(k&3)}" if (k & 3) else ""
        return lambda: A(f"buffer_load_dwordx4 v[{FG+4*k}:{FG+4*k+3}], v7, {sWS}, {so} offen{off} sc1")
    if dbg == 5: A("s_mov_b32 s92, 39"); tst(30)
    selpoll(g, [(mkf(k), [FG+4*k+1, FG+4*k+3]) for k in range(7)], 9, 10, dbgbase=40 if dbg == 5 else None)
    tst(29)
    for e in (0, 2):
        A(f"v_add_f32 v{FG+e}, v{FG+e}, v{FG+4+e}"); A(f"v_add_f32 v{FG+8+e}, v{FG+8+e}, v{FG+12+e}"); A(f"v_add_f32 v{FG+16+e}, v{FG+16+e}, v{FG+20+e}")
    for e in (0, 2):
        A(f"v_add_f32 v{FG+e}, v{FG+e}, v{FG+8+e}"); A(f"v_add_f32 v{FG+16+e}, v{FG+16+e}, v{FG+24+e}")
    for e in (0, 2): A(f"v_add_f32 v{FG+e}, v{FG+e}, v{FG+16+e}")
    red16(FG, FG+2, 9)
    bf16r(g, FG, FG)
    A(f"v_add_f32 v{FG}, v{FG}, v{vB2}")
    bf16r(g, FG, FG)
    A("s_waitcnt lgkmcnt(0)")
    A(f"v_add_f32 v{FG}, v{FG}, v{T+8}")
    A(f"v_cvt_pk_bf16_f32 v{FG}, v{FG}, v{FG}")
    A(f"s_lshl_b32 s37, {sRI}, 5")
    A("s_mov_b32 exec_lo, 0xff"); A("s_mov_b32 exec_hi, 0xff")
    A(f"buffer_store_short v{FG}, v{T+9}, {sT1}, s37 offen")
    A(f"s_cmp_lg_u32 {sRI}, 0"); A("s_cbranch_scc1 L_end")
    A(f"s_add_u32 s38, {sEP}, 1"); A("v_mov_b32 v8, s38"); A("v_mov_b32 v9, 0")
    A("s_mov_b64 exec, 1")
    A(f"buffer_store_dword v8, v9, {sWS}, 0 offen sc1")
    g.lab("L_end")
    if dbg == 4:
        A("s_mov_b64 exec, -1")
        stamp(9)
    if dbg and dbg != 4:
        A("s_mov_b64 exec, -1")
        stamp(9)
        if dbg not in (3, 5): A("s_mov_b64 exec, 0xffff")
        A(f"s_lshl_b32 s37, s2, 3"); A(f"s_add_u32 s37, s37, {sWAVE}"); A(f"s_lshl_b32 s37, s37, {8 if dbg in (3, 5) else 6}"); A(f"s_add_u32 s37, s37, {DBG:#x}")
        A(f"v_lshlrev_b32 v7, 2, v{vLANE}")
        A(f"buffer_store_dword v{vSTAMP}, v7, {sWS}, s37 offen")
    g.lab("L_exit")
    A("s_endpgm")
    if GNT:
        for i, l in enumerate(g.L):
            if l.rstrip().endswith("sc1"):
                if "buffer_store" in l and (GNT & 1): g.L[i] = l + " nt"
                if "buffer_load" in l and (GNT & 2): g.L[i] = l + " nt"
    hdr = open("cdna_kernels/" + NAME + ".s.ref").read().split("\n")
    head = []
    for l in hdr:
        if l.startswith("; @launch"): head.append(f"; @launch grid=(256,1,1) block=(512,1,1) lds={LDS_BYTES}")
        elif l.startswith(";"): head.append(l)
        else: break
    return "\n".join(head) + f"""
.amdgcn_target "amdgcn-amd-amdhsa--gfx950"
.text
.globl {NAME}_kernel
.p2align 8
.type {NAME}_kernel,@function
{NAME}_kernel:
""" + "\n".join(g.L) + f"""
.section .rodata,"a"
.p2align 6
.amdhsa_kernel {NAME}_kernel
  .amdhsa_next_free_vgpr 256
  .amdhsa_next_free_sgpr 102
  .amdhsa_accum_offset 256
  .amdhsa_group_segment_fixed_size 0
  .amdhsa_kernarg_size 104
  .amdhsa_user_sgpr_count 2
  .amdhsa_user_sgpr_kernarg_segment_ptr 1
  .amdhsa_system_sgpr_workgroup_id_x 1
  .amdhsa_float_denorm_mode_32 3
.end_amdhsa_kernel
"""
if __name__ == "__main__":
    out = sys.argv[1] if len(sys.argv) > 1 else "k/v3.s"
    kw = {}
    for a in sys.argv[2:]:
        k, v = a.split("="); kw[k] = int(v)
    open(out, "w").write(generate(**kw))
    open(out.replace(".s", "_dbg.s"), "w").write(generate(dbg=1, **kw))
    open(out.replace(".s", "_lt.s"), "w").write(generate(dbg=2, **kw))
    open(out.replace(".s", "_st.s"), "w").write(generate(dbg=3, **kw))
    open(out.replace(".s", "_hb.s"), "w").write(generate(dbg=4, **kw))
    open(out.replace(".s", "_tl.s"), "w").write(generate(dbg=5, **kw))
    print("wrote", out)
```

```python
import struct, sys, math
NAME = "sequential_preLN__mha_block_cached__dense_activation_squared_relu__decode"
def f2u(x): return struct.unpack("<I", struct.pack("<f", x))[0]
CSC = f2u(0.0625 * math.log2(math.e)); EPS = f2u(1e-5); INVN = f2u(1.0 / 448.0); NEG_BIG = f2u(-3.0e38)

EPOCH = 0x0
ST = 0x200000
OP = 0x10000
HG = 0x98000
FP = 0x9A000
XG = 0x9800
QP = 0xD0000
YSTR = 4096 + 128
FSTR = 7168 + 128
YP = 0x100000
CNT = 0x1E8000
DBG = 0x300000
L_Q = 0x0; L_TAG = 0x200; L_ST = 0x400; L_OB = 0x480; L_CL = 0x4C0; L_HV = 0x600; L_AL = 0x500; L_O = 0x800; L_HP = 0x2800
L_XP = 0x2A00
L_X = 0x3000
L_AP = 0x3800
L_YW = 0x4000; L_W1 = 0x8000; L_W2 = 0x16000
LDS_BYTES = 0x26000

class Gen:
    def __init__(self): self.L = []; self.uid = 0
    def A(self, s): self.L.append("    " + s)
    def lab(self, s): self.L.append(s + ":")
    def c(self, s): self.L.append("    ; " + s)
    def new(self, p): self.uid += 1; return f"L_{p}_{self.uid}"
    def nop(self, n):
        if n > 0: self.A(f"s_nop {n-1}")

sKS = "s[4:7]"; sVS = "s[8:11]"; sWS = "s[12:15]"; sT1 = "s[16:19]"; sT2 = "s[20:23]"
sWAVE = "s24"; sH = "s25"; sS = "s26"; sTAG = "s27"; sEP = "s28"; sBASE = "s29"; sBUD = "s30"
sLAM = "s31"; sZ = "s32"; sC = "s33"; sSTEP = "s34"; sROLE = "s35"; sRI = "s36"
sGO = "s70"; sI0 = "s71"; sLIM = "s74"; sDC = "s75"; sBASE0 = "s59"; sMK = {2: ("s60", "s61"), 3: ("s62", "s63")}; sMC = {2: ("s76", "s77"), 3: ("s78", "s79")}
sNXT = "s52"; sV2 = "s53"; sV3 = "s54"; sLAM0 = "s55"; sROT = "s56"
vLANE = 1; vOFF = 2; vM = 4; vMC = 5; vL = 6
Q = 16; ACC = 32; RING = 96; TMP = 224
vXH = 64; vB2 = 65; vB1 = 66; vSTAMP = 251
sLOC = "s57"
R0 = RING
D = 4

def srd(g, dst, lo, nbytes):
    g.A(f"s_mov_b32 s{dst}, s{lo}"); g.A(f"s_mov_b32 s{dst+1}, s{lo+1}")
    g.A(f"s_mov_b32 s{dst+2}, {nbytes:#x}"); g.A(f"s_mov_b32 s{dst+3}, 0x20000")
def bf16r(g, dst, src, tmp=None):
    tmp = dst if tmp is None else tmp
    g.A(f"v_cvt_pk_bf16_f32 v{tmp}, v{src}, v{src}")
    g.A(f"v_and_b32 v{dst}, 0xffff0000, v{tmp}")
def dpp(g, op, dst, src0, src1, ctrl, rm=0xf, bm=0xf):
    g.A(f"{op}_dpp v{dst}, v{src0}, v{src1} {ctrl} row_mask:{rm:#x} bank_mask:{bm:#x}")
def wave_sum2(g, a, b, sa, sb):
    g.nop(2)
    for ctrl in ("row_ror:8", "row_ror:4", "row_ror:2", "row_ror:1"):
        dpp(g, "v_add_f32", a, a, a, ctrl); dpp(g, "v_add_f32", b, b, b, ctrl); g.nop(1)
    dpp(g, "v_add_f32", a, a, a, "row_bcast:15", rm=0xa); dpp(g, "v_add_f32", b, b, b, "row_bcast:15", rm=0xa); g.nop(1)
    dpp(g, "v_add_f32", a, a, a, "row_bcast:31", rm=0xc); dpp(g, "v_add_f32", b, b, b, "row_bcast:31", rm=0xc); g.nop(1)
    g.A(f"v_readlane_b32 {sa}, v{a}, 63"); g.A(f"v_readlane_b32 {sb}, v{b}, 63")
    g.nop(2)
def layernorm(g, vals, t, masked=None):
    c, s1, s2, y, mean, rs = t[:6]
    g.A(f"v_readfirstlane_b32 s37, v{vals[0]}")
    g.A(f"v_mov_b32 v{s1}, 0"); g.A(f"v_mov_b32 v{s2}, 0")
    if masked: g.A(f"s_mov_b64 exec, {masked}")
    for v in vals:
        g.A(f"v_subrev_f32 v{y}, s37, v{v}")
        g.A(f"v_add_f32 v{s1}, v{s1}, v{y}")
        g.A(f"v_fmac_f32 v{s2}, v{y}, v{y}")
    if masked: g.A("s_mov_b64 exec, -1")
    wave_sum2(g, s1, s2, "s38", "s39")
    g.A(f"s_mov_b32 s40, {INVN:#x}")
    g.A(f"v_mul_f32 v{y}, s38, v{rs}") if False else None
    g.A(f"v_mov_b32 v{y}, s38"); g.A(f"v_mov_b32 v{s2}, s39")
    g.A(f"v_mul_f32 v{y}, s40, v{y}"); g.A(f"v_mul_f32 v{s2}, s40, v{s2}")
    g.A(f"v_add_f32 v{mean}, s37, v{y}")
    g.A(f"v_fma_f32 v{s2}, -v{y}, v{y}, v{s2}")
    g.A(f"v_max_f32 v{s2}, 0, v{s2}")
    bf16r(g, mean, mean)
    bf16r(g, s2, s2)
    g.A(f"v_add_f32 v{s2}, {EPS:#x}, v{s2}")
    bf16r(g, s2, s2)
    g.A(f"v_sqrt_f32 v{s2}, v{s2}")
    for v in vals: g.A(f"v_sub_f32 v{v}, v{v}, v{mean}")
    bf16r(g, s2, s2)
    g.A(f"v_rcp_f32 v{rs}, v{s2}")
    for v in vals: bf16r(g, v, v)
    for v in vals:
        g.A(f"v_mul_f32 v{y}, v{v}, v{rs}")
        g.A(f"v_fma_f32 v{v}, -v{y}, v{s2}, v{v}")
        g.A(f"v_fma_f32 v{v}, v{v}, v{rs}, v{y}")
    for v in vals: bf16r(g, v, v)
def layernorm_pk(g, pk, w, t, masked):
    c, s1, s2, y, mean, rs = t[:6]
    for i in range(4):
        g.A(f"v_lshlrev_b32 v{w+2*i}, 16, v{pk[i]}"); g.A(f"v_and_b32 v{w+2*i+1}, 0xffff0000, v{pk[i]}")
    g.A(f"v_readfirstlane_b32 s37, v{w}")
    g.A(f"v_mov_b32 v{s1}, 0"); g.A(f"v_mov_b32 v{s2}, 0")
    g.A(f"s_mov_b64 exec, {masked}")
    for i in range(8):
        g.A(f"v_subrev_f32 v{y}, s37, v{w+i}")
        g.A(f"v_add_f32 v{s1}, v{s1}, v{y}")
        g.A(f"v_fmac_f32 v{s2}, v{y}, v{y}")
    g.A("s_mov_b64 exec, -1")
    wave_sum2(g, s1, s2, "s38", "s39")
    g.A(f"s_mov_b32 s40, {INVN:#x}")
    g.A(f"v_mov_b32 v{y}, s38"); g.A(f"v_mov_b32 v{s2}, s39")
    g.A(f"v_mul_f32 v{y}, s40, v{y}"); g.A(f"v_mul_f32 v{s2}, s40, v{s2}")
    g.A(f"v_add_f32 v{mean}, s37, v{y}")
    g.A(f"v_fma_f32 v{s2}, -v{y}, v{y}, v{s2}")
    g.A(f"v_cvt_pk_bf16_f32 v{mean}, v{mean}, v{mean}")
    g.A(f"v_max_f32 v{s2}, 0, v{s2}")
    g.A(f"v_and_b32 v{mean}, 0xffff0000, v{mean}")
    bf16r(g, s2, s2)
    g.A(f"v_add_f32 v{s2}, {EPS:#x}, v{s2}")
    for i in range(0, 4): g.A(f"v_sub_f32 v{w+i}, v{w+i}, v{mean}")
    bf16r(g, s2, s2)
    g.A(f"v_sqrt_f32 v{s2}, v{s2}")
    for i in range(4, 8): g.A(f"v_sub_f32 v{w+i}, v{w+i}, v{mean}")
    bf16r(g, s2, s2)
    g.A(f"v_rcp_f32 v{rs}, v{s2}")
    for i in range(4): g.A(f"v_cvt_pk_bf16_f32 v{pk[i]}, v{w+2*i}, v{w+2*i+1}")
    for i in range(4):
        g.A(f"v_lshlrev_b32 v{w+2*i}, 16, v{pk[i]}"); g.A(f"v_and_b32 v{w+2*i+1}, 0xffff0000, v{pk[i]}")
    for i in range(8): g.A(f"v_mul_f32 v{w+8+i}, v{w+i}, v{rs}")
    for i in range(8): g.A(f"v_fma_f32 v{w+i}, -v{w+8+i}, v{s2}, v{w+i}")
    for i in range(8): g.A(f"v_fma_f32 v{w+i}, v{w+i}, v{rs}, v{w+8+i}")
    for i in range(4): g.A(f"v_cvt_pk_bf16_f32 v{pk[i]}, v{w+2*i}, v{w+2*i+1}")
def reduce_scatter(g, regs, stages, pre=3):
    regs = list(regs)
    g.nop(pre)
    for st in stages:
        h = len(regs) // 2
        lo, hi = regs[:h], regs[h:]
        if st in (32, 16):
            for a, b in zip(lo, hi): g.A(f"v_permlane{st}_swap_b32 v{a}, v{b}")
            g.nop(1 if h > 1 else 2)
            if h >= 2 and lo[0] % 2 == 0 and hi[0] % 2 == 0 and lo == list(range(lo[0], lo[0] + h)) and hi == list(range(hi[0], hi[0] + h)):
                for j in range(0, h, 2): g.A(f"v_pk_add_f32 v[{lo[j]}:{lo[j]+1}], v[{lo[j]}:{lo[j]+1}], v[{hi[j]}:{hi[j]+1}]")
                g.nop(2)
            else:
                for a, b in zip(lo, hi): g.A(f"v_add_f32 v{a}, v{a}, v{b}")
                g.nop(max(0, 2 - (h - 1 - h // 2)))
        elif st == 8:
            for a, b in zip(lo, hi): dpp(g, "v_add_f32", a, a, a, "row_ror:8", bm=0x3)
            for a, b in zip(lo, hi): dpp(g, "v_add_f32", a, b, b, "row_ror:8", bm=0xc)
            g.nop(2)
        elif st == 4:
            for a, b in zip(lo, hi): dpp(g, "v_add_f32", a, a, a, "row_shl:4", bm=0x5)
            for a, b in zip(lo, hi): dpp(g, "v_add_f32", a, b, b, "row_shr:4", bm=0xa)
            g.nop(2)
        regs = lo
    return regs
def allreduce_low(g, r, bits, op="v_add_f32"):
    for b in bits:
        ctrl = {0: "quad_perm:[1,0,3,2]", 1: "quad_perm:[2,3,0,1]", 2: "row_half_mirror"}[b]
        dpp(g, op, r, r, r, ctrl); g.nop(2)
def allreduce_high(g, regs, tmps, op="v_add_f32"):
    if not isinstance(regs, list): regs = [regs]; tmps = [tmps]
    n = len(regs)
    for r in regs: dpp(g, op, r, r, r, "row_ror:8")
    for st in (16, 32):
        for r, t in zip(regs, tmps): g.A(f"v_mov_b32 v{t}, v{r}")
        g.nop(max(0, 3 - n) if n > 1 else 2)
        for r, t in zip(regs, tmps): g.A(f"v_permlane{st}_swap_b32 v{r}, v{t}")
        g.nop(1)
        for r, t in zip(regs, tmps): g.A(f"{op} v{r}, v{r}, v{t}")
    g.nop(2)
def poll(g, emit_loads, tagregs, t0, t1, sleep=0):
    lp = g.new("poll"); ok = g.new("ok")
    g.lab(lp)
    emit_loads()
    g.A("s_waitcnt vmcnt(0)")
    g.A(f"v_xor_b32 v{t0}, {sTAG}, v{tagregs[0]}")
    for t in tagregs[1:]:
        g.A(f"v_xor_b32 v{t1}, {sTAG}, v{t}")
        g.A(f"v_or_b32 v{t0}, v{t0}, v{t1}")
    g.A(f"v_cmp_ne_u32 vcc, 0, v{t0}")
    g.A(f"s_cbranch_vccz {ok}")
    if sleep: g.A(f"s_sleep {sleep}")
    g.A(f"s_sub_u32 {sBUD}, {sBUD}, 1")
    g.A(f"s_cbranch_scc0 {lp}")
    g.A(f"s_mov_b32 {sBUD}, 0")
    g.lab(ok)
def selpoll(g, groups, t0, t1, sflags="s49", first_issued=False, sleep=0, dbgbase=None):
    n = len(groups)
    lp = g.new("sp"); ok = g.new("spok"); chk = g.new("spchk")
    g.A(f"s_mov_b32 {sflags}, {(1 << n) - 1}")
    if first_issued: g.A(f"s_branch {chk}")
    g.lab(lp)
    for i, (ld, tags) in enumerate(groups):
        sk = g.new("sk")
        g.A(f"s_bitcmp1_b32 {sflags}, {i}"); g.A(f"s_cbranch_scc0 {sk}")
        ld()
        g.lab(sk)
    g.lab(chk)
    g.A("s_waitcnt vmcnt(0)")
    if dbgbase is not None:
        g.A("s_memrealtime s[90:91]"); g.A("s_waitcnt lgkmcnt(0)")
        g.A("s_add_u32 s92, s92, 1"); g.A(f"s_min_u32 m0, s92, {dbgbase+7}"); g.A("s_nop 0")
        g.A(f"v_writelane_b32 v{vSTAMP}, s90, m0")
    for i, (ld, tags) in enumerate(groups):
        sk = g.new("sc")
        g.A(f"s_bitcmp1_b32 {sflags}, {i}"); g.A(f"s_cbranch_scc0 {sk}")
        g.A(f"v_xor_b32 v{t0}, {sTAG}, v{tags[0]}")
        for t in tags[1:]:
            g.A(f"v_xor_b32 v{t1}, {sTAG}, v{t}"); g.A(f"v_or_b32 v{t0}, v{t0}, v{t1}")
        g.A(f"v_cmp_ne_u32 vcc, 0, v{t0}")
        g.A(f"s_cbranch_vccnz {sk}")
        g.A(f"s_bitset0_b32 {sflags}, {i}")
        g.lab(sk)
    g.A(f"s_cmp_eq_u32 {sflags}, 0"); g.A(f"s_cbranch_scc1 {ok}")
    if sleep: g.A(f"s_sleep {sleep}")
    g.A(f"s_sub_u32 {sBUD}, {sBUD}, 1")
    g.A(f"s_cbranch_scc0 {lp}")
    g.A(f"s_mov_b32 {sBUD}, 0")
    g.lab(ok)
def pipepoll(g, n, emit_load, final, setA, setB, tagoffs, t0, scratch, stagger, first_in_final=False, sflags="s49"):
    done = g.new("ppd"); lp = g.new("ppl")
    def check(base, copy):
        for i in range(n):
            sk = g.new("pc")
            g.A(f"s_bitcmp1_b32 {sflags}, {i}"); g.A(f"s_cbranch_scc0 {sk}")
            r = base + 4*i
            if len(tagoffs) == 1:
                g.A(f"v_cmp_ne_u32 vcc, {sTAG}, v{r+tagoffs[0]}")
            else:
                g.A(f"v_xor_b32 v{t0}, {sTAG}, v{r+tagoffs[0]}"); g.A(f"v_xor_b32 v{t0+1}, {sTAG}, v{r+tagoffs[1]}")
                g.A(f"v_or_b32 v{t0}, v{t0}, v{t0+1}"); g.A(f"v_cmp_ne_u32 vcc, 0, v{t0}")
            g.A(f"s_cbranch_vccnz {sk}")
            g.A(f"s_bitset0_b32 {sflags}, {i}")
            if copy:
                for e in range(4):
                    if e not in tagoffs: g.A(f"v_mov_b32 v{final+4*i+e}, v{r+e}")
            g.lab(sk)
    def issue(base):
        for i in range(n):
            dm = g.new("pi"); nx = g.new("pn")
            g.A(f"s_bitcmp1_b32 {sflags}, {i}"); g.A(f"s_cbranch_scc0 {dm}")
            emit_load(i, base + 4*i); g.A(f"s_branch {nx}")
            g.lab(dm)
            g.A("s_mov_b64 exec, 1"); g.A(f"buffer_load_dword v{scratch}, v{scratch+1}, {sWS}, 0 offen"); g.A("s_mov_b64 exec, -1")
            g.lab(nx)
    g.A(f"s_mov_b32 {sflags}, {(1 << n) - 1}")
    g.A(f"v_mov_b32 v{scratch+1}, 0x7ff00000")
    if first_in_final:
        g.A("s_waitcnt vmcnt(0)")
        check(final, False)
        g.A(f"s_cmp_eq_u32 {sflags}, 0"); g.A(f"s_cbranch_scc1 {done}")
    issue(setA)
    if stagger: g.A(f"s_sleep {stagger}")
    g.lab(lp)
    issue(setB)
    g.A(f"s_waitcnt vmcnt({n})")
    check(setA, True)
    g.A(f"s_cmp_eq_u32 {sflags}, 0"); g.A(f"s_cbranch_scc1 {done}")
    issue(setA)
    g.A(f"s_waitcnt vmcnt({n})")
    check(setB, True)
    g.A(f"s_cmp_eq_u32 {sflags}, 0"); g.A(f"s_cbranch_scc1 {done}")
    g.A(f"s_sub_u32 {sBUD}, {sBUD}, 1")
    g.A(f"s_cbranch_scc0 {lp}")
    g.A(f"s_mov_b32 {sBUD}, 0")
    g.lab(done)
def perm_pair(g, a, b, tmp):
    g.A(f"v_perm_b32 v{tmp}, v{b}, v{a}, s41")
    g.A(f"v_perm_b32 v{b}, v{b}, v{a}, s42")
    g.A(f"v_mov_b32 v{a}, v{tmp}")

def generate(dbg=False, B0=1, TLBW=0, X5=1, ADF=0, HALF=0, RWX=16, ROT=48, BAR=1, H1SLEEP=0, PACE=4, NS=25, COMP=14, QPRE=3, PRE=4, QD=0, H1N=14, CPF=16, CPFN=3, SD=0, NOCOMP=0, FAKE=0, LOOK=1, CSTR=4352, AFL=2, GNT=0, TOUCH=0, NOLOC=0, TPF=0, PT=3, PTD=0, PP=3, PPS1=5, PPS2=7):
    g = Gen(); A = g.A
    HF = 512 - HALF
    NIT = HF + 2*HALF
    def stepstamp():
        if dbg == 3:
            A("s_memrealtime s[90:91]"); A("s_waitcnt lgkmcnt(0)")
            A("s_add_u32 s92, s92, 1"); A("s_min_u32 m0, s92, 63"); A("s_nop 0")
            A(f"v_writelane_b32 v{vSTAMP}, s90, m0")
    def hstamp(slot, cond_id, wave=0):
        if dbg == 4:
            l = g.new("hs")
            A(f"s_cmp_lg_u32 s2, {cond_id}"); A(f"s_cbranch_scc1 {l}")
            A(f"s_cmp_lg_u32 {sWAVE}, {wave}"); A(f"s_cbranch_scc1 {l}")
            A("s_memrealtime s[90:91]"); A("s_waitcnt lgkmcnt(0)")
            A("s_mov_b32 s96, s86"); A("s_mov_b32 s97, s87"); A("s_mov_b32 s98, 256"); A("s_mov_b32 s99, 0x20000")
            A(f"v_mov_b32 v252, s90"); A(f"v_mov_b32 v253, {4*slot}")
            A("s_mov_b64 s[92:93], exec"); A("s_mov_b64 exec, 1")
            A("buffer_store_dword v252, v253, s[96:99], 0 offen")
            A("s_mov_b64 exec, s[92:93]")
            g.lab(l)
    def tst(i):
        if dbg == 5:
            A("s_memrealtime s[90:91]"); A("s_waitcnt lgkmcnt(0)")
            A(f"v_writelane_b32 v{vSTAMP}, s90, {i}")
    def code_pf(wave, lab_from, lab_to, n, vd):
        l = g.new("cpf"); lp = g.new("cpc")
        A(f"s_cmp_lg_u32 {sWAVE}, {wave}"); A(f"s_cbranch_scc1 {l}")
        A("s_getpc_b64 s[96:97]")
        g.lab(lp)
        A(f"s_add_u32 s96, s96, {lab_from}-{lp}"); A("s_addc_u32 s97, s97, 0")
        A(f"v_lshlrev_b32 v3, 7, v{vLANE}")
        A(f"s_mov_b32 s98, {lab_to}-{lab_from}")
        le = g.new("cpe")
        for i in range(n):
            A("v_cmp_gt_u32 vcc, s98, v3"); A("s_and_b64 exec, exec, vcc")
            A(f"s_cbranch_execz {le}")
            A(f"global_load_dword v{vd}, v3, s[96:97]")
            A("v_add_u32 v3, 0x2000, v3")
        g.lab(le)
        A("s_mov_b64 exec, -1")
        g.lab(l)
    def stamp(i):
        if dbg == 5:
            if i in (3, 9): tst(i)
            return
        if dbg == 4:
            if i == 2:
                hstamp(2, 0); hstamp(3, 255)
            if i == 3:
                hstamp(4, 0); hstamp(5, 77); hstamp(6, 130); hstamp(7, 255)
            if i == 9:
                hstamp(8, 3); hstamp(9, 0); hstamp(10, 19)
            return
        if dbg == 3 and i in (3, 9):
            A("s_memrealtime s[90:91]"); A("s_waitcnt lgkmcnt(0)")
            A(f"v_writelane_b32 v{vSTAMP}, s90, {i}")
        if dbg == 1 or (dbg == 2 and i in (2, 3, 9, 4, 5)) :
            A("s_memrealtime s[90:91]"); A("s_waitcnt lgkmcnt(0)")
            A(f"v_writelane_b32 v{vSTAMP}, s90, {i}")
    A("s_cmp_ge_u32 s2, 256")
    A("s_cbranch_scc1 L_exit")
    if dbg: A("s_memrealtime s[94:95]")
    A("s_load_dwordx16 s[64:79], s[0:1], 0")
    A("s_load_dwordx8 s[80:87], s[0:1], 64")
    A("s_load_dwordx2 s[88:89], s[0:1], 96")
    A(f"v_and_b32 v{vLANE}, 63, v0")
    if CPF:
        g.c("code prefetch into L2 (wave 7 of the first CPF workgroups)")
        A(f"s_cmp_ge_u32 s2, {CPF}"); A("s_cbranch_scc1 L_nocpf")
        A("v_cmp_lt_u32 vcc, 447, v0"); A("s_cbranch_vccz L_nocpf")
        A("s_getpc_b64 s[96:97]")
        g.lab("L_pc")
        A(f"v_lshlrev_b32 v3, 7, v{vLANE}")
        A("s_mov_b32 s98, L_exit-L_pc")
        for i in range(CPFN):
            A("v_cmp_gt_u32 vcc, s98, v3"); A("s_and_b64 exec, exec, vcc")
            A(f"s_cbranch_execz L_cpfend")
            A(f"global_load_dword v{252+(i&3)}, v3, s[96:97]")
            A("v_add_u32 v3, 0x2000, v3")
        g.lab("L_cpfend")
        A("s_mov_b64 exec, -1")
        g.lab("L_nocpf")
    A("v_lshrrev_b32 v3, 6, v0")
    A(f"v_lshrrev_b32 v7, 3, v{vLANE}")
    A(f"v_readfirstlane_b32 {sWAVE}, v3")
    A("v_lshlrev_b32 v7, 9, v7")
    A(f"v_and_b32 v{vOFF}, 7, v{vLANE}")
    A(f"v_lshlrev_b32 v{vOFF}, 4, v{vOFF}")
    A(f"v_add_u32 v{vOFF}, v{vOFF}, v7")
    A(f"s_lshr_b32 {sH}, s2, 4")
    A(f"s_and_b32 {sS}, s2, 15")
    A(f"s_lshl_b32 {sBASE}, {sH}, 24"); A(f"s_mov_b32 {sBASE0}, {sBASE}")
    A(f"s_mul_i32 {sROT}, {sH}, {ROT*8}")
    A(f"s_lshl_b32 {sLAM0}, {sS}, 3"); A(f"s_add_u32 {sLAM0}, {sLAM0}, {sWAVE}")
    A(f"s_mov_b32 {sZ}, 0")
    A(f"s_mov_b32 {sC}, {CSC:#x}")
    A(f"s_mov_b32 {sBUD}, 0x40000")
    A("s_waitcnt lgkmcnt(0)")
    if dbg and dbg != 4: A(f"v_mov_b32 v{vSTAMP}, 0"); A(f"v_writelane_b32 v{vSTAMP}, s94, 0")
    srd(g, 4, 66, 0x10000000); srd(g, 8, 68, 0x10000000); srd(g, 12, 88, 0x40000000)
    hstamp(0, 0); hstamp(1, 255)
    def tile_addr(vdst):
        A(f"s_lshl_b32 s46, {sZ}, 7"); A(f"s_add_u32 s46, s46, {sLAM0}")
        A(f"s_add_u32 s46, s46, {sROT}"); A("s_and_b32 s46, s46, 4095"); A("s_lshl_b32 s46, s46, 12")
        A(f"s_add_u32 s46, s46, {sBASE}")
        A(f"v_add_u32 v{vdst}, s46, v{vOFF}")
        A(f"s_add_u32 {sZ}, {sZ}, 1")
    def tile_addr_dyn(vdst, smk):
        A(f"s_lshl_b32 s46, {sNXT}, 6"); A(f"s_lshl_b32 s47, {sWAVE}, 3"); A("s_add_u32 s46, s46, s47")
        if HALF:
            A(f"s_lshl_b32 s47, {sNXT}, 5"); A(f"s_add_u32 s47, s47, {32*HF}"); A(f"s_lshl_b32 s49, {sWAVE}, 2"); A("s_add_u32 s47, s47, s49")
            A(f"s_cmp_lt_u32 {sNXT}, {HF}"); A("s_cselect_b32 s46, s46, s47")
            A(f"s_cselect_b32 {smk[1]}, -1, 0"); A(f"s_mov_b32 {smk[0]}, -1")
        else:
            A(f"s_mov_b32 {smk[0]}, -1"); A(f"s_mov_b32 {smk[1]}, -1")
        A(f"s_lshl_b32 s47, {sROT}, 3"); A("s_add_u32 s46, s46, s47"); A("s_and_b32 s46, s46, 32767"); A("s_lshl_b32 s46, s46, 9")
        A(f"s_add_u32 s46, s46, {sBASE0}")
        A(f"s_cmp_lt_u32 {sNXT}, {NIT}")
        A(f"s_cselect_b32 s46, s46, 0x80000000")
        A(f"s_cselect_b32 {smk[0]}, {smk[0]}, 1"); A(f"s_cselect_b32 {smk[1]}, {smk[1]}, 0")
        A(f"v_add_u32 v{vdst}, s46, v{vOFF}")
    def loads(b, srdn, va):
        for j in range(4):
            off = f" offset:{j*128}" if j else ""
            A(f"buffer_load_dwordx4 v[{b+4*j}:{b+4*j+3}], v{va}, {srdn}, 0 offen{off} nt")
    VA = [12, 13, 14, 15]
    KB = [RING + 32*k for k in range(D)]; VB = [RING + 32*k + 16 for k in range(D)]
    if X5:
        KB.append(64); VB.append(80); VA.append(3)
    DP = D + (1 if X5 else 0)
    A(f"s_cmp_lg_u32 {sWAVE}, 0")
    A("s_cbranch_scc1 L_others")
    g.c("wave0: x, epoch, wq partial loads (64 cols x 112 rows)")
    A("s_setprio 3")
    srd(g, 16, 64, 896); srd(g, 20, 70, 448*8192)
    A("v_mov_b32 v8, 0")
    A(f"v_lshlrev_b32 v9, 1, v{vLANE}")
    XR = [88+k for k in range(7)]
    for k in range(7): A(f"buffer_load_ushort v{XR[k]}, v9, {sT1}, 0 offen offset:{128*k} nt")
    A(f"buffer_load_dword v95, v8, {sWS}, 0 offen sc1")
    A(f"s_mul_i32 s44, {sH}, {CSTR}"); A(f"s_add_u32 s44, s44, {CNT:#x}")
    A(f"s_cmp_lg_u32 {sS}, 0"); A("s_cbranch_scc1 L_nozero")
    A("s_mov_b64 exec, 1")
    A(f"buffer_store_dword v8, v8, {sWS}, s44 offen sc1")
    A("s_mov_b64 exec, -1")
    g.lab("L_nozero")
    A("s_and_b32 s43, s2, 3")
    A("s_lshr_b32 s44, s2, 2"); A("s_lshl_b32 s44, s44, 7")
    A(f"s_mul_i32 s45, s43, {112*8192}"); A("s_add_u32 s44, s44, s45")
    A(f"v_lshrrev_b32 v10, 3, v{vLANE}"); A("v_lshlrev_b32 v10, 13, v10")
    A(f"v_and_b32 v11, 7, v{vLANE}"); A("v_lshlrev_b32 v11, 4, v11"); A("v_add3_u32 v10, v10, v11, s44")
    WQ = 32
    for j in range(14):
        A(f"s_mov_b32 s45, {j*8*8192}")
        A(f"buffer_load_dwordx4 v[{WQ+4*j}:{WQ+4*j+3}], v10, {sT2}, s45 offen nt")
    if TOUCH & 2:
        A(f"v_lshlrev_b32 v11, 4, v{vLANE}")
        A(f"s_lshl_b32 s44, {sH}, 13"); A(f"s_add_u32 s44, s44, {QP:#x}")
        for kq in range(8):
            A(f"buffer_load_dwordx4 v[{TMP+20}:{TMP+23}], v11, {sWS}, s44 offen sc1")
            A("s_add_u32 s44, s44, 1024")
    if B0: A("s_barrier")
    g.c("wave0: layernorm(x), q partial")
    A("s_waitcnt vmcnt(15)")
    stamp(13)
    for k in range(7): A(f"v_lshlrev_b32 v{XR[k]}, 16, v{XR[k]}")
    layernorm(g, XR, [TMP, TMP+1, TMP+2, TMP+3, TMP+4, TMP+5])
    A(f"v_lshlrev_b32 v9, 2, v{vLANE}")
    for k in range(7): A(f"ds_write_b32 v9, v{XR[k]} offset:{L_X + 256*k}")
    A("s_mul_i32 s45, s43, 448")
    A(f"v_lshrrev_b32 v9, 3, v{vLANE}"); A("v_lshlrev_b32 v9, 2, v9"); A("v_add_u32 v9, s45, v9")
    A("s_waitcnt lgkmcnt(0)")
    XJ = [TMP + j for j in range(14)]
    for j in range(14): A(f"ds_read_b32 v{XJ[j]}, v9 offset:{L_X + 32*j}")
    A(f"s_waitcnt vmcnt({14 + (8 if TOUCH & 2 else 0)})")
    A(f"v_readfirstlane_b32 {sEP}, v95")
    for i in range(8): A(f"v_mov_b32 v{Q+i}, 0")
    A(f"s_mul_i32 {sTAG}, {sEP}, 0x9E3779B1")
    A(f"s_add_u32 {sTAG}, {sTAG}, 0x85EBCA6B")
    A("s_waitcnt vmcnt(0) lgkmcnt(0)")
    stamp(14)
    for j in range(14):
        xl = TMP + 14 + (j & 1)
        A(f"v_lshrrev_b32 v{xl}, 16, v{XJ[j]}")
        for i in range(4):
            A(f"v_dot2c_f32_bf16 v{Q+2*i}, v{WQ+4*j+i}, v{xl}")
            A(f"v_dot2c_f32_bf16 v{Q+2*i+1}, v{WQ+4*j+i}, v{XJ[j]}")
    r = reduce_scatter(g, [Q+i for i in range(8)], [32, 16, 8])[0]
    A(f"v_mov_b32_dpp v{r+2}, v{r} row_ror:8 row_mask:0xf bank_mask:0xf")
    A(f"v_mov_b32 v{r+1}, {sTAG}"); A(f"v_mov_b32 v{r+3}, {sTAG}")
    A(f"v_and_b32 v9, 7, v{vLANE}"); A("v_lshlrev_b32 v9, 6, v9")
    A(f"v_lshrrev_b32 v11, 3, v{vLANE}"); A("v_lshlrev_b32 v11, 3, v11"); A("v_add_u32 v9, v9, v11")
    A(f"s_lshl_b32 s44, {sH}, 13"); A("s_lshl_b32 s45, s43, 11"); A("s_add_u32 s44, s44, s45")
    A(f"s_lshr_b32 s45, {sS}, 2"); A("s_lshl_b32 s45, s45, 9"); A("s_add_u32 s44, s44, s45"); A(f"s_add_u32 s44, s44, {QP:#x}")
    A("s_mov_b32 exec_lo, 0x00ff00ff"); A("s_mov_b32 exec_hi, 0x00ff00ff")
    A(f"buffer_store_dwordx4 v[{r}:{r+3}], v9, {sWS}, s44 offen sc1")
    A("s_mov_b64 exec, -1")
    stamp(1)
    g.c("wave0: gather q partials of own head")
    A(f"v_lshlrev_b32 v9, 4, v{vLANE}")
    A(f"s_lshl_b32 s44, {sH}, 13"); A(f"s_add_u32 s44, s44, {QP:#x}")
    A("v_add_u32 v9, s44, v9")
    A(f"v_lshlrev_b32 v11, 4, v{vLANE}")
    for i in range(4): A(f"v_mov_b32 v{TMP+16+i}, 0")
    A(f"ds_write_b128 v11, v[{TMP+16}:{TMP+19}] offset:{L_XP}")
    for k in range(QPRE):
        tile_addr(VA[k]); loads(KB[k], sKS, VA[k]); loads(VB[k], sVS, VA[k])
    if QD: A(f"s_sleep {QD}")
    QG = 32
    def q_loads():
        for kq in range(4):
            A(f"s_movk_i32 s45, {kq*2048}")
            for i in range(2):
                off = f" offset:{i*1024}" if i else ""
                A(f"buffer_load_dwordx4 v[{QG+8*kq+4*i}:{QG+8*kq+4*i+3}], v9, {sWS}, s45 offen{off} sc1")
    qtags = [QG+4*m+1 for m in range(8)] + [QG+4*m+3 for m in range(8)]
    q_loads()
    A("s_barrier")
    stamp(12)
    A("s_waitcnt vmcnt(0)")
    A(f"v_xor_b32 v{TMP+5}, {sTAG}, v{qtags[0]}")
    for t in qtags[1:]:
        A(f"v_xor_b32 v{TMP+6}, {sTAG}, v{t}"); A(f"v_or_b32 v{TMP+5}, v{TMP+5}, v{TMP+6}")
    A(f"v_cmp_ne_u32 vcc, 0, v{TMP+5}")
    A("s_cbranch_vccz L_qok")
    A(f"s_sub_u32 {sBUD}, {sBUD}, 1")
    poll(g, q_loads, qtags, TMP+5, TMP+6)
    g.lab("L_qok")
    stamp(10)
    if dbg == 1: A(f"v_writelane_b32 v{vSTAMP}, {sBUD}, 11")
    for i in range(2):
        for e in (0, 2):
            A(f"v_add_f32 v{QG+4*i+e}, v{QG+4*i+e}, v{QG+8+4*i+e}")
            A(f"v_add_f32 v{QG+16+4*i+e}, v{QG+16+4*i+e}, v{QG+24+4*i+e}")
            A(f"v_add_f32 v{QG+4*i+e}, v{QG+4*i+e}, v{QG+16+4*i+e}")
        A(f"v_cvt_pk_bf16_f32 v{TMP+8+i}, v{QG+4*i}, v{QG+4*i+2}")
    A(f"v_lshlrev_b32 v9, 2, v{vLANE}")
    A(f"ds_write_b32 v9, v{TMP+8} offset:{L_Q}")
    A(f"ds_write_b32 v9, v{TMP+9} offset:{L_Q+256}")
    A(f"v_mov_b32 v{TMP+12}, {sTAG}"); A(f"v_mov_b32 v{TMP+13}, {sEP}"); A(f"v_mov_b32 v{TMP+7}, 0")
    A(f"ds_write_b64 v{TMP+7}, v[{TMP+12}:{TMP+13}] offset:{L_TAG}")
    for k in range(QPRE, DP):
        tile_addr(VA[k]); loads(KB[k], sKS, VA[k]); loads(VB[k], sVS, VA[k])
    A("s_setprio 0")
    A("s_waitcnt lgkmcnt(0)")
    A("s_branch L_waitq")
    g.lab("L_others")
    if B0: A("s_barrier")
    if SD: A(f"s_sleep {SD}")
    groups = []
    for k in range(DP): groups += [("K", k), ("V", k)]
    for gi, (kind, k) in enumerate(groups):
        if gi == PRE: A("s_barrier")
        if kind == "K": tile_addr(VA[k]); loads(KB[k], sKS, VA[k])
        else: loads(VB[k], sVS, VA[k])
    if TLBW:
        g.c("warm the address translation of this head's K/V pages through the scalar path (wave TLBW)")
        lw = g.new("tw")
        A(f"s_cmp_lg_u32 {sWAVE}, {TLBW}"); A(f"s_cbranch_scc1 {lw}")
        A(f"s_add_u32 s96, s66, {sBASE}"); A("s_addc_u32 s97, s67, 0")
        A(f"s_add_u32 s98, s68, {sBASE}"); A("s_addc_u32 s99, s69, 0")
        for p in range(8):
            A(f"s_load_dword s100, s[96:97], 0"); A(f"s_load_dword s101, s[98:99], 0")
            A("s_add_u32 s96, s96, 0x200000"); A("s_addc_u32 s97, s97, 0"); A("s_add_u32 s98, s98, 0x200000"); A("s_addc_u32 s99, s99, 0")
        g.lab(lw)
    g.lab("L_waitq")
    A("s_barrier")
    stamp(2)
    if dbg == 5:
        A("s_memtime s[90:91]"); A("s_waitcnt lgkmcnt(0)"); A(f"v_writelane_b32 v{vSTAMP}, s90, 58")
        A("s_memrealtime s[90:91]"); A("s_waitcnt lgkmcnt(0)"); A(f"v_writelane_b32 v{vSTAMP}, s90, 59")
    A(f"v_and_b32 v7, 7, v{vLANE}"); A("v_lshlrev_b32 v7, 4, v7")
    for c in range(4): A(f"ds_read_b128 v[{Q+4*c}:{Q+4*c+3}], v7 offset:{L_Q + 128*c}")
    A("v_mov_b32 v8, 0")
    A(f"ds_read_b64 v[10:11], v8 offset:{L_TAG}")
    for i in range(32): A(f"v_mov_b32 v{ACC+i}, 0")
    A(f"v_mov_b32 v{vM}, {NEG_BIG:#x}"); A(f"v_mov_b32 v{vMC}, {NEG_BIG:#x}"); A(f"v_mov_b32 v{vL}, 0")
    A("s_and_b32 s37, s2, 7"); A(f"s_lshr_b32 {sRI}, s2, 3")
    A(f"s_mov_b32 {sLOC}, 0")
    A("s_cmp_lt_u32 s2, 224"); A("s_cselect_b32 s38, 2, 1")
    A("s_cmp_eq_u32 s37, 0"); A(f"s_cselect_b32 {sROLE}, s38, 0")
    A("s_waitcnt lgkmcnt(0)")
    A(f"v_readfirstlane_b32 {sTAG}, v10"); A(f"v_readfirstlane_b32 {sEP}, v11")
    A(f"s_mov_b32 {sSTEP}, 0")
    if dbg == 3: A("s_mov_b32 s92, 15")
    resc = []
    def body(k, kwait, vwait, issue, pre=None, post=None):
        kb, vb = KB[k], VB[k]
        g.c(f"slot {k} ({issue})")
        if pre: pre()
        stepstamp()
        A(f"s_waitcnt vmcnt({kwait})")
        for r_ in range(4): A(f"v_dot2_f32_bf16 v{7+r_}, v{kb+r_}, v{Q+r_}, 0")
        for r_ in range(4, 16 if not NOCOMP else 4): A(f"v_dot2c_f32_bf16 v{7+(r_&3)}, v{kb+r_}, v{Q+r_}")
        if issue == "static": tile_addr(VA[k]); loads(kb, sKS, VA[k])
        elif issue == "dyn":
            tile_addr_dyn(VA[k], sMK[k])
            A(f"s_mov_b64 exec, s[{sMK[k][0][1:]}:{sMK[k][1][1:]}]"); loads(kb, sKS, VA[k]); A("s_mov_b64 exec, -1")
        else: g.nop(3)
        A("v_add_f32 v7, v7, v8"); A("v_add_f32 v9, v9, v10"); A("v_add_f32 v7, v7, v9"); g.nop(2)
        allreduce_low(g, 7, [0, 1, 2])
        A("v_cvt_pk_bf16_f32 v8, v7, v7")
        A("v_lshlrev_b32 v7, 16, v8")
        if issue == "dyn" and HALF:
            A(f"v_cndmask_b32 v7, v3, v7, s[{sMC[k][0][1:]}:{sMC[k][1][1:]}]")
        A(f"v_cmp_gt_f32 vcc, v7, v{vM}")
        lr, lc = g.new("resc"), g.new("cont")
        A(f"s_cbranch_vccnz {lr}")
        g.lab(lc)
        A(f"v_fma_f32 v8, v7, {sC}, -v{vMC}")
        A("v_exp_f32 v8, v8"); g.nop(1)
        A(f"v_add_f32 v{vL}, v{vL}, v8")
        A("v_cvt_pk_bf16_f32 v9, v8, 0")
        A("v_cvt_pk_bf16_f32 v10, 0, v8")
        A(f"s_waitcnt vmcnt({vwait})")
        for c in range(4 if not NOCOMP else 0):
            for i in range(4):
                A(f"v_dot2c_f32_bf16 v{ACC+8*c+2*i}, v{vb+4*c+i}, v9")
                A(f"v_dot2c_f32_bf16 v{ACC+8*c+2*i+1}, v{vb+4*c+i}, v10")
        if issue == "static": loads(vb, sVS, VA[k])
        elif issue == "dyn":
            A(f"s_mov_b64 exec, s[{sMK[k][0][1:]}:{sMK[k][1][1:]}]"); loads(vb, sVS, VA[k]); A("s_mov_b64 exec, -1")
            if HALF: A(f"s_mov_b64 s[{sMC[k][0][1:]}:{sMC[k][1][1:]}], s[{sMK[k][0][1:]}:{sMK[k][1][1:]}]")
        if post: post()
        resc.append((lr, lc))
    if X5:
        g.c("first revolution: five prefetched tiles")
        for k in range(D): body(k, 36, 36, "static", pre=lambda: A("s_barrier"))
        body(4, 36, 32, "none", pre=lambda: A("s_barrier"))
    NREV = (NS - 9) // 4 if X5 else (NS - 4) // 4
    assert (NS - (9 if X5 else 4)) % 4 == 0
    H1, H2 = (4, 8) if X5 else (8, 12)
    g.lab("L_loop")
    for k in range(D):
        body(k, 28, 28, "static", pre=(lambda: A("s_barrier")) if (BAR == 1 or (BAR == 4 and k == 0) or (BAR == 2 and k % 2 == 0)) else None)
    A(f"s_add_u32 {sSTEP}, {sSTEP}, 4")
    A(f"s_cmp_eq_u32 {sSTEP}, {H1}"); A("s_cbranch_scc1 L_wload")
    A(f"s_cmp_eq_u32 {sSTEP}, {H2}"); A("s_cbranch_scc1 L_xgload")
    g.lab("L_loop_back")
    A(f"s_cmp_lt_u32 {sSTEP}, {4*NREV}"); A("s_cbranch_scc1 L_loop")
    g.c("transition: consume slots 0,1 without issue")
    A(f"s_add_u32 s37, {sS}, {16*NS}"); A(f"v_mov_b32 v{TMP}, s37"); A(f"v_mov_b32 v{TMP+1}, 0")
    A(f"ds_write_b32 v{TMP+1}, v{TMP} offset:{L_CL}")
    A(f"s_mov_b32 {sV2}, 1"); A(f"s_mov_b32 {sV3}, 1"); A("s_mov_b32 s58, 0")
    A("s_mov_b64 s[76:77], -1"); A("s_mov_b64 s[78:79], -1"); A(f"v_mov_b32 v3, {NEG_BIG:#x}")
    A(f"s_cmp_eq_u32 {sROLE}, 0"); A(f"s_cselect_b32 {sLIM}, 0, {RWX}"); A(f"s_sub_u32 {sLIM}, {NIT}, {sLIM}"); A(f"s_mov_b32 {sDC}, 0"); A(f"s_mov_b32 {sI0}, 0"); A(f"s_mov_b32 {sGO}, 0")
    A("s_mov_b32 s41, 0x05040100"); A("s_mov_b32 s42, 0x07060302")
    if LOOK == 2: A(f"s_sub_u32 s37, {sS}, 16"); A(f"v_mov_b32 v{TMP+5}, s37")
    A(f"s_mul_i32 s48, {sH}, {CSTR}"); A(f"s_add_u32 s48, s48, {CNT:#x}")
    def xg_check():
        l = g.new("xgs"); l2 = g.new("xgok")
        A(f"s_cmp_eq_u32 {sROLE}, 0"); A(f"s_cbranch_scc1 {l}")
        A("s_mov_b32 exec_lo, -1"); A("s_mov_b32 exec_hi, 0")
        A(f"v_cmp_ne_u32 vcc, {sTAG}, v{TMP+13}")
        A(f"s_cbranch_vccz {l2}")
        A(f"v_lshlrev_b32 v{TMP+14}, 3, v{vLANE}"); A(f"v_add_u32 v{TMP+14}, {XG:#x}, v{TMP+14}")
        poll(g, lambda: A(f"buffer_load_dwordx2 v[{TMP+12}:{TMP+13}], v{TMP+14}, {sWS}, 0 offen sc1"), [TMP+13], TMP+8, TMP+9)
        g.lab(l2)
        A("s_getreg_b32 s37, hwreg(HW_REG_XCC_ID)"); A("s_and_b32 s37, s37, 15")
        A(f"v_cmp_ne_u32 vcc, s37, v{TMP+12}")
        A("s_cmp_eq_u64 vcc, 0"); A(f"s_cselect_b32 {sLOC}, 1, 0")
        if NOLOC: A(f"s_mov_b32 {sLOC}, 0")
        A("s_mov_b64 exec, -1")
        g.lab(l)
    def wo_load():
        l = g.new("wol")
        A("s_waitcnt lgkmcnt(0)")
        A(f"s_cmp_eq_u32 {sROLE}, 0"); A(f"s_cbranch_scc1 {l}")
        srd(g, 16, 72, 4096*896)
        A(f"s_lshl_b32 s37, {sH}, 4"); A(f"s_and_b32 s38, {sS}, 8"); A("s_add_u32 s37, s37, s38"); A(f"s_add_u32 s37, s37, {sWAVE}")
        A(f"s_mul_i32 s37, s37, {16*896}")
        A(f"v_lshlrev_b32 v{TMP+8}, 4, v{vLANE}")
        for i in range(16):
            A(f"buffer_load_dwordx4 v[{R0+4*i}:{R0+4*i+3}], v{TMP+8}, {sT1}, s37 offen nt")
            A("s_add_u32 s37, s37, 896")
        g.lab(l)
    body(0, 28, 24, "none", pre=lambda: A("s_barrier"), post=xg_check)
    body(1, 20, 16, "none", pre=lambda: A("s_barrier"), post=wo_load)
    if dbg == 2: stamp(5)
    if TPF & 1: code_pf(6, "L_s0", "L_exit", 2, TMP+20)
    g.lab("L_dyn")
    for k in (2, 3):
        p = k & 1
        sV = sV2 if k == 2 else sV3
        RA = [TMP+3, TMP+5]
        def pre(k=k, p=p, sV=sV):
            A("s_barrier")
            A(f"ds_read_b32 v{TMP+2}, v{TMP+1} offset:{L_CL + 4*p}")
            A(f"s_cmp_eq_u32 {sV}, 0"); A("s_cbranch_scc1 L_s0")
            A("s_waitcnt lgkmcnt(0)")
            A(f"v_readfirstlane_b32 {sNXT}, v{TMP+2}")
            l = g.new("noclaim")
            A(f"s_cmp_lg_u32 {sWAVE}, 0"); A(f"s_cbranch_scc1 {l}")
            A(f"s_mov_b32 {sGO}, 0")
            A(f"s_cmp_ge_u32 {sNXT}, {sLIM}"); A(f"s_cbranch_scc1 {l}")
            if ADF:
                la = g.new("ad")
                A(f"s_cmp_eq_u32 {sDC}, 1"); A(f"s_cselect_b32 {sI0}, {sNXT}, {sI0}")
                A(f"s_cmp_lt_u32 {sDC}, 3"); A(f"s_cbranch_scc1 {la}")
                A(f"s_cmp_eq_u32 {sS}, 3"); A(f"s_cbranch_scc1 {la}")
                A(f"s_cmp_eq_u32 {sS}, 12"); A(f"s_cbranch_scc1 {la}")
                A(f"s_sub_u32 s37, {sDC}, 1")
                A(f"s_sub_u32 s38, {sNXT}, {sI0}"); A("s_lshl_b32 s39, s37, 4"); A("s_sub_u32 s38, s38, s39")
                A(f"s_mul_i32 s38, s38, {ADF}")
                A(f"s_sub_u32 s39, {NIT}, {sNXT}"); A("s_mul_i32 s39, s39, s37"); A("s_lshl_b32 s39, s39, 1")
                A("s_cmp_lt_i32 s39, s38"); A(f"s_cbranch_scc1 {l}")
                g.lab(la)
            A(f"s_mov_b32 {sGO}, 1")
            ra = RA[p] if LOOK == 2 else RA[0]
            A(f"v_mov_b32 v{ra}, 1")
            A("s_mov_b64 exec, 1")
            if FAKE in (0, 3): A(f"buffer_atomic_add v{ra}, v{TMP+1}, {sWS}, s48 offen {['sc0', 'sc0 sc1', 'sc0 nt', 'sc0 sc1 nt'][AFL]}")
            elif FAKE == 2: A(f"buffer_load_dword v{ra}, v{TMP+1}, {sWS}, s48 offen sc1")
            A("s_mov_b64 exec, -1")
            g.lab(l)
        def post(k=k, p=p, sV=sV):
            A(f"s_cmp_lt_u32 {sNXT}, {NIT}"); A(f"s_cselect_b32 {sV}, 1, 0")
            if dbg: A(f"s_add_u32 {sSTEP}, {sSTEP}, {sV}")
            if PT & 4:
                lt = g.new("ept")
                A(f"s_cmp_lg_u32 {sWAVE}, 4"); A(f"s_cbranch_scc1 {lt}")
                A(f"s_cmp_lt_u32 {sNXT}, {NIT}"); A(f"s_cbranch_scc1 {lt}")
                A(f"s_cmp_eq_u32 s58, 1"); A(f"s_cbranch_scc1 {lt}")
                A("s_mov_b32 s58, 1")
                A(f"v_lshlrev_b32 v{TMP+8}, 4, v{vLANE}")
                A(f"s_lshl_b32 s38, {sH}, 15"); A(f"s_lshl_b32 s39, {sS}, 11"); A("s_add_u32 s38, s38, s39"); A(f"s_add_u32 s38, s38, {OP:#x}")
                A(f"buffer_load_dwordx4 v[{TMP+20}:{TMP+23}], v{TMP+8}, {sWS}, s38 offen sc1")
                A(f"buffer_load_dwordx4 v[{TMP+20}:{TMP+23}], v{TMP+8}, {sWS}, s38 offen offset:1024 sc1")
                g.lab(lt)
            lp_ = g.new("wop")
            A(f"s_add_u32 {sDC}, {sDC}, 1"); A(f"s_cmp_lg_u32 {sDC}, 2"); A(f"s_cbranch_scc1 {lp_}")
            A(f"s_cmp_eq_u32 {sROLE}, 0"); A(f"s_cbranch_scc1 {lp_}")
            if k == 3:
                for i in range(8):
                    for e in range(4): perm_pair(g, R0+8*i+e, R0+8*i+4+e, 9)
            g.lab(lp_)
            l = g.new("nopub")
            A(f"s_cmp_lg_u32 {sWAVE}, 0"); A(f"s_cbranch_scc1 {l}")
            ra = RA[p^1] if LOOK == 2 else RA[0]
            A(f"s_waitcnt vmcnt({17 if LOOK == 2 else 8})")
            if FAKE: A(f"s_add_u32 s49, {sNXT}, 16"); A(f"v_mov_b32 v{ra}, s49")
            else: A(f"v_add_u32 v{ra}, {16*(NS+LOOK)}, v{ra}")
            A(f"v_mov_b32 v{TMP+4}, 0xffff")
            A(f"s_cmp_eq_u32 {sGO}, 1"); A("s_cselect_b64 vcc, -1, 0")
            A(f"v_cndmask_b32 v{TMP+4}, v{TMP+4}, v{ra}, vcc")
            A("s_mov_b64 exec, 1")
            A(f"ds_write_b32 v{TMP+1}, v{TMP+4} offset:{L_CL + 4*(p^1)}")
            A("s_mov_b64 exec, -1")
            A("s_waitcnt lgkmcnt(0)")
            g.lab(l)
        body(k, 12, 12, "dyn", pre=pre, post=post)
    A("s_branch L_dyn")
    for lr, lc in resc:
        g.lab(lr)
        A("v_mov_b32 v8, v7"); g.nop(2)
        dpp(g, "v_max_f32", 8, 8, 8, "row_ror:8"); g.nop(2)
        dpp(g, "v_max_f32", 8, 8, 8, "row_bcast:15", rm=0xa); g.nop(2)
        dpp(g, "v_max_f32", 8, 8, 8, "row_bcast:31", rm=0xc); g.nop(1)
        A("v_readlane_b32 s47, v8, 63"); g.nop(2)
        A(f"v_max_f32 v9, s47, v{vM}")
        A(f"v_sub_f32 v10, v{vM}, v9")
        A(f"v_mul_f32 v10, {sC}, v10")
        A("v_exp_f32 v10, v10")
        A(f"v_mov_b32 v{vM}, v9")
        A(f"v_mul_f32 v{vMC}, {sC}, v9")
        A(f"v_mul_f32 v{vL}, v10, v{vL}")
        for i in range(32): A(f"v_mul_f32 v{ACC+i}, v10, v{ACC+i}")
        A(f"s_branch {lc}")
    g.lab("L_wload")
    if dbg == 2: stamp(4)
    A(f"s_cmp_eq_u32 {sROLE}, 0"); A("s_cbranch_scc1 L_loop_back")
    A(f"s_cmp_eq_u32 {sROLE}, 1"); A("s_cbranch_scc1 L_xgpub")
    g.c("role WG: w1[:, 64a..+64) (wave w rows 56w + 8j + (l>>3), chunk l&7), w2 rows 64a + 8w + j, b1, x, b2, xcc granule")
    srd(g, 16, 76, 448*3584); srd(g, 20, 80, 1792*896)
    A(f"v_lshrrev_b32 v{TMP}, 3, v{vLANE}"); A("s_movk_i32 s37, 3584"); A(f"v_mul_lo_u32 v{TMP}, v{TMP}, s37")
    A(f"v_and_b32 v{TMP+1}, 7, v{vLANE}"); A(f"v_lshlrev_b32 v{TMP+1}, 4, v{TMP+1}"); A(f"v_add_u32 v{TMP}, v{TMP}, v{TMP+1}")
    A(f"s_mul_i32 s37, {sWAVE}, {56*3584}"); A(f"s_lshl_b32 s38, {sRI}, 7"); A("s_add_u32 s37, s37, s38")
    A(f"s_mul_i32 s38, {sWAVE}, {7*1024}"); A(f"s_add_u32 s38, s38, {L_W1}")
    for j in range(7):
        A("s_mov_b32 m0, s38"); A("s_nop 0")
        A(f"buffer_load_dwordx4 v{TMP}, {sT1}, s37 offen nt lds")
        A(f"s_add_u32 s37, s37, {8*3584}"); A("s_add_u32 s38, s38, 1024")
    A(f"v_lshlrev_b32 v{TMP+2}, 4, v{vLANE}")
    A(f"s_lshl_b32 s37, {sRI}, 6"); A(f"s_lshl_b32 s38, {sWAVE}, 3"); A("s_add_u32 s37, s37, s38"); A("s_mul_i32 s37, s37, 896")
    A(f"s_lshl_b32 s38, {sWAVE}, 13"); A(f"s_add_u32 s38, s38, {L_W2}")
    for j in range(8):
        A("s_mov_b32 m0, s38"); A("s_nop 0")
        A(f"buffer_load_dwordx4 v{TMP+2}, {sT2}, s37 offen nt lds")
        A("s_add_u32 s37, s37, 896"); A("s_add_u32 s38, s38, 1024")
    srd(g, 16, 78, 1792*2)
    A(f"v_and_b32 v{TMP+1}, 7, v{vLANE}"); A(f"v_lshlrev_b32 v{TMP+1}, 3, v{TMP+1}"); A(f"v_lshrrev_b32 v{TMP+3}, 3, v{vLANE}"); A(f"v_add_u32 v{TMP+1}, v{TMP+1}, v{TMP+3}")
    A(f"v_lshlrev_b32 v{TMP+1}, 1, v{TMP+1}"); A(f"s_lshl_b32 s37, {sRI}, 7"); A(f"v_add_u32 v{TMP+1}, s37, v{TMP+1}")
    A(f"buffer_load_ushort v{vB1}, v{TMP+1}, {sT1}, 0 offen nt")
    srd(g, 16, 64, 896); srd(g, 20, 82, 896)
    A(f"s_lshl_b32 s37, {sRI}, 5")
    A(f"v_and_b32 v{TMP+3}, 7, v{vLANE}"); A(f"v_lshlrev_b32 v{TMP+3}, 1, v{TMP+3}"); A(f"v_lshrrev_b32 v{TMP+4}, 5, v{vLANE}"); A(f"v_add_u32 v{TMP+3}, v{TMP+3}, v{TMP+4}")
    A(f"v_lshlrev_b32 v{TMP+3}, 1, v{TMP+3}"); A(f"v_add_u32 v{TMP+3}, s37, v{TMP+3}")
    A(f"buffer_load_ushort v{vB2}, v{TMP+3}, {sT2}, 0 offen nt")
    A(f"buffer_load_ushort v{vXH}, v{TMP+3}, {sT1}, 0 offen nt")
    g.lab("L_xgpub")
    A(f"s_cmp_lg_u32 {sWAVE}, 0"); A("s_cbranch_scc1 L_loop_back")
    A("s_getreg_b32 s37, hwreg(HW_REG_XCC_ID)"); A("s_and_b32 s37, s37, 15")
    A(f"v_mov_b32 v{TMP+6}, s37"); A(f"v_mov_b32 v{TMP+7}, {sTAG}"); A(f"s_lshl_b32 s37, {sRI}, 3"); A(f"s_add_u32 s37, s37, {XG:#x}"); A(f"v_mov_b32 v{TMP+5}, 0")
    A("s_mov_b64 exec, 1")
    A(f"buffer_store_dwordx2 v[{TMP+6}:{TMP+7}], v{TMP+5}, {sWS}, s37 offen sc1")
    A("s_mov_b64 exec, -1")
    A("s_branch L_loop_back")
    g.lab("L_xgload")
    A(f"s_cmp_eq_u32 {sROLE}, 0"); A("s_cbranch_scc1 L_loop_back")
    A(f"v_lshlrev_b32 v{TMP+14}, 3, v{vLANE}"); A(f"v_add_u32 v{TMP+14}, {XG:#x}, v{TMP+14}")
    A(f"buffer_load_dwordx2 v[{TMP+12}:{TMP+13}], v{TMP+14}, {sWS}, 0 offen sc1")
    A("s_branch L_loop_back")
    g.lab("L_s0")
    stamp(3)
    if dbg and dbg != 4: A(f"v_writelane_b32 v{vSTAMP}, {sSTEP}, 15")
    g.c("S0: in-wave reduce")
    T = TMP
    allreduce_high(g, vL, T)
    reduce_scatter(g, [ACC+i for i in range(32)], [32, 16, 8])
    A(f"v_lshrrev_b32 v7, 4, v{vLANE}"); A("v_lshlrev_b32 v7, 8, v7")
    A(f"v_and_b32 v8, 7, v{vLANE}"); A("v_lshlrev_b32 v8, 5, v8")
    A(f"v_bfe_u32 v9, v{vLANE}, 3, 1"); A("v_lshlrev_b32 v9, 4, v9")
    A("v_add3_u32 v7, v7, v8, v9")
    A(f"s_lshl_b32 s37, {sWAVE}, 10"); A("v_add_u32 v7, s37, v7")
    A(f"ds_write_b128 v7, v[{ACC}:{ACC+3}] offset:{L_O}")
    A(f"v_mov_b32 v8, v{vM}"); A(f"v_mov_b32 v9, v{vL}")
    A(f"s_lshl_b32 s37, {sWAVE}, 3"); A("v_mov_b32 v10, s37")
    A(f"ds_write_b64 v10, v[8:9] offset:{L_ST}")
    A("s_mov_b32 s41, 0x05040100"); A("s_mov_b32 s42, 0x07060302")
    A("s_waitcnt vmcnt(0) lgkmcnt(0)")
    A("s_barrier")
    tst(16)
    A(f"s_cmp_gt_u32 {sWAVE}, 1"); A("s_cbranch_scc1 L_rw")
    g.c("waves 0-1: cross-wave combine + publish (thread t: dims 2t, 2t+1)")
    OW = 68
    A("v_mov_b32 v7, 0")
    for i in range(4): A(f"ds_read_b128 v[{T+4*i}:{T+4*i+3}], v7 offset:{L_ST+16*i}")
    A("v_lshlrev_b32 v8, 3, v0")
    for w in range(8): A(f"ds_read_b64 v[{OW+2*w}:{OW+2*w+1}], v8 offset:{L_O+1024*w}")
    A("s_waitcnt lgkmcnt(8)")
    A(f"v_max3_f32 v9, v{T}, v{T+2}, v{T+4}"); A(f"v_max3_f32 v10, v{T+6}, v{T+8}, v{T+10}"); A(f"v_max3_f32 v9, v9, v{T+12}, v{T+14}"); A(f"v_max_f32 v9, v9, v10")
    A(f"v_mul_f32 v11, {sC}, v9")
    for w in range(8): A(f"v_fma_f32 v{T+2*w}, v{T+2*w}, {sC}, -v11")
    for w in range(8): A(f"v_exp_f32 v{T+2*w}, v{T+2*w}")
    A("v_lshrrev_b32 v7, 3, v0"); A("v_lshlrev_b32 v7, 11, v7")
    A("v_and_b32 v8, 7, v0"); A("v_cmp_eq_u32 vcc, 0, v8"); A("v_lshlrev_b32 v8, 4, v8"); A("v_add_u32 v7, v7, v8")
    A(f"s_lshl_b32 s37, {sH}, 15"); A(f"s_lshl_b32 s38, {sS}, 7"); A("s_add_u32 s37, s37, s38"); A(f"s_add_u32 s37, s37, {OP:#x}")
    PG = 84
    A(f"v_mov_b32 v{PG+3}, {sTAG}")
    A("s_waitcnt lgkmcnt(0)")
    A(f"v_mul_f32 v{PG}, v{T}, v{OW}"); A(f"v_mul_f32 v{PG+1}, v{T}, v{OW+1}"); A(f"v_mul_f32 v10, v{T}, v{T+1}")
    for w in range(1, 8):
        A(f"v_fmac_f32 v{PG}, v{T+2*w}, v{OW+2*w}"); A(f"v_fmac_f32 v{PG+1}, v{T+2*w}, v{OW+2*w+1}"); A(f"v_fmac_f32 v10, v{T+2*w}, v{T+2*w+1}")
    A(f"v_cndmask_b32 v{PG+2}, v10, v9, vcc")
    A(f"buffer_store_dwordx4 v[{PG}:{PG+3}], v7, {sWS}, s37 offen sc1")
    tst(17)
    if dbg == 5: A("s_waitcnt vmcnt(0)"); tst(61)
    g.lab("L_rw")
    A(f"s_cmp_eq_u32 {sROLE}, 0"); A("s_cbranch_scc1 L_end")
    def lstore(text):
        l1, l2 = g.new("ls"), g.new("ls")
        A(f"s_cmp_eq_u32 {sLOC}, 0"); A(f"s_cbranch_scc1 {l1}")
        A(text); A(f"s_branch {l2}")
        g.lab(l1); A(text + " sc1"); g.lab(l2)
    g.c("first gather round of this wave's 16-dim slice, pre-touch of later hand-off lines, weight preparation")
    vOA = 50
    A(f"v_lshlrev_b32 v{vOA}, 4, v{vLANE}")
    A(f"s_and_b32 s39, {sS}, 8"); A(f"s_add_u32 s39, s39, {sWAVE}"); A("s_lshl_b32 s39, s39, 11")
    A(f"s_lshl_b32 s38, {sH}, 15"); A("s_add_u32 s38, s38, s39"); A(f"s_add_u32 s38, s38, {OP:#x}")
    A(f"v_add_u32 v{vOA}, s38, v{vOA}")
    def g0(): A(f"buffer_load_dwordx4 v[{T+8}:{T+11}], v{vOA}, {sWS}, 0 offen sc1")
    def g1(): A(f"buffer_load_dwordx4 v[{T+12}:{T+15}], v{vOA}, {sWS}, 0 offen offset:1024 sc1")
    g0(); g1()
    if PT:
        lpt = g.new("pt"); l7 = g.new("pt7"); l5 = g.new("pt5"); l6 = g.new("pt6")
        A(f"s_cmp_lt_u32 {sROLE}, 2"); A(f"s_cbranch_scc1 {lpt}")
        A(f"v_lshlrev_b32 v7, 4, v{vLANE}")
        DM = 88
        A(f"s_cmp_lg_u32 {sWAVE}, 7"); A(f"s_cbranch_scc1 {l7}")
        A(f"s_mul_i32 s37, {sRI}, {FSTR}"); A(f"s_add_u32 s37, s37, {FP:#x}")
        for k in range(7):
            A(f"buffer_load_dwordx4 v[{DM}:{DM+3}], v7, {sWS}, s37 offen sc1"); A("s_add_u32 s37, s37, 1024")
        g.lab(l7)
        A(f"s_cmp_lg_u32 {sWAVE}, 5"); A(f"s_cbranch_scc1 {l5}")
        A(f"s_mov_b32 s37, {HG:#x}")
        A(f"buffer_load_dwordx4 v[{DM}:{DM+3}], v7, {sWS}, s37 offen sc1"); A(f"buffer_load_dwordx4 v[{DM}:{DM+3}], v7, {sWS}, s37 offen offset:1024 sc1")
        g.lab(l5)
        A(f"s_cmp_lg_u32 {sWAVE}, 6"); A(f"s_cbranch_scc1 {l6}")
        A(f"s_mul_i32 s37, {sRI}, {YSTR}"); A(f"s_add_u32 s37, s37, {YP:#x}")
        for k in range(4):
            A(f"buffer_load_dwordx4 v[{DM}:{DM+3}], v7, {sWS}, s37 offen sc1"); A("s_add_u32 s37, s37, 1024")
        g.lab(l6)
        g.lab(lpt)
    W1R = R0 + 64; W2R = R0 + 96; XPR = 68; APR = 72; AC = 88; XA = [ACC + i for i in range(8)]; PA = ACC + 8
    vFA = 48; vC = 49; vYA = 51
    def ffn_prep():
        A(f"v_lshlrev_b32 v7, 4, v{vLANE}"); A(f"s_mul_i32 s37, {sWAVE}, {7*1024}"); A("v_add_u32 v7, s37, v7")
        for j in range(7): A(f"ds_read_b128 v[{W1R+4*j}:{W1R+4*j+3}], v7 offset:{L_W1 + 1024*j}")
        for i in range(4): A(f"v_mov_b32 v{W1R+28+i}, 0")
        A(f"s_and_b32 s37, {sWAVE}, 3"); A("s_lshl_b32 s37, s37, 8"); A(f"s_lshr_b32 s38, {sWAVE}, 2"); A("s_lshl_b32 s38, s38, 15"); A("s_add_u32 s37, s37, s38"); A(f"s_add_u32 s37, s37, {L_W2}")
        A(f"v_lshlrev_b32 v8, 2, v{vLANE}"); A("v_add_u32 v8, s37, v8")
        for i in range(16): A(f"ds_read2st64_b32 v[{W2R+2*i}:{W2R+2*i+1}], v8 offset0:{8*i} offset1:{8*i+4}")
        for r_ in (vXH, vB2, vB1): A(f"v_lshlrev_b32 v{r_}, 16, v{r_}")
        for k in range(2):
            for e in range(4):
                x = XA[4*k+e]
                A(f"v_lshlrev_b32 v{x}, 2, v{vLANE}"); A(f"v_add_u32 v{x}, {4*56*k + e}, v{x}")
                A("s_movk_i32 s37, 1171"); A(f"v_mul_u32_u24 v9, s37, v{x}"); A("v_lshrrev_b32 v9, 16, v9")
                A(f"v_mul_u32_u24 v10, 56, v9"); A(f"v_sub_u32 v10, v{x}, v10")
                A(f"v_lshrrev_b32 v11, 4, v10"); A(f"v_lshl_add_u32 v9, v9, 2, v11")
                A("v_and_b32 v11, 7, v10"); A("v_lshl_add_u32 v9, v9, 3, v11")
                A("v_bfe_u32 v11, v10, 3, 1"); A("v_lshlrev_b32 v11, 1, v11"); A(f"v_lshl_add_u32 v{x}, v9, 2, v11")
        A("s_waitcnt lgkmcnt(0)")
        for jj in range(4):
            for i in range(4): perm_pair(g, W1R+8*jj+i, W1R+8*jj+4+i, 9)
        for i in range(16): perm_pair(g, W2R+2*i, W2R+2*i+1, 9)
        A(f"s_and_b32 s37, {sWAVE}, 3"); A("s_lshl_b32 s37, s37, 6"); A(f"v_add_u32 v{vC}, s37, v{vLANE}")
        A(f"v_lshrrev_b32 v{vFA}, 3, v{vC}"); A(f"s_movk_i32 s38, {FSTR}"); A(f"v_mul_lo_u32 v{vFA}, v{vFA}, s38"); A(f"v_and_b32 v9, 7, v{vC}"); A("v_lshlrev_b32 v9, 4, v9"); A(f"v_add_u32 v{vFA}, v{vFA}, v9")
        A(f"s_lshl_b32 s37, {sRI}, 1"); A(f"s_lshr_b32 s38, {sWAVE}, 2"); A("s_add_u32 s37, s37, s38"); A("s_lshl_b32 s37, s37, 7"); A(f"s_add_u32 s37, s37, {FP:#x}"); A(f"v_add_u32 v{vFA}, s37, v{vFA}")
    lnf = g.new("noffn")
    A(f"s_cmp_lt_u32 {sROLE}, 2"); A(f"s_cbranch_scc1 {lnf}")
    A(f"s_cmp_eq_u32 {sWAVE}, 5"); A(f"s_cselect_b32 s37, 1, 0"); A(f"s_cmp_eq_u32 {sWAVE}, 6"); A(f"s_cselect_b32 s37, 1, s37")
    A("s_cmp_eq_u32 s37, 0"); A(f"s_cbranch_scc1 {lnf}")
    ffn_prep()
    g.lab(lnf)
    A(f"v_lshrrev_b32 v{vYA}, 3, v0"); A(f"s_movk_i32 s38, {YSTR}"); A(f"v_mul_lo_u32 v{vYA}, v{vYA}, s38"); A("v_and_b32 v9, 7, v0"); A("v_lshlrev_b32 v9, 4, v9"); A(f"v_add_u32 v{vYA}, v{vYA}, v9")
    A(f"s_lshl_b32 s37, {sRI}, 7"); A(f"s_add_u32 s37, s37, {YP:#x}"); A(f"v_add_u32 v{vYA}, s37, v{vYA}")
    for i in range(8): A(f"v_mov_b32 v{PA+i}, 0")
    vLW = 52
    A(f"v_lshlrev_b32 v{vLW}, 5, v{vLANE}"); A(f"s_mul_i32 s37, {sWAVE}, 1792"); A(f"v_add_u32 v{vLW}, s37, v{vLW}")
    g.c("hop 1: combine the 16 partials of this wave's 16 dims")
    if dbg == 5: A("s_mov_b32 s92, 47"); tst(47)
    selpoll(g, [(g0, [T+11]), (g1, [T+15])], 9, 10, first_issued=True, sleep=H1SLEEP, dbgbase=48 if dbg == 5 else None)
    tst(18)
    for dst, src, ln in ((T, T+10, 0), (T+4, T+14, 0), (T+1, T+10, 1), (T+5, T+14, 1)):
        A(f"v_mov_b32_dpp v{dst}, v{src} row_newbcast:{ln} row_mask:0xf bank_mask:0x3")
    for dst, src, ln in ((T, T+10, 8), (T+4, T+14, 8), (T+1, T+10, 9), (T+5, T+14, 9)):
        A(f"v_mov_b32_dpp v{dst}, v{src} row_newbcast:{ln} row_mask:0xf bank_mask:0xc")
    A(f"v_max_f32 v9, v{T}, v{T+4}"); g.nop(2)
    allreduce_high(g, 9, 10, op="v_max_f32")
    A(f"v_sub_f32 v{T}, v{T}, v9"); A(f"v_sub_f32 v{T+4}, v{T+4}, v9")
    A(f"v_mul_f32 v{T}, {sC}, v{T}"); A(f"v_mul_f32 v{T+4}, {sC}, v{T+4}")
    A(f"v_exp_f32 v{T}, v{T}"); A(f"v_exp_f32 v{T+4}, v{T+4}"); g.nop(1)
    A(f"v_mul_f32 v{T+16}, v{T}, v{T+1}"); A(f"v_mul_f32 v{T+17}, v{T}, v{T+8}"); A(f"v_mul_f32 v{T+18}, v{T}, v{T+9}")
    A(f"v_fmac_f32 v{T+16}, v{T+4}, v{T+5}"); A(f"v_fmac_f32 v{T+17}, v{T+4}, v{T+12}"); A(f"v_fmac_f32 v{T+18}, v{T+4}, v{T+13}")
    g.nop(2)
    allreduce_high(g, [T+16, T+17, T+18], [T+19, T+20, T+21])
    A(f"v_rcp_f32 v{T+16}, v{T+16}"); g.nop(1)
    A(f"v_mul_f32 v{T+17}, v{T+17}, v{T+16}"); A(f"v_mul_f32 v{T+18}, v{T+18}, v{T+16}")
    A(f"v_cvt_pk_bf16_f32 v{T+20}, v{T+17}, v{T+18}"); g.nop(1)
    for i in range(8): A(f"v_readlane_b32 s{64+i}, v{T+20}, {i}")
    g.nop(1)
    tst(19)
    g.c("wo product for this wave's 16 rows (lanes < 56: 8 columns each)")
    for i in range(8):
        for e in range(4):
            A(f"v_dot2c_f32_bf16 v{PA+2*e}, s{64+i}, v{R0+8*i+e}")
            A(f"v_dot2c_f32_bf16 v{PA+2*e+1}, s{64+i}, v{R0+8*i+4+e}")
    A("s_mov_b32 exec_lo, -1"); A("s_mov_b32 exec_hi, 0x00ffffff"); g.nop(2)
    A(f"ds_write_b128 v{vLW}, v[{PA}:{PA+3}] offset:{L_YW}"); A(f"ds_write_b128 v{vLW}, v[{PA+4}:{PA+7}] offset:{L_YW+16}")
    A("s_mov_b64 exec, -1")
    A("s_waitcnt lgkmcnt(0)")
    A("s_barrier")
    tst(20)
    A(f"s_cmp_gt_u32 {sWAVE}, 3"); A("s_cbranch_scc1 L_ysent")
    A("v_lshlrev_b32 v8, 3, v0")
    for w in range(8): A(f"ds_read_b64 v[{T+2*w}:{T+2*w+1}], v8 offset:{L_YW+1792*w}")
    A(f"v_mov_b32 v{T+17}, {sTAG}"); A(f"v_mov_b32 v{T+19}, {sTAG}")
    A("v_cmp_gt_u32 vcc, 224, v0")
    A("s_waitcnt lgkmcnt(0)")
    for st in (4, 2, 1):
        for i in range(st): A(f"v_pk_add_f32 v[{T+2*i}:{T+2*i+1}], v[{T+2*i}:{T+2*i+1}], v[{T+2*(i+st)}:{T+2*(i+st)+1}]")
    A(f"v_mov_b32 v{T+16}, v{T}"); A(f"v_mov_b32 v{T+18}, v{T+1}")
    A("s_and_saveexec_b64 s[50:51], vcc")
    lstore(f"buffer_store_dwordx4 v[{T+16}:{T+19}], v{vYA}, {sWS}, 0 offen")
    A("s_mov_b64 exec, -1")
    tst(21)
    g.lab("L_ysent")
    A(f"s_cmp_lt_u32 {sROLE}, 2"); A("s_cbranch_scc1 L_end")
    def red16(a_, b_, t_):
        g.nop(2)
        A(f"v_permlane32_swap_b32 v{a_}, v{b_}"); g.nop(1)
        A(f"v_add_f32 v{a_}, v{a_}, v{b_}")
        A(f"v_mov_b32 v{t_}, v{a_}"); g.nop(2)
        A(f"v_permlane16_swap_b32 v{a_}, v{t_}"); g.nop(1)
        A(f"v_add_f32 v{a_}, v{a_}, v{t_}"); g.nop(2)
        dpp(g, "v_add_f32", a_, a_, a_, "row_ror:8"); g.nop(1)
    A(f"s_cmp_eq_u32 {sWAVE}, 5"); A("s_cbranch_scc1 L_a_ln")
    A(f"s_cmp_eq_u32 {sWAVE}, 6"); A("s_cbranch_scc1 L_yred")
    ffn_prep()
    A("s_branch L_a_wait")
    g.lab("L_yred")
    g.c("wave 6: reduce the 32 y partials of 16 columns -> h, publish")
    YG = T
    A(f"v_lshlrev_b32 v7, 4, v{vLANE}")
    A(f"s_mul_i32 s37, {sRI}, {YSTR}"); A(f"s_add_u32 s37, s37, {YP:#x}"); A("v_add_u32 v7, s37, v7")
    A(f"v_and_b32 v8, 7, v{vLANE}"); A("v_lshlrev_b32 v8, 1, v8"); A(f"v_lshrrev_b32 v11, 5, v{vLANE}"); A("v_add_u32 v8, v8, v11"); A("v_lshlrev_b32 v8, 2, v8")
    A(f"v_lshlrev_b32 v11, 3, v{vLANE}")
    A(f"s_lshl_b32 s46, {sRI}, 6"); A(f"s_add_u32 s46, s46, {HG:#x}")
    def mky(k):
        return lambda: A(f"buffer_load_dwordx4 v[{YG+4*k}:{YG+4*k+3}], v7, {sWS}, 0 offen{(' offset:%d' % (1024*k)) if k else ''} sc1")
    if dbg == 5: A("s_mov_b32 s92, 31"); tst(31)
    selpoll(g, [(mky(k), [YG+4*k+1, YG+4*k+3]) for k in range(4)], 9, 10, dbgbase=32 if dbg == 5 else None)
    tst(22)
    A(f"v_add_f32 v{YG}, v{YG}, v{YG+4}"); A(f"v_add_f32 v{YG+2}, v{YG+2}, v{YG+6}")
    A(f"v_add_f32 v{YG+8}, v{YG+8}, v{YG+12}"); A(f"v_add_f32 v{YG+10}, v{YG+10}, v{YG+14}")
    A(f"v_add_f32 v{YG}, v{YG}, v{YG+8}"); A(f"v_add_f32 v{YG+2}, v{YG+2}, v{YG+10}")
    red16(YG, YG+2, 9)
    bf16r(g, YG, YG)
    A(f"v_add_f32 v{YG}, v{YG}, v{vXH}")
    bf16r(g, YG, YG)
    A(f"v_mov_b32 v9, v{YG}"); A(f"v_mov_b32 v10, v{YG}")
    A(f"v_mov_b32 v{T+5}, {sTAG}"); A(f"v_mov_b32 v{T+7}, {sTAG}")
    A("v_permlane32_swap_b32 v9, v10"); g.nop(1)
    A(f"v_lshrrev_b32 v{T+4}, 16, v9"); A(f"v_or_b32 v{T+4}, v{T+4}, v10"); g.nop(2)
    A(f"v_mov_b32_dpp v{T+6}, v{T+4} quad_perm:[1,0,3,2] row_mask:0xf bank_mask:0xf")
    A("s_mov_b64 exec, 0x55")
    lstore(f"buffer_store_dwordx4 v[{T+4}:{T+7}], v11, {sWS}, s46 offen")
    A("s_mov_b32 exec_lo, 0xff"); A("s_mov_b32 exec_hi, 0xff")
    A(f"ds_write_b32 v8, v{YG} offset:{L_HV}")
    A("s_mov_b64 exec, -1")
    tst(24)
    A("s_branch L_a_wait")
    g.lab("L_a_ln")
    g.c("wave 5: gather h, layernorm, write xln pairs")
    A(f"v_lshlrev_b32 v7, 4, v{vLANE}"); A(f"v_add_u32 v7, {HG:#x}, v7")
    for i in range(8): A(f"v_mov_b32 v{T+i}, {sTAG}")
    A("s_mov_b32 exec_lo, -1"); A("s_mov_b32 exec_hi, 0x00ffffff")
    def hg_loads():
        A(f"buffer_load_dwordx4 v[{T}:{T+3}], v7, {sWS}, 0 offen sc1")
        A(f"buffer_load_dwordx4 v[{T+4}:{T+7}], v7, {sWS}, 0 offen offset:896 sc1")
    poll(g, hg_loads, [T+1, T+3, T+5, T+7], 9, 10)
    A("s_mov_b64 exec, -1")
    tst(25)
    A("s_mov_b32 s44, -1"); A("s_mov_b32 s45, 0x00ffffff")
    PK = [T, T+2, T+4, T+6]
    layernorm_pk(g, PK, T+8, [7, 8, 9, 10, 11, 3], "s[44:45]")
    A("s_mov_b64 exec, s[44:45]")
    for p in range(4):
        A(f"ds_write_b16 v{XA[2*p]}, v{PK[p]} offset:{L_XP}")
        A(f"ds_write_b16_d16_hi v{XA[2*p+1]}, v{PK[p]} offset:{L_XP}")
    A("s_mov_b64 exec, -1")
    g.lab("L_a_wait")
    A(f"v_lshrrev_b32 v7, 3, v{vLANE}"); A("v_lshlrev_b32 v7, 2, v7"); A(f"s_lshl_b32 s37, {sWAVE}, 7"); A("v_add_u32 v7, s37, v7")
    for i in range(8): A(f"v_mov_b32 v{AC+i}, 0")
    A("s_waitcnt lgkmcnt(0)")
    A("s_barrier")
    tst(26)
    for jj in range(4): A(f"ds_read_b32 v{XPR+jj}, v7 offset:{L_XP + 32*jj}")
    A(f"v_lshlrev_b32 v10, 2, v{vLANE}"); A(f"s_lshl_b32 s37, {sWAVE}, 8"); A("v_add_u32 v11, s37, v10")
    A("s_waitcnt lgkmcnt(0)")
    for jj in range(4):
        for i in range(4):
            A(f"v_dot2c_f32_bf16 v{AC+2*i}, v{W1R+8*jj+i}, v{XPR+jj}")
            A(f"v_dot2c_f32_bf16 v{AC+2*i+1}, v{W1R+8*jj+4+i}, v{XPR+jj}")
    r = reduce_scatter(g, [AC+i for i in range(8)], [32, 16, 8])[0]
    A(f"ds_write_b32 v11, v{r} offset:{L_AP}")
    A(f"v_and_b32 v8, 7, v{vLANE}"); A("v_lshlrev_b32 v8, 4, v8"); A(f"v_lshrrev_b32 v9, 3, v{vLANE}"); A("v_lshlrev_b32 v9, 1, v9"); A("v_add_u32 v8, v8, v9")
    A(f"s_lshr_b32 s37, {sWAVE}, 2"); A("s_lshl_b32 s37, s37, 6"); A("v_mov_b32 v9, s37")
    A("s_waitcnt lgkmcnt(0)")
    A("s_barrier")
    tst(27)
    for w in range(8): A(f"ds_read_b32 v{AC+w}, v10 offset:{L_AP + 256*w}")
    A(f"v_mov_b32 v{T+1}, {sTAG}"); A(f"v_mov_b32 v{T+3}, {sTAG}")
    A(f"v_cmp_gt_u32 vcc, 224, v{vC}")
    A("s_waitcnt lgkmcnt(0)")
    for st in (4, 2, 1):
        for i in range(st): A(f"v_add_f32 v{AC+i}, v{AC+i}, v{AC+i+st}")
    bf16r(g, AC, AC)
    A(f"v_add_f32 v{AC}, v{AC}, v{vB1}")
    bf16r(g, AC, AC)
    A(f"v_max_f32 v{AC}, 0, v{AC}")
    A(f"v_mul_f32 v{AC}, v{AC}, v{AC}")
    A(f"v_cvt_pk_bf16_f32 v{AC}, v{AC}, v{AC}")
    A(f"ds_write_b16 v8, v{AC} offset:{L_AL}")
    A("s_waitcnt lgkmcnt(0)")
    for i in range(4): A(f"ds_read_b128 v[{APR+4*i}:{APR+4*i+3}], v9 offset:{L_AL + 16*i}")
    for i in range(8): A(f"v_mov_b32 v{AC+i}, 0")
    A("s_waitcnt lgkmcnt(0)")
    for i in range(16):
        A(f"v_dot2c_f32_bf16 v{AC+(i&3)}, v{W2R+2*i}, v{APR+i}")
        A(f"v_dot2c_f32_bf16 v{AC+4+(i&3)}, v{W2R+2*i+1}, v{APR+i}")
    A("s_and_saveexec_b64 s[50:51], vcc"); g.nop(2)
    A(f"v_add_f32 v{AC}, v{AC}, v{AC+1}"); A(f"v_add_f32 v{AC+2}, v{AC+2}, v{AC+3}"); A(f"v_add_f32 v{AC+4}, v{AC+4}, v{AC+5}"); A(f"v_add_f32 v{AC+6}, v{AC+6}, v{AC+7}")
    A(f"v_add_f32 v{T}, v{AC}, v{AC+2}"); A(f"v_add_f32 v{T+2}, v{AC+4}, v{AC+6}")
    A("s_cbranch_execz L_a_nost")
    lstore(f"buffer_store_dwordx4 v[{T}:{T+3}], v{vFA}, {sWS}, 0 offen")
    g.lab("L_a_nost")
    A("s_mov_b64 exec, -1")
    tst(28)
    A(f"s_cmp_lg_u32 {sWAVE}, 7"); A("s_cbranch_scc1 L_end")
    g.c("wave 7: final reduce of the 56 partials for 16 columns")
    FG = R0
    A(f"v_lshlrev_b32 v7, 4, v{vLANE}")
    A(f"s_mul_i32 s37, {sRI}, {FSTR}"); A(f"s_add_u32 s37, s37, {FP:#x}"); A("v_add_u32 v7, s37, v7")
    A("s_movk_i32 s43, 0x1000")
    A(f"v_and_b32 v8, 7, v{vLANE}"); A("v_lshlrev_b32 v8, 1, v8"); A(f"v_lshrrev_b32 v11, 5, v{vLANE}"); A("v_add_u32 v8, v8, v11")
    A(f"v_lshlrev_b32 v11, 2, v8"); A(f"ds_read_b32 v{T+8}, v11 offset:{L_HV}")
    A(f"v_lshlrev_b32 v{T+9}, 1, v8")
    srd(g, 16, 84, 896)
    def mkf(k):
        so = "0" if k < 4 else "s43"
        off = f" offset:{1024*(k&3)}" if (k & 3) else ""
        return lambda: A(f"buffer_load_dwordx4 v[{FG+4*k}:{FG+4*k+3}], v7, {sWS}, {so} offen{off} sc1")
    if dbg == 5: A("s_mov_b32 s92, 39"); tst(30)
    selpoll(g, [(mkf(k), [FG+4*k+1, FG+4*k+3]) for k in range(7)], 9, 10, dbgbase=40 if dbg == 5 else None)
    tst(29)
    for e in (0, 2):
        A(f"v_add_f32 v{FG+e}, v{FG+e}, v{FG+4+e}"); A(f"v_add_f32 v{FG+8+e}, v{FG+8+e}, v{FG+12+e}"); A(f"v_add_f32 v{FG+16+e}, v{FG+16+e}, v{FG+20+e}")
    for e in (0, 2):
        A(f"v_add_f32 v{FG+e}, v{FG+e}, v{FG+8+e}"); A(f"v_add_f32 v{FG+16+e}, v{FG+16+e}, v{FG+24+e}")
    for e in (0, 2): A(f"v_add_f32 v{FG+e}, v{FG+e}, v{FG+16+e}")
    red16(FG, FG+2, 9)
    bf16r(g, FG, FG)
    A(f"v_add_f32 v{FG}, v{FG}, v{vB2}")
    bf16r(g, FG, FG)
    A("s_waitcnt lgkmcnt(0)")
    A(f"v_add_f32 v{FG}, v{FG}, v{T+8}")
    A(f"v_cvt_pk_bf16_f32 v{FG}, v{FG}, v{FG}")
    A(f"s_lshl_b32 s37, {sRI}, 5")
    A("s_mov_b32 exec_lo, 0xff"); A("s_mov_b32 exec_hi, 0xff")
    A(f"buffer_store_short v{FG}, v{T+9}, {sT1}, s37 offen")
    A(f"s_cmp_lg_u32 {sRI}, 0"); A("s_cbranch_scc1 L_end")
    A(f"s_add_u32 s38, {sEP}, 1"); A("v_mov_b32 v8, s38"); A("v_mov_b32 v9, 0")
    A("s_mov_b64 exec, 1")
    A(f"buffer_store_dword v8, v9, {sWS}, 0 offen sc1")
    g.lab("L_end")
    if dbg == 4:
        A("s_mov_b64 exec, -1")
        stamp(9)
    if dbg and dbg != 4:
        A("s_mov_b64 exec, -1")
        stamp(9)
        if dbg not in (3, 5): A("s_mov_b64 exec, 0xffff")
        A(f"s_lshl_b32 s37, s2, 3"); A(f"s_add_u32 s37, s37, {sWAVE}"); A(f"s_lshl_b32 s37, s37, {8 if dbg in (3, 5) else 6}"); A(f"s_add_u32 s37, s37, {DBG:#x}")
        A(f"v_lshlrev_b32 v7, 2, v{vLANE}")
        A(f"buffer_store_dword v{vSTAMP}, v7, {sWS}, s37 offen")
    g.lab("L_exit")
    A("s_endpgm")
    if GNT:
        for i, l in enumerate(g.L):
            if l.rstrip().endswith("sc1"):
                if "buffer_store" in l and (GNT & 1): g.L[i] = l + " nt"
                if "buffer_load" in l and (GNT & 2): g.L[i] = l + " nt"
    hdr = open("cdna_kernels/" + NAME + ".s.ref").read().split("\n")
    head = []
    for l in hdr:
        if l.startswith("; @launch"): head.append(f"; @launch grid=(256,1,1) block=(512,1,1) lds={LDS_BYTES}")
        elif l.startswith(";"): head.append(l)
        else: break
    return "\n".join(head) + f"""
.amdgcn_target "amdgcn-amd-amdhsa--gfx950"
.text
.globl {NAME}_kernel
.p2align 8
.type {NAME}_kernel,@function
{NAME}_kernel:
""" + "\n".join(g.L) + f"""
.section .rodata,"a"
.p2align 6
.amdhsa_kernel {NAME}_kernel
  .amdhsa_next_free_vgpr 256
  .amdhsa_next_free_sgpr 102
  .amdhsa_accum_offset 256
  .amdhsa_group_segment_fixed_size 0
  .amdhsa_kernarg_size 104
  .amdhsa_user_sgpr_count 2
  .amdhsa_user_sgpr_kernarg_segment_ptr 1
  .amdhsa_system_sgpr_workgroup_id_x 1
  .amdhsa_float_denorm_mode_32 3
.end_amdhsa_kernel
"""
if __name__ == "__main__":
    out = sys.argv[1] if len(sys.argv) > 1 else "k/v3.s"
    kw = {}
    for a in sys.argv[2:]:
        k, v = a.split("="); kw[k] = int(v)
    open(out, "w").write(generate(**kw))
    open(out.replace(".s", "_dbg.s"), "w").write(generate(dbg=1, **kw))
    open(out.replace(".s", "_lt.s"), "w").write(generate(dbg=2, **kw))
    open(out.replace(".s", "_st.s"), "w").write(generate(dbg=3, **kw))
    open(out.replace(".s", "_hb.s"), "w").write(generate(dbg=4, **kw))
    open(out.replace(".s", "_tl.s"), "w").write(generate(dbg=5, **kw))
    print("wrote", out)
```

```python
import struct, sys, math
NAME = "sequential_preLN__mha_block_cached__dense_activation_squared_relu__decode"
def f2u(x): return struct.unpack("<I", struct.pack("<f", x))[0]
CSC = f2u(0.0625 * math.log2(math.e)); EPS = f2u(1e-5); INVN = f2u(1.0 / 448.0); NEG_BIG = f2u(-3.0e38)

EPOCH = 0x0
ST = 0x200000
OP = 0x10000
HG = 0x98000
FP = 0x9A000
XG = 0x9800
QP = 0xD0000
YSTR = 4096 + 128
FSTR = 7168 + 128
YP = 0x100000
CNT = 0x1E8000
DBG = 0x300000
L_Q = 0x0; L_TAG = 0x200; L_ST = 0x400; L_OB = 0x480; L_CL = 0x4C0; L_HV = 0x600; L_AL = 0x500; L_O = 0x800; L_HP = 0x2800
L_XP = 0x2A00
L_X = 0x3000
L_AP = 0x3800
L_YW = 0x4000; L_W1 = 0x8000; L_W2 = 0x16000
LDS_BYTES = 0x26000

class Gen:
    def __init__(self): self.L = []; self.uid = 0
    def A(self, s): self.L.append("    " + s)
    def lab(self, s): self.L.append(s + ":")
    def c(self, s): self.L.append("    ; " + s)
    def new(self, p): self.uid += 1; return f"L_{p}_{self.uid}"
    def nop(self, n):
        if n > 0: self.A(f"s_nop {n-1}")

sKS = "s[4:7]"; sVS = "s[8:11]"; sWS = "s[12:15]"; sT1 = "s[16:19]"; sT2 = "s[20:23]"
sWAVE = "s24"; sH = "s25"; sS = "s26"; sTAG = "s27"; sEP = "s28"; sBASE = "s29"; sBUD = "s30"
sLAM = "s31"; sZ = "s32"; sC = "s33"; sSTEP = "s34"; sROLE = "s35"; sRI = "s36"
sGO = "s70"; sI0 = "s71"; sLIM = "s74"; sDC = "s75"; sBASE0 = "s59"; sMK = {2: ("s60", "s61"), 3: ("s62", "s63")}; sMC = {2: ("s76", "s77"), 3: ("s78", "s79")}
sNXT = "s52"; sV2 = "s53"; sV3 = "s54"; sLAM0 = "s55"; sROT = "s56"
vLANE = 1; vOFF = 2; vM = 4; vMC = 5; vL = 6
Q = 16; ACC = 32; RING = 96; TMP = 224
vXH = 64; vB2 = 65; vB1 = 66; vSTAMP = 251
sLOC = "s57"
R0 = RING
D = 4

def srd(g, dst, lo, nbytes):
    g.A(f"s_mov_b32 s{dst}, s{lo}"); g.A(f"s_mov_b32 s{dst+1}, s{lo+1}")
    g.A(f"s_mov_b32 s{dst+2}, {nbytes:#x}"); g.A(f"s_mov_b32 s{dst+3}, 0x20000")
def bf16r(g, dst, src, tmp=None):
    tmp = dst if tmp is None else tmp
    g.A(f"v_cvt_pk_bf16_f32 v{tmp}, v{src}, v{src}")
    g.A(f"v_and_b32 v{dst}, 0xffff0000, v{tmp}")
def dpp(g, op, dst, src0, src1, ctrl, rm=0xf, bm=0xf):
    g.A(f"{op}_dpp v{dst}, v{src0}, v{src1} {ctrl} row_mask:{rm:#x} bank_mask:{bm:#x}")
def wave_sum2(g, a, b, sa, sb):
    g.nop(2)
    for ctrl in ("row_ror:8", "row_ror:4", "row_ror:2", "row_ror:1"):
        dpp(g, "v_add_f32", a, a, a, ctrl); dpp(g, "v_add_f32", b, b, b, ctrl); g.nop(1)
    dpp(g, "v_add_f32", a, a, a, "row_bcast:15", rm=0xa); dpp(g, "v_add_f32", b, b, b, "row_bcast:15", rm=0xa); g.nop(1)
    dpp(g, "v_add_f32", a, a, a, "row_bcast:31", rm=0xc); dpp(g, "v_add_f32", b, b, b, "row_bcast:31", rm=0xc); g.nop(1)
    g.A(f"v_readlane_b32 {sa}, v{a}, 63"); g.A(f"v_readlane_b32 {sb}, v{b}, 63")
    g.nop(2)
def layernorm(g, vals, t, masked=None):
    c, s1, s2, y, mean, rs = t[:6]
    g.A(f"v_readfirstlane_b32 s37, v{vals[0]}")
    g.A(f"v_mov_b32 v{s1}, 0"); g.A(f"v_mov_b32 v{s2}, 0")
    if masked: g.A(f"s_mov_b64 exec, {masked}")
    for v in vals:
        g.A(f"v_subrev_f32 v{y}, s37, v{v}")
        g.A(f"v_add_f32 v{s1}, v{s1}, v{y}")
        g.A(f"v_fmac_f32 v{s2}, v{y}, v{y}")
    if masked: g.A("s_mov_b64 exec, -1")
    wave_sum2(g, s1, s2, "s38", "s39")
    g.A(f"s_mov_b32 s40, {INVN:#x}")
    g.A(f"v_mul_f32 v{y}, s38, v{rs}") if False else None
    g.A(f"v_mov_b32 v{y}, s38"); g.A(f"v_mov_b32 v{s2}, s39")
    g.A(f"v_mul_f32 v{y}, s40, v{y}"); g.A(f"v_mul_f32 v{s2}, s40, v{s2}")
    g.A(f"v_add_f32 v{mean}, s37, v{y}")
    g.A(f"v_fma_f32 v{s2}, -v{y}, v{y}, v{s2}")
    g.A(f"v_max_f32 v{s2}, 0, v{s2}")
    bf16r(g, mean, mean)
    bf16r(g, s2, s2)
    g.A(f"v_add_f32 v{s2}, {EPS:#x}, v{s2}")
    bf16r(g, s2, s2)
    g.A(f"v_sqrt_f32 v{s2}, v{s2}")
    for v in vals: g.A(f"v_sub_f32 v{v}, v{v}, v{mean}")
    bf16r(g, s2, s2)
    g.A(f"v_rcp_f32 v{rs}, v{s2}")
    for v in vals: bf16r(g, v, v)
    for v in vals:
        g.A(f"v_mul_f32 v{y}, v{v}, v{rs}")
        g.A(f"v_fma_f32 v{v}, -v{y}, v{s2}, v{v}")
        g.A(f"v_fma_f32 v{v}, v{v}, v{rs}, v{y}")
    for v in vals: bf16r(g, v, v)
def layernorm_pk(g, pk, w, t, masked):
    c, s1, s2, y, mean, rs = t[:6]
    for i in range(4):
        g.A(f"v_lshlrev_b32 v{w+2*i}, 16, v{pk[i]}"); g.A(f"v_and_b32 v{w+2*i+1}, 0xffff0000, v{pk[i]}")
    g.A(f"v_readfirstlane_b32 s37, v{w}")
    g.A(f"v_mov_b32 v{s1}, 0"); g.A(f"v_mov_b32 v{s2}, 0")
    g.A(f"s_mov_b64 exec, {masked}")
    for i in range(8):
        g.A(f"v_subrev_f32 v{y}, s37, v{w+i}")
        g.A(f"v_add_f32 v{s1}, v{s1}, v{y}")
        g.A(f"v_fmac_f32 v{s2}, v{y}, v{y}")
    g.A("s_mov_b64 exec, -1")
    wave_sum2(g, s1, s2, "s38", "s39")
    g.A(f"s_mov_b32 s40, {INVN:#x}")
    g.A(f"v_mov_b32 v{y}, s38"); g.A(f"v_mov_b32 v{s2}, s39")
    g.A(f"v_mul_f32 v{y}, s40, v{y}"); g.A(f"v_mul_f32 v{s2}, s40, v{s2}")
    g.A(f"v_add_f32 v{mean}, s37, v{y}")
    g.A(f"v_fma_f32 v{s2}, -v{y}, v{y}, v{s2}")
    g.A(f"v_cvt_pk_bf16_f32 v{mean}, v{mean}, v{mean}")
    g.A(f"v_max_f32 v{s2}, 0, v{s2}")
    g.A(f"v_and_b32 v{mean}, 0xffff0000, v{mean}")
    bf16r(g, s2, s2)
    g.A(f"v_add_f32 v{s2}, {EPS:#x}, v{s2}")
    for i in range(0, 4): g.A(f"v_sub_f32 v{w+i}, v{w+i}, v{mean}")
    bf16r(g, s2, s2)
    g.A(f"v_sqrt_f32 v{s2}, v{s2}")
    for i in range(4, 8): g.A(f"v_sub_f32 v{w+i}, v{w+i}, v{mean}")
    bf16r(g, s2, s2)
    g.A(f"v_rcp_f32 v{rs}, v{s2}")
    for i in range(4): g.A(f"v_cvt_pk_bf16_f32 v{pk[i]}, v{w+2*i}, v{w+2*i+1}")
    for i in range(4):
        g.A(f"v_lshlrev_b32 v{w+2*i}, 16, v{pk[i]}"); g.A(f"v_and_b32 v{w+2*i+1}, 0xffff0000, v{pk[i]}")
    for i in range(8): g.A(f"v_mul_f32 v{w+8+i}, v{w+i}, v{rs}")
    for i in range(8): g.A(f"v_fma_f32 v{w+i}, -v{w+8+i}, v{s2}, v{w+i}")
    for i in range(8): g.A(f"v_fma_f32 v{w+i}, v{w+i}, v{rs}, v{w+8+i}")
    for i in range(4): g.A(f"v_cvt_pk_bf16_f32 v{pk[i]}, v{w+2*i}, v{w+2*i+1}")
def reduce_scatter(g, regs, stages, pre=3):
    regs = list(regs)
    g.nop(pre)
    for st in stages:
        h = len(regs) // 2
        lo, hi = regs[:h], regs[h:]
        if st in (32, 16):
            for a, b in zip(lo, hi): g.A(f"v_permlane{st}_swap_b32 v{a}, v{b}")
            g.nop(1 if h > 1 else 2)
            if h >= 2 and lo[0] % 2 == 0 and hi[0] % 2 == 0 and lo == list(range(lo[0], lo[0] + h)) and hi == list(range(hi[0], hi[0] + h)):
                for j in range(0, h, 2): g.A(f"v_pk_add_f32 v[{lo[j]}:{lo[j]+1}], v[{lo[j]}:{lo[j]+1}], v[{hi[j]}:{hi[j]+1}]")
                g.nop(2)
            else:
                for a, b in zip(lo, hi): g.A(f"v_add_f32 v{a}, v{a}, v{b}")
                g.nop(max(0, 2 - (h - 1 - h // 2)))
        elif st == 8:
            for a, b in zip(lo, hi): dpp(g, "v_add_f32", a, a, a, "row_ror:8", bm=0x3)
            for a, b in zip(lo, hi): dpp(g, "v_add_f32", a, b, b, "row_ror:8", bm=0xc)
            g.nop(2)
        elif st == 4:
            for a, b in zip(lo, hi): dpp(g, "v_add_f32", a, a, a, "row_shl:4", bm=0x5)
            for a, b in zip(lo, hi): dpp(g, "v_add_f32", a, b, b, "row_shr:4", bm=0xa)
            g.nop(2)
        regs = lo
    return regs
def allreduce_low(g, r, bits, op="v_add_f32"):
    for b in bits:
        ctrl = {0: "quad_perm:[1,0,3,2]", 1: "quad_perm:[2,3,0,1]", 2: "row_half_mirror"}[b]
        dpp(g, op, r, r, r, ctrl); g.nop(2)
def allreduce_high(g, regs, tmps, op="v_add_f32"):
    if not isinstance(regs, list): regs = [regs]; tmps = [tmps]
    n = len(regs)
    for r in regs: dpp(g, op, r, r, r, "row_ror:8")
    for st in (16, 32):
        for r, t in zip(regs, tmps): g.A(f"v_mov_b32 v{t}, v{r}")
        g.nop(max(0, 3 - n) if n > 1 else 2)
        for r, t in zip(regs, tmps): g.A(f"v_permlane{st}_swap_b32 v{r}, v{t}")
        g.nop(1)
        for r, t in zip(regs, tmps): g.A(f"{op} v{r}, v{r}, v{t}")
    g.nop(2)
def poll(g, emit_loads, tagregs, t0, t1, sleep=0):
    lp = g.new("poll"); ok = g.new("ok")
    g.lab(lp)
    emit_loads()
    g.A("s_waitcnt vmcnt(0)")
    g.A(f"v_xor_b32 v{t0}, {sTAG}, v{tagregs[0]}")
    for t in tagregs[1:]:
        g.A(f"v_xor_b32 v{t1}, {sTAG}, v{t}")
        g.A(f"v_or_b32 v{t0}, v{t0}, v{t1}")
    g.A(f"v_cmp_ne_u32 vcc, 0, v{t0}")
    g.A(f"s_cbranch_vccz {ok}")
    if sleep: g.A(f"s_sleep {sleep}")
    g.A(f"s_sub_u32 {sBUD}, {sBUD}, 1")
    g.A(f"s_cbranch_scc0 {lp}")
    g.A(f"s_mov_b32 {sBUD}, 0")
    g.lab(ok)
def selpoll(g, groups, t0, t1, sflags="s49", first_issued=False, sleep=0, dbgbase=None):
    n = len(groups)
    lp = g.new("sp"); ok = g.new("spok"); chk = g.new("spchk")
    g.A(f"s_mov_b32 {sflags}, {(1 << n) - 1}")
    if first_issued: g.A(f"s_branch {chk}")
    g.lab(lp)
    for i, (ld, tags) in enumerate(groups):
        sk = g.new("sk")
        g.A(f"s_bitcmp1_b32 {sflags}, {i}"); g.A(f"s_cbranch_scc0 {sk}")
        ld()
        g.lab(sk)
    g.lab(chk)
    g.A("s_waitcnt vmcnt(0)")
    if dbgbase is not None:
        g.A("s_memrealtime s[90:91]"); g.A("s_waitcnt lgkmcnt(0)")
        g.A("s_add_u32 s92, s92, 1"); g.A(f"s_min_u32 m0, s92, {dbgbase+7}"); g.A("s_nop 0")
        g.A(f"v_writelane_b32 v{vSTAMP}, s90, m0")
    for i, (ld, tags) in enumerate(groups):
        sk = g.new("sc")
        g.A(f"s_bitcmp1_b32 {sflags}, {i}"); g.A(f"s_cbranch_scc0 {sk}")
        if len(tags) == 1:
            g.A(f"v_cmp_ne_u32 vcc, {sTAG}, v{tags[0]}")
        else:
            g.A(f"v_xor_b32 v{t0}, {sTAG}, v{tags[0]}")
            for t in tags[1:]:
                g.A(f"v_xor_b32 v{t1}, {sTAG}, v{t}"); g.A(f"v_or_b32 v{t0}, v{t0}, v{t1}")
            g.A(f"v_cmp_ne_u32 vcc, 0, v{t0}")
        g.A(f"s_cbranch_vccnz {sk}")
        g.A(f"s_bitset0_b32 {sflags}, {i}")
        g.lab(sk)
    g.A(f"s_cmp_eq_u32 {sflags}, 0"); g.A(f"s_cbranch_scc1 {ok}")
    if sleep: g.A(f"s_sleep {sleep}")
    g.A(f"s_sub_u32 {sBUD}, {sBUD}, 1")
    g.A(f"s_cbranch_scc0 {lp}")
    g.A(f"s_mov_b32 {sBUD}, 0")
    g.lab(ok)
def pipepoll(g, n, emit_load, final, setA, setB, tagoffs, t0, scratch, stagger, first_in_final=False, sflags="s49"):
    done = g.new("ppd"); lp = g.new("ppl")
    def check(base, copy):
        for i in range(n):
            sk = g.new("pc")
            g.A(f"s_bitcmp1_b32 {sflags}, {i}"); g.A(f"s_cbranch_scc0 {sk}")
            r = base + 4*i
            if len(tagoffs) == 1:
                g.A(f"v_cmp_ne_u32 vcc, {sTAG}, v{r+tagoffs[0]}")
            else:
                g.A(f"v_xor_b32 v{t0}, {sTAG}, v{r+tagoffs[0]}"); g.A(f"v_xor_b32 v{t0+1}, {sTAG}, v{r+tagoffs[1]}")
                g.A(f"v_or_b32 v{t0}, v{t0}, v{t0+1}"); g.A(f"v_cmp_ne_u32 vcc, 0, v{t0}")
            g.A(f"s_cbranch_vccnz {sk}")
            g.A(f"s_bitset0_b32 {sflags}, {i}")
            if copy:
                for e in range(4):
                    if e not in tagoffs: g.A(f"v_mov_b32 v{final+4*i+e}, v{r+e}")
            g.lab(sk)
    def issue(base):
        for i in range(n):
            dm = g.new("pi"); nx = g.new("pn")
            g.A(f"s_bitcmp1_b32 {sflags}, {i}"); g.A(f"s_cbranch_scc0 {dm}")
            emit_load(i, base + 4*i); g.A(f"s_branch {nx}")
            g.lab(dm)
            g.A("s_mov_b64 exec, 1"); g.A(f"buffer_load_dword v{scratch}, v{scratch+1}, {sWS}, 0 offen"); g.A("s_mov_b64 exec, -1")
            g.lab(nx)
    g.A(f"s_mov_b32 {sflags}, {(1 << n) - 1}")
    g.A(f"v_mov_b32 v{scratch+1}, 0x7ff00000")
    if first_in_final:
        g.A("s_waitcnt vmcnt(0)")
        check(final, False)
        g.A(f"s_cmp_eq_u32 {sflags}, 0"); g.A(f"s_cbranch_scc1 {done}")
    issue(setA)
    if stagger: g.A(f"s_sleep {stagger}")
    g.lab(lp)
    issue(setB)
    g.A(f"s_waitcnt vmcnt({n})")
    check(setA, True)
    g.A(f"s_cmp_eq_u32 {sflags}, 0"); g.A(f"s_cbranch_scc1 {done}")
    issue(setA)
    g.A(f"s_waitcnt vmcnt({n})")
    check(setB, True)
    g.A(f"s_cmp_eq_u32 {sflags}, 0"); g.A(f"s_cbranch_scc1 {done}")
    g.A(f"s_sub_u32 {sBUD}, {sBUD}, 1")
    g.A(f"s_cbranch_scc0 {lp}")
    g.A(f"s_mov_b32 {sBUD}, 0")
    g.lab(done)
def perm_pair(g, a, b, tmp):
    g.A(f"v_perm_b32 v{tmp}, v{b}, v{a}, s41")
    g.A(f"v_perm_b32 v{b}, v{b}, v{a}, s42")
    g.A(f"v_mov_b32 v{a}, v{tmp}")

def generate(dbg=False, B0=1, TLBW=0, X5=1, ADF=0, HALF=0, RWX=16, ROT=48, BAR=1, H1SLEEP=0, PACE=4, NS=25, COMP=14, QPRE=3, PRE=4, QD=0, H1N=14, CPF=16, CPFN=3, SD=0, NOCOMP=0, FAKE=0, LOOK=1, CSTR=4352, AFL=2, GNT=0, TOUCH=0, NOLOC=0, TPF=0, PT=3, PTD=0, PP=3, PPS1=5, PPS2=7):
    g = Gen(); A = g.A
    HF = 512 - HALF
    NIT = HF + 2*HALF
    def stepstamp():
        if dbg == 3:
            A("s_memrealtime s[90:91]"); A("s_waitcnt lgkmcnt(0)")
            A("s_add_u32 s92, s92, 1"); A("s_min_u32 m0, s92, 63"); A("s_nop 0")
            A(f"v_writelane_b32 v{vSTAMP}, s90, m0")
    def hstamp(slot, cond_id, wave=0):
        if dbg == 4:
            l = g.new("hs")
            A(f"s_cmp_lg_u32 s2, {cond_id}"); A(f"s_cbranch_scc1 {l}")
            A(f"s_cmp_lg_u32 {sWAVE}, {wave}"); A(f"s_cbranch_scc1 {l}")
            A("s_memrealtime s[90:91]"); A("s_waitcnt lgkmcnt(0)")
            A("s_mov_b32 s96, s86"); A("s_mov_b32 s97, s87"); A("s_mov_b32 s98, 256"); A("s_mov_b32 s99, 0x20000")
            A(f"v_mov_b32 v252, s90"); A(f"v_mov_b32 v253, {4*slot}")
            A("s_mov_b64 s[92:93], exec"); A("s_mov_b64 exec, 1")
            A("buffer_store_dword v252, v253, s[96:99], 0 offen")
            A("s_mov_b64 exec, s[92:93]")
            g.lab(l)
    def tst(i):
        if dbg == 5:
            A("s_memrealtime s[90:91]"); A("s_waitcnt lgkmcnt(0)")
            A(f"v_writelane_b32 v{vSTAMP}, s90, {i}")
    def code_pf(wave, lab_from, lab_to, n, vd):
        l = g.new("cpf"); lp = g.new("cpc")
        A(f"s_cmp_lg_u32 {sWAVE}, {wave}"); A(f"s_cbranch_scc1 {l}")
        A("s_getpc_b64 s[96:97]")
        g.lab(lp)
        A(f"s_add_u32 s96, s96, {lab_from}-{lp}"); A("s_addc_u32 s97, s97, 0")
        A(f"v_lshlrev_b32 v3, 7, v{vLANE}")
        A(f"s_mov_b32 s98, {lab_to}-{lab_from}")
        le = g.new("cpe")
        for i in range(n):
            A("v_cmp_gt_u32 vcc, s98, v3"); A("s_and_b64 exec, exec, vcc")
            A(f"s_cbranch_execz {le}")
            A(f"global_load_dword v{vd}, v3, s[96:97]")
            A("v_add_u32 v3, 0x2000, v3")
        g.lab(le)
        A("s_mov_b64 exec, -1")
        g.lab(l)
    def stamp(i):
        if dbg == 5:
            if i in (3, 9): tst(i)
            return
        if dbg == 4:
            if i == 2:
                hstamp(2, 0); hstamp(3, 255)
            if i == 3:
                hstamp(4, 0); hstamp(5, 77); hstamp(6, 130); hstamp(7, 255)
            if i == 9:
                hstamp(8, 3); hstamp(9, 0); hstamp(10, 19)
            return
        if dbg == 3 and i in (3, 9):
            A("s_memrealtime s[90:91]"); A("s_waitcnt lgkmcnt(0)")
            A(f"v_writelane_b32 v{vSTAMP}, s90, {i}")
        if dbg == 1 or (dbg == 2 and i in (2, 3, 9, 4, 5)) :
            A("s_memrealtime s[90:91]"); A("s_waitcnt lgkmcnt(0)")
            A(f"v_writelane_b32 v{vSTAMP}, s90, {i}")
    A("s_cmp_ge_u32 s2, 256")
    A("s_cbranch_scc1 L_exit")
    if dbg: A("s_memrealtime s[94:95]")
    A("s_load_dwordx16 s[64:79], s[0:1], 0")
    A("s_load_dwordx8 s[80:87], s[0:1], 64")
    A("s_load_dwordx2 s[88:89], s[0:1], 96")
    A(f"v_and_b32 v{vLANE}, 63, v0")
    if CPF:
        g.c("code prefetch into L2 (wave 7 of the first CPF workgroups)")
        A(f"s_cmp_ge_u32 s2, {CPF}"); A("s_cbranch_scc1 L_nocpf")
        A("v_cmp_lt_u32 vcc, 447, v0"); A("s_cbranch_vccz L_nocpf")
        A("s_getpc_b64 s[96:97]")
        g.lab("L_pc")
        A(f"v_lshlrev_b32 v3, 7, v{vLANE}")
        A("s_mov_b32 s98, L_exit-L_pc")
        for i in range(CPFN):
            A("v_cmp_gt_u32 vcc, s98, v3"); A("s_and_b64 exec, exec, vcc")
            A(f"s_cbranch_execz L_cpfend")
            A(f"global_load_dword v{252+(i&3)}, v3, s[96:97]")
            A("v_add_u32 v3, 0x2000, v3")
        g.lab("L_cpfend")
        A("s_mov_b64 exec, -1")
        g.lab("L_nocpf")
    A("v_lshrrev_b32 v3, 6, v0")
    A(f"v_lshrrev_b32 v7, 3, v{vLANE}")
    A(f"v_readfirstlane_b32 {sWAVE}, v3")
    A("v_lshlrev_b32 v7, 9, v7")
    A(f"v_and_b32 v{vOFF}, 7, v{vLANE}")
    A(f"v_lshlrev_b32 v{vOFF}, 4, v{vOFF}")
    A(f"v_add_u32 v{vOFF}, v{vOFF}, v7")
    A(f"s_lshr_b32 {sH}, s2, 4")
    A(f"s_and_b32 {sS}, s2, 15")
    A(f"s_lshl_b32 {sBASE}, {sH}, 24"); A(f"s_mov_b32 {sBASE0}, {sBASE}")
    A(f"s_mul_i32 {sROT}, {sH}, {ROT*8}")
    A(f"s_lshl_b32 {sLAM0}, {sS}, 3"); A(f"s_add_u32 {sLAM0}, {sLAM0}, {sWAVE}")
    A(f"s_mov_b32 {sZ}, 0")
    A(f"s_mov_b32 {sC}, {CSC:#x}")
    A(f"s_mov_b32 {sBUD}, 0x40000")
    A("s_waitcnt lgkmcnt(0)")
    if dbg and dbg != 4: A(f"v_mov_b32 v{vSTAMP}, 0"); A(f"v_writelane_b32 v{vSTAMP}, s94, 0")
    srd(g, 4, 66, 0x10000000); srd(g, 8, 68, 0x10000000); srd(g, 12, 88, 0x40000000)
    hstamp(0, 0); hstamp(1, 255)
    def tile_addr(vdst):
        A(f"s_lshl_b32 s46, {sZ}, 7"); A(f"s_add_u32 s46, s46, {sLAM0}")
        A(f"s_add_u32 s46, s46, {sROT}"); A("s_and_b32 s46, s46, 4095"); A("s_lshl_b32 s46, s46, 12")
        A(f"s_add_u32 s46, s46, {sBASE}")
        A(f"v_add_u32 v{vdst}, s46, v{vOFF}")
        A(f"s_add_u32 {sZ}, {sZ}, 1")
    def tile_addr_dyn(vdst, smk):
        A(f"s_lshl_b32 s46, {sNXT}, 6"); A(f"s_lshl_b32 s47, {sWAVE}, 3"); A("s_add_u32 s46, s46, s47")
        if HALF:
            A(f"s_lshl_b32 s47, {sNXT}, 5"); A(f"s_add_u32 s47, s47, {32*HF}"); A(f"s_lshl_b32 s49, {sWAVE}, 2"); A("s_add_u32 s47, s47, s49")
            A(f"s_cmp_lt_u32 {sNXT}, {HF}"); A("s_cselect_b32 s46, s46, s47")
            A(f"s_cselect_b32 {smk[1]}, -1, 0"); A(f"s_mov_b32 {smk[0]}, -1")
        else:
            A(f"s_mov_b32 {smk[0]}, -1"); A(f"s_mov_b32 {smk[1]}, -1")
        A(f"s_lshl_b32 s47, {sROT}, 3"); A("s_add_u32 s46, s46, s47"); A("s_and_b32 s46, s46, 32767"); A("s_lshl_b32 s46, s46, 9")
        A(f"s_add_u32 s46, s46, {sBASE0}")
        A(f"s_cmp_lt_u32 {sNXT}, {NIT}")
        A(f"s_cselect_b32 s46, s46, 0x80000000")
        A(f"s_cselect_b32 {smk[0]}, {smk[0]}, 1"); A(f"s_cselect_b32 {smk[1]}, {smk[1]}, 0")
        A(f"v_add_u32 v{vdst}, s46, v{vOFF}")
    def loads(b, srdn, va):
        for j in range(4):
            off = f" offset:{j*128}" if j else ""
            A(f"buffer_load_dwordx4 v[{b+4*j}:{b+4*j+3}], v{va}, {srdn}, 0 offen{off} nt")
    VA = [12, 13, 14, 15]
    KB = [RING + 32*k for k in range(D)]; VB = [RING + 32*k + 16 for k in range(D)]
    if X5:
        KB.append(64); VB.append(80); VA.append(3)
    DP = D + (1 if X5 else 0)
    A(f"s_cmp_lg_u32 {sWAVE}, 0")
    A("s_cbranch_scc1 L_others")
    g.c("wave0: x, epoch, wq partial loads (64 cols x 112 rows)")
    A("s_setprio 3")
    srd(g, 16, 64, 896); srd(g, 20, 70, 448*8192)
    A("v_mov_b32 v8, 0")
    A(f"v_lshlrev_b32 v9, 1, v{vLANE}")
    XR = [88+k for k in range(7)]
    for k in range(7): A(f"buffer_load_ushort v{XR[k]}, v9, {sT1}, 0 offen offset:{128*k} nt")
    A(f"buffer_load_dword v95, v8, {sWS}, 0 offen sc1")
    A(f"s_mul_i32 s44, {sH}, {CSTR}"); A(f"s_add_u32 s44, s44, {CNT:#x}")
    A(f"s_cmp_lg_u32 {sS}, 0"); A("s_cbranch_scc1 L_nozero")
    A("s_mov_b64 exec, 1")
    A(f"buffer_store_dword v8, v8, {sWS}, s44 offen sc1")
    A("s_mov_b64 exec, -1")
    g.lab("L_nozero")
    A("s_and_b32 s43, s2, 3")
    A("s_lshr_b32 s44, s2, 2"); A("s_lshl_b32 s44, s44, 7")
    A(f"s_mul_i32 s45, s43, {112*8192}"); A("s_add_u32 s44, s44, s45")
    A(f"v_lshrrev_b32 v10, 3, v{vLANE}"); A("v_lshlrev_b32 v10, 13, v10")
    A(f"v_and_b32 v11, 7, v{vLANE}"); A("v_lshlrev_b32 v11, 4, v11"); A("v_add3_u32 v10, v10, v11, s44")
    WQ = 32
    for j in range(14):
        A(f"s_mov_b32 s45, {j*8*8192}")
        A(f"buffer_load_dwordx4 v[{WQ+4*j}:{WQ+4*j+3}], v10, {sT2}, s45 offen nt")
    if TOUCH & 2:
        A(f"v_lshlrev_b32 v11, 4, v{vLANE}")
        A(f"s_lshl_b32 s44, {sH}, 13"); A(f"s_add_u32 s44, s44, {QP:#x}")
        for kq in range(8):
            A(f"buffer_load_dwordx4 v[{TMP+20}:{TMP+23}], v11, {sWS}, s44 offen sc1")
            A("s_add_u32 s44, s44, 1024")
    if B0: A("s_barrier")
    g.c("wave0: layernorm(x), q partial")
    A("s_waitcnt vmcnt(15)")
    stamp(13)
    for k in range(7): A(f"v_lshlrev_b32 v{XR[k]}, 16, v{XR[k]}")
    layernorm(g, XR, [TMP, TMP+1, TMP+2, TMP+3, TMP+4, TMP+5])
    A(f"v_lshlrev_b32 v9, 2, v{vLANE}")
    for k in range(7): A(f"ds_write_b32 v9, v{XR[k]} offset:{L_X + 256*k}")
    A("s_mul_i32 s45, s43, 448")
    A(f"v_lshrrev_b32 v9, 3, v{vLANE}"); A("v_lshlrev_b32 v9, 2, v9"); A("v_add_u32 v9, s45, v9")
    A("s_waitcnt lgkmcnt(0)")
    XJ = [TMP + j for j in range(14)]
    for j in range(14): A(f"ds_read_b32 v{XJ[j]}, v9 offset:{L_X + 32*j}")
    A(f"s_waitcnt vmcnt({14 + (8 if TOUCH & 2 else 0)})")
    A(f"v_readfirstlane_b32 {sEP}, v95")
    for i in range(8): A(f"v_mov_b32 v{Q+i}, 0")
    A(f"s_mul_i32 {sTAG}, {sEP}, 0x9E3779B1")
    A(f"s_add_u32 {sTAG}, {sTAG}, 0x85EBCA6B")
    A("s_waitcnt vmcnt(0) lgkmcnt(0)")
    stamp(14)
    for j in range(14):
        xl = TMP + 14 + (j & 1)
        A(f"v_lshrrev_b32 v{xl}, 16, v{XJ[j]}")
        for i in range(4):
            A(f"v_dot2c_f32_bf16 v{Q+2*i}, v{WQ+4*j+i}, v{xl}")
            A(f"v_dot2c_f32_bf16 v{Q+2*i+1}, v{WQ+4*j+i}, v{XJ[j]}")
    r = reduce_scatter(g, [Q+i for i in range(8)], [32, 16, 8])[0]
    A(f"v_mov_b32_dpp v{r+2}, v{r} row_ror:8 row_mask:0xf bank_mask:0xf")
    A(f"v_mov_b32 v{r+1}, {sTAG}"); A(f"v_mov_b32 v{r+3}, {sTAG}")
    A(f"v_and_b32 v9, 7, v{vLANE}"); A("v_lshlrev_b32 v9, 6, v9")
    A(f"v_lshrrev_b32 v11, 3, v{vLANE}"); A("v_lshlrev_b32 v11, 3, v11"); A("v_add_u32 v9, v9, v11")
    A(f"s_lshl_b32 s44, {sH}, 13"); A("s_lshl_b32 s45, s43, 11"); A("s_add_u32 s44, s44, s45")
    A(f"s_lshr_b32 s45, {sS}, 2"); A("s_lshl_b32 s45, s45, 9"); A("s_add_u32 s44, s44, s45"); A(f"s_add_u32 s44, s44, {QP:#x}")
    A("s_mov_b32 exec_lo, 0x00ff00ff"); A("s_mov_b32 exec_hi, 0x00ff00ff")
    A(f"buffer_store_dwordx4 v[{r}:{r+3}], v9, {sWS}, s44 offen sc1")
    A("s_mov_b64 exec, -1")
    stamp(1)
    g.c("wave0: gather q partials of own head")
    A(f"v_lshlrev_b32 v9, 4, v{vLANE}")
    A(f"s_lshl_b32 s44, {sH}, 13"); A(f"s_add_u32 s44, s44, {QP:#x}")
    A("v_add_u32 v9, s44, v9")
    A(f"v_lshlrev_b32 v11, 4, v{vLANE}")
    for i in range(4): A(f"v_mov_b32 v{TMP+16+i}, 0")
    A(f"ds_write_b128 v11, v[{TMP+16}:{TMP+19}] offset:{L_XP}")
    for k in range(QPRE):
        tile_addr(VA[k]); loads(KB[k], sKS, VA[k]); loads(VB[k], sVS, VA[k])
    if QD: A(f"s_sleep {QD}")
    QG = 32
    def q_loads():
        for kq in range(4):
            A(f"s_movk_i32 s45, {kq*2048}")
            for i in range(2):
                off = f" offset:{i*1024}" if i else ""
                A(f"buffer_load_dwordx4 v[{QG+8*kq+4*i}:{QG+8*kq+4*i+3}], v9, {sWS}, s45 offen{off} sc1")
    qtags = [QG+4*m+1 for m in range(8)] + [QG+4*m+3 for m in range(8)]
    q_loads()
    A("s_barrier")
    stamp(12)
    A("s_waitcnt vmcnt(0)")
    A(f"v_xor_b32 v{TMP+5}, {sTAG}, v{qtags[0]}")
    for t in qtags[1:]:
        A(f"v_xor_b32 v{TMP+6}, {sTAG}, v{t}"); A(f"v_or_b32 v{TMP+5}, v{TMP+5}, v{TMP+6}")
    A(f"v_cmp_ne_u32 vcc, 0, v{TMP+5}")
    A("s_cbranch_vccz L_qok")
    A(f"s_sub_u32 {sBUD}, {sBUD}, 1")
    poll(g, q_loads, qtags, TMP+5, TMP+6)
    g.lab("L_qok")
    stamp(10)
    if dbg == 1: A(f"v_writelane_b32 v{vSTAMP}, {sBUD}, 11")
    for i in range(2):
        for e in (0, 2):
            A(f"v_add_f32 v{QG+4*i+e}, v{QG+4*i+e}, v{QG+8+4*i+e}")
            A(f"v_add_f32 v{QG+16+4*i+e}, v{QG+16+4*i+e}, v{QG+24+4*i+e}")
            A(f"v_add_f32 v{QG+4*i+e}, v{QG+4*i+e}, v{QG+16+4*i+e}")
        A(f"v_cvt_pk_bf16_f32 v{TMP+8+i}, v{QG+4*i}, v{QG+4*i+2}")
    A(f"v_lshlrev_b32 v9, 2, v{vLANE}")
    A(f"ds_write_b32 v9, v{TMP+8} offset:{L_Q}")
    A(f"ds_write_b32 v9, v{TMP+9} offset:{L_Q+256}")
    A(f"v_mov_b32 v{TMP+12}, {sTAG}"); A(f"v_mov_b32 v{TMP+13}, {sEP}"); A(f"v_mov_b32 v{TMP+7}, 0")
    A(f"ds_write_b64 v{TMP+7}, v[{TMP+12}:{TMP+13}] offset:{L_TAG}")
    for k in range(QPRE, DP):
        tile_addr(VA[k]); loads(KB[k], sKS, VA[k]); loads(VB[k], sVS, VA[k])
    A("s_setprio 0")
    A("s_waitcnt lgkmcnt(0)")
    A("s_branch L_waitq")
    g.lab("L_others")
    if B0: A("s_barrier")
    if SD: A(f"s_sleep {SD}")
    groups = []
    for k in range(DP): groups += [("K", k), ("V", k)]
    for gi, (kind, k) in enumerate(groups):
        if gi == PRE: A("s_barrier")
        if kind == "K": tile_addr(VA[k]); loads(KB[k], sKS, VA[k])
        else: loads(VB[k], sVS, VA[k])
    if TLBW:
        g.c("warm the address translation of this head's K/V pages through the scalar path (wave TLBW)")
        lw = g.new("tw")
        A(f"s_cmp_lg_u32 {sWAVE}, {TLBW}"); A(f"s_cbranch_scc1 {lw}")
        A(f"s_add_u32 s96, s66, {sBASE}"); A("s_addc_u32 s97, s67, 0")
        A(f"s_add_u32 s98, s68, {sBASE}"); A("s_addc_u32 s99, s69, 0")
        for p in range(8):
            A(f"s_load_dword s100, s[96:97], 0"); A(f"s_load_dword s101, s[98:99], 0")
            A("s_add_u32 s96, s96, 0x200000"); A("s_addc_u32 s97, s97, 0"); A("s_add_u32 s98, s98, 0x200000"); A("s_addc_u32 s99, s99, 0")
        g.lab(lw)
    g.lab("L_waitq")
    A("s_barrier")
    stamp(2)
    if dbg == 5:
        A("s_memtime s[90:91]"); A("s_waitcnt lgkmcnt(0)"); A(f"v_writelane_b32 v{vSTAMP}, s90, 58")
        A("s_memrealtime s[90:91]"); A("s_waitcnt lgkmcnt(0)"); A(f"v_writelane_b32 v{vSTAMP}, s90, 59")
    A(f"v_and_b32 v7, 7, v{vLANE}"); A("v_lshlrev_b32 v7, 4, v7")
    for c in range(4): A(f"ds_read_b128 v[{Q+4*c}:{Q+4*c+3}], v7 offset:{L_Q + 128*c}")
    A("v_mov_b32 v8, 0")
    A(f"ds_read_b64 v[10:11], v8 offset:{L_TAG}")
    for i in range(32): A(f"v_mov_b32 v{ACC+i}, 0")
    A(f"v_mov_b32 v{vM}, {NEG_BIG:#x}"); A(f"v_mov_b32 v{vMC}, {NEG_BIG:#x}"); A(f"v_mov_b32 v{vL}, 0")
    A("s_and_b32 s37, s2, 7"); A(f"s_lshr_b32 {sRI}, s2, 3")
    A(f"s_mov_b32 {sLOC}, 0")
    A("s_cmp_lt_u32 s2, 224"); A("s_cselect_b32 s38, 2, 1")
    A("s_cmp_eq_u32 s37, 0"); A(f"s_cselect_b32 {sROLE}, s38, 0")
    A("s_waitcnt lgkmcnt(0)")
    A(f"v_readfirstlane_b32 {sTAG}, v10"); A(f"v_readfirstlane_b32 {sEP}, v11")
    A(f"s_mov_b32 {sSTEP}, 0")
    if dbg == 3: A("s_mov_b32 s92, 15")
    resc = []
    def body(k, kwait, vwait, issue, pre=None, post=None):
        kb, vb = KB[k], VB[k]
        g.c(f"slot {k} ({issue})")
        if pre: pre()
        stepstamp()
        A(f"s_waitcnt vmcnt({kwait})")
        for r_ in range(4): A(f"v_dot2_f32_bf16 v{7+r_}, v{kb+r_}, v{Q+r_}, 0")
        for r_ in range(4, 16 if not NOCOMP else 4): A(f"v_dot2c_f32_bf16 v{7+(r_&3)}, v{kb+r_}, v{Q+r_}")
        if issue == "static": tile_addr(VA[k]); loads(kb, sKS, VA[k])
        elif issue == "dyn":
            tile_addr_dyn(VA[k], sMK[k])
            A(f"s_mov_b64 exec, s[{sMK[k][0][1:]}:{sMK[k][1][1:]}]"); loads(kb, sKS, VA[k]); A("s_mov_b64 exec, -1")
        else: g.nop(3)
        A("v_add_f32 v7, v7, v8"); A("v_add_f32 v9, v9, v10"); A("v_add_f32 v7, v7, v9"); g.nop(2)
        allreduce_low(g, 7, [0, 1, 2])
        A("v_cvt_pk_bf16_f32 v8, v7, v7")
        A("v_lshlrev_b32 v7, 16, v8")
        if issue == "dyn" and HALF:
            A(f"v_cndmask_b32 v7, v3, v7, s[{sMC[k][0][1:]}:{sMC[k][1][1:]}]")
        A(f"v_cmp_gt_f32 vcc, v7, v{vM}")
        lr, lc = g.new("resc"), g.new("cont")
        A(f"s_cbranch_vccnz {lr}")
        g.lab(lc)
        A(f"v_fma_f32 v8, v7, {sC}, -v{vMC}")
        A("v_exp_f32 v8, v8"); g.nop(1)
        A(f"v_add_f32 v{vL}, v{vL}, v8")
        A("v_cvt_pk_bf16_f32 v9, v8, 0")
        A("v_cvt_pk_bf16_f32 v10, 0, v8")
        A(f"s_waitcnt vmcnt({vwait})")
        for c in range(4 if not NOCOMP else 0):
            for i in range(4):
                A(f"v_dot2c_f32_bf16 v{ACC+8*c+2*i}, v{vb+4*c+i}, v9")
                A(f"v_dot2c_f32_bf16 v{ACC+8*c+2*i+1}, v{vb+4*c+i}, v10")
        if issue == "static": loads(vb, sVS, VA[k])
        elif issue == "dyn":
            A(f"s_mov_b64 exec, s[{sMK[k][0][1:]}:{sMK[k][1][1:]}]"); loads(vb, sVS, VA[k]); A("s_mov_b64 exec, -1")
            if HALF: A(f"s_mov_b64 s[{sMC[k][0][1:]}:{sMC[k][1][1:]}], s[{sMK[k][0][1:]}:{sMK[k][1][1:]}]")
        if post: post()
        resc.append((lr, lc))
    if X5:
        g.c("first revolution: five prefetched tiles")
        for k in range(D): body(k, 36, 36, "static", pre=lambda: A("s_barrier"))
        body(4, 36, 32, "none", pre=lambda: A("s_barrier"))
    NREV = (NS - 9) // 4 if X5 else (NS - 4) // 4
    assert (NS - (9 if X5 else 4)) % 4 == 0
    H1, H2 = (4, 8) if X5 else (8, 12)
    g.lab("L_loop")
    for k in range(D):
        body(k, 28, 28, "static", pre=(lambda: A("s_barrier")) if (BAR == 1 or (BAR == 4 and k == 0) or (BAR == 2 and k % 2 == 0)) else None)
    A(f"s_add_u32 {sSTEP}, {sSTEP}, 4")
    A(f"s_cmp_eq_u32 {sSTEP}, {H1}"); A("s_cbranch_scc1 L_wload")
    A(f"s_cmp_eq_u32 {sSTEP}, {H2}"); A("s_cbranch_scc1 L_xgload")
    g.lab("L_loop_back")
    A(f"s_cmp_lt_u32 {sSTEP}, {4*NREV}"); A("s_cbranch_scc1 L_loop")
    g.c("transition: consume slots 0,1 without issue")
    A(f"s_add_u32 s37, {sS}, {16*NS}"); A(f"v_mov_b32 v{TMP}, s37"); A(f"v_mov_b32 v{TMP+1}, 0")
    A(f"ds_write_b32 v{TMP+1}, v{TMP} offset:{L_CL}")
    A(f"s_mov_b32 {sV2}, 1"); A(f"s_mov_b32 {sV3}, 1"); A("s_mov_b32 s58, 0")
    A("s_mov_b64 s[76:77], -1"); A("s_mov_b64 s[78:79], -1"); A(f"v_mov_b32 v3, {NEG_BIG:#x}")
    A(f"s_cmp_eq_u32 {sROLE}, 0"); A(f"s_cselect_b32 {sLIM}, 0, {RWX}"); A(f"s_sub_u32 {sLIM}, {NIT}, {sLIM}"); A(f"s_mov_b32 {sDC}, 0"); A(f"s_mov_b32 {sI0}, 0"); A(f"s_mov_b32 {sGO}, 0")
    A("s_mov_b32 s41, 0x05040100"); A("s_mov_b32 s42, 0x07060302")
    if LOOK == 2: A(f"s_sub_u32 s37, {sS}, 16"); A(f"v_mov_b32 v{TMP+5}, s37")
    A(f"s_mul_i32 s48, {sH}, {CSTR}"); A(f"s_add_u32 s48, s48, {CNT:#x}")
    def xg_check():
        l = g.new("xgs"); l2 = g.new("xgok")
        A(f"s_cmp_eq_u32 {sROLE}, 0"); A(f"s_cbranch_scc1 {l}")
        A("s_mov_b32 exec_lo, -1"); A("s_mov_b32 exec_hi, 0")
        A(f"v_cmp_ne_u32 vcc, {sTAG}, v{TMP+13}")
        A(f"s_cbranch_vccz {l2}")
        A(f"v_lshlrev_b32 v{TMP+14}, 3, v{vLANE}"); A(f"v_add_u32 v{TMP+14}, {XG:#x}, v{TMP+14}")
        poll(g, lambda: A(f"buffer_load_dwordx2 v[{TMP+12}:{TMP+13}], v{TMP+14}, {sWS}, 0 offen sc1"), [TMP+13], TMP+8, TMP+9)
        g.lab(l2)
        A("s_getreg_b32 s37, hwreg(HW_REG_XCC_ID)"); A("s_and_b32 s37, s37, 15")
        A(f"v_cmp_ne_u32 vcc, s37, v{TMP+12}")
        A("s_cmp_eq_u64 vcc, 0"); A(f"s_cselect_b32 {sLOC}, 1, 0")
        if NOLOC: A(f"s_mov_b32 {sLOC}, 0")
        A("s_mov_b64 exec, -1")
        g.lab(l)
    def wo_load():
        l = g.new("wol")
        A("s_waitcnt lgkmcnt(0)")
        A(f"s_cmp_eq_u32 {sROLE}, 0"); A(f"s_cbranch_scc1 {l}")
        srd(g, 16, 72, 4096*896)
        A(f"s_lshl_b32 s37, {sH}, 4"); A(f"s_and_b32 s38, {sS}, 8"); A("s_add_u32 s37, s37, s38"); A(f"s_add_u32 s37, s37, {sWAVE}")
        A(f"s_mul_i32 s37, s37, {16*896}")
        A(f"v_lshlrev_b32 v{TMP+8}, 4, v{vLANE}")
        for i in range(16):
            A(f"buffer_load_dwordx4 v[{R0+4*i}:{R0+4*i+3}], v{TMP+8}, {sT1}, s37 offen nt")
            A("s_add_u32 s37, s37, 896")
        g.lab(l)
    body(0, 28, 24, "none", pre=lambda: A("s_barrier"), post=xg_check)
    body(1, 20, 16, "none", pre=lambda: A("s_barrier"), post=wo_load)
    if dbg == 2: stamp(5)
    if TPF & 1: code_pf(6, "L_s0", "L_exit", 2, TMP+20)
    g.lab("L_dyn")
    for k in (2, 3):
        p = k & 1
        sV = sV2 if k == 2 else sV3
        RA = [TMP+3, TMP+5]
        def pre(k=k, p=p, sV=sV):
            A("s_barrier")
            A(f"ds_read_b32 v{TMP+2}, v{TMP+1} offset:{L_CL + 4*p}")
            A(f"s_cmp_eq_u32 {sV}, 0"); A("s_cbranch_scc1 L_s0")
            A("s_waitcnt lgkmcnt(0)")
            A(f"v_readfirstlane_b32 {sNXT}, v{TMP+2}")
            l = g.new("noclaim")
            A(f"s_cmp_lg_u32 {sWAVE}, 0"); A(f"s_cbranch_scc1 {l}")
            A(f"s_mov_b32 {sGO}, 0")
            A(f"s_cmp_ge_u32 {sNXT}, {sLIM}"); A(f"s_cbranch_scc1 {l}")
            if ADF:
                la = g.new("ad")
                A(f"s_cmp_eq_u32 {sDC}, 1"); A(f"s_cselect_b32 {sI0}, {sNXT}, {sI0}")
                A(f"s_cmp_lt_u32 {sDC}, 3"); A(f"s_cbranch_scc1 {la}")
                A(f"s_cmp_eq_u32 {sS}, 3"); A(f"s_cbranch_scc1 {la}")
                A(f"s_cmp_eq_u32 {sS}, 12"); A(f"s_cbranch_scc1 {la}")
                A(f"s_sub_u32 s37, {sDC}, 1")
                A(f"s_sub_u32 s38, {sNXT}, {sI0}"); A("s_lshl_b32 s39, s37, 4"); A("s_sub_u32 s38, s38, s39")
                A(f"s_mul_i32 s38, s38, {ADF}")
                A(f"s_sub_u32 s39, {NIT}, {sNXT}"); A("s_mul_i32 s39, s39, s37"); A("s_lshl_b32 s39, s39, 1")
                A("s_cmp_lt_i32 s39, s38"); A(f"s_cbranch_scc1 {l}")
                g.lab(la)
            A(f"s_mov_b32 {sGO}, 1")
            ra = RA[p] if LOOK == 2 else RA[0]
            A(f"v_mov_b32 v{ra}, 1")
            A("s_mov_b64 exec, 1")
            if FAKE in (0, 3): A(f"buffer_atomic_add v{ra}, v{TMP+1}, {sWS}, s48 offen {['sc0', 'sc0 sc1', 'sc0 nt', 'sc0 sc1 nt'][AFL]}")
            elif FAKE == 2: A(f"buffer_load_dword v{ra}, v{TMP+1}, {sWS}, s48 offen sc1")
            A("s_mov_b64 exec, -1")
            g.lab(l)
        def post(k=k, p=p, sV=sV):
            A(f"s_cmp_lt_u32 {sNXT}, {NIT}"); A(f"s_cselect_b32 {sV}, 1, 0")
            if dbg: A(f"s_add_u32 {sSTEP}, {sSTEP}, {sV}")
            if PT & 4:
                lt = g.new("ept")
                A(f"s_cmp_lg_u32 {sWAVE}, 4"); A(f"s_cbranch_scc1 {lt}")
                A(f"s_cmp_lt_u32 {sNXT}, {NIT}"); A(f"s_cbranch_scc1 {lt}")
                A(f"s_cmp_eq_u32 s58, 1"); A(f"s_cbranch_scc1 {lt}")
                A("s_mov_b32 s58, 1")
                A(f"v_lshlrev_b32 v{TMP+8}, 4, v{vLANE}")
                A(f"s_lshl_b32 s38, {sH}, 15"); A(f"s_lshl_b32 s39, {sS}, 11"); A("s_add_u32 s38, s38, s39"); A(f"s_add_u32 s38, s38, {OP:#x}")
                A(f"buffer_load_dwordx4 v[{TMP+20}:{TMP+23}], v{TMP+8}, {sWS}, s38 offen sc1")
                A(f"buffer_load_dwordx4 v[{TMP+20}:{TMP+23}], v{TMP+8}, {sWS}, s38 offen offset:1024 sc1")
                g.lab(lt)
            lp_ = g.new("wop")
            A(f"s_add_u32 {sDC}, {sDC}, 1"); A(f"s_cmp_lg_u32 {sDC}, 2"); A(f"s_cbranch_scc1 {lp_}")
            A(f"s_cmp_eq_u32 {sROLE}, 0"); A(f"s_cbranch_scc1 {lp_}")
            if k == 3:
                for i in range(8):
                    for e in range(4): perm_pair(g, R0+8*i+e, R0+8*i+4+e, 9)
            g.lab(lp_)
            l = g.new("nopub")
            A(f"s_cmp_lg_u32 {sWAVE}, 0"); A(f"s_cbranch_scc1 {l}")
            ra = RA[p^1] if LOOK == 2 else RA[0]
            A(f"s_waitcnt vmcnt({17 if LOOK == 2 else 8})")
            if FAKE: A(f"s_add_u32 s49, {sNXT}, 16"); A(f"v_mov_b32 v{ra}, s49")
            else: A(f"v_add_u32 v{ra}, {16*(NS+LOOK)}, v{ra}")
            A(f"v_mov_b32 v{TMP+4}, 0xffff")
            A(f"s_cmp_eq_u32 {sGO}, 1"); A("s_cselect_b64 vcc, -1, 0")
            A(f"v_cndmask_b32 v{TMP+4}, v{TMP+4}, v{ra}, vcc")
            A("s_mov_b64 exec, 1")
            A(f"ds_write_b32 v{TMP+1}, v{TMP+4} offset:{L_CL + 4*(p^1)}")
            A("s_mov_b64 exec, -1")
            A("s_waitcnt lgkmcnt(0)")
            g.lab(l)
        body(k, 12, 12, "dyn", pre=pre, post=post)
    A("s_branch L_dyn")
    for lr, lc in resc:
        g.lab(lr)
        A("v_mov_b32 v8, v7"); g.nop(2)
        dpp(g, "v_max_f32", 8, 8, 8, "row_ror:8"); g.nop(2)
        dpp(g, "v_max_f32", 8, 8, 8, "row_bcast:15", rm=0xa); g.nop(2)
        dpp(g, "v_max_f32", 8, 8, 8, "row_bcast:31", rm=0xc); g.nop(1)
        A("v_readlane_b32 s47, v8, 63"); g.nop(2)
        A(f"v_max_f32 v9, s47, v{vM}")
        A(f"v_sub_f32 v10, v{vM}, v9")
        A(f"v_mul_f32 v10, {sC}, v10")
        A("v_exp_f32 v10, v10")
        A(f"v_mov_b32 v{vM}, v9")
        A(f"v_mul_f32 v{vMC}, {sC}, v9")
        A(f"v_mul_f32 v{vL}, v10, v{vL}")
        for i in range(32): A(f"v_mul_f32 v{ACC+i}, v10, v{ACC+i}")
        A(f"s_branch {lc}")
    g.lab("L_wload")
    if dbg == 2: stamp(4)
    A(f"s_cmp_eq_u32 {sROLE}, 0"); A("s_cbranch_scc1 L_loop_back")
    A(f"s_cmp_eq_u32 {sROLE}, 1"); A("s_cbranch_scc1 L_xgpub")
    g.c("role WG: w1[:, 64a..+64) (wave w rows 56w + 8j + (l>>3), chunk l&7), w2 rows 64a + 8w + j, b1, x, b2, xcc granule")
    srd(g, 16, 76, 448*3584); srd(g, 20, 80, 1792*896)
    A(f"v_lshrrev_b32 v{TMP}, 3, v{vLANE}"); A("s_movk_i32 s37, 3584"); A(f"v_mul_lo_u32 v{TMP}, v{TMP}, s37")
    A(f"v_and_b32 v{TMP+1}, 7, v{vLANE}"); A(f"v_lshlrev_b32 v{TMP+1}, 4, v{TMP+1}"); A(f"v_add_u32 v{TMP}, v{TMP}, v{TMP+1}")
    A(f"s_mul_i32 s37, {sWAVE}, {56*3584}"); A(f"s_lshl_b32 s38, {sRI}, 7"); A("s_add_u32 s37, s37, s38")
    A(f"s_mul_i32 s38, {sWAVE}, {7*1024}"); A(f"s_add_u32 s38, s38, {L_W1}")
    for j in range(7):
        A("s_mov_b32 m0, s38"); A("s_nop 0")
        A(f"buffer_load_dwordx4 v{TMP}, {sT1}, s37 offen nt lds")
        A(f"s_add_u32 s37, s37, {8*3584}"); A("s_add_u32 s38, s38, 1024")
    A(f"v_lshlrev_b32 v{TMP+2}, 4, v{vLANE}")
    A(f"s_lshl_b32 s37, {sRI}, 6"); A(f"s_lshl_b32 s38, {sWAVE}, 3"); A("s_add_u32 s37, s37, s38"); A("s_mul_i32 s37, s37, 896")
    A(f"s_lshl_b32 s38, {sWAVE}, 13"); A(f"s_add_u32 s38, s38, {L_W2}")
    for j in range(8):
        A("s_mov_b32 m0, s38"); A("s_nop 0")
        A(f"buffer_load_dwordx4 v{TMP+2}, {sT2}, s37 offen nt lds")
        A("s_add_u32 s37, s37, 896"); A("s_add_u32 s38, s38, 1024")
    srd(g, 16, 78, 1792*2)
    A(f"v_and_b32 v{TMP+1}, 7, v{vLANE}"); A(f"v_lshlrev_b32 v{TMP+1}, 3, v{TMP+1}"); A(f"v_lshrrev_b32 v{TMP+3}, 3, v{vLANE}"); A(f"v_add_u32 v{TMP+1}, v{TMP+1}, v{TMP+3}")
    A(f"v_lshlrev_b32 v{TMP+1}, 1, v{TMP+1}"); A(f"s_lshl_b32 s37, {sRI}, 7"); A(f"v_add_u32 v{TMP+1}, s37, v{TMP+1}")
    A(f"buffer_load_ushort v{vB1}, v{TMP+1}, {sT1}, 0 offen nt")
    srd(g, 16, 64, 896); srd(g, 20, 82, 896)
    A(f"s_lshl_b32 s37, {sRI}, 5")
    A(f"v_and_b32 v{TMP+3}, 7, v{vLANE}"); A(f"v_lshlrev_b32 v{TMP+3}, 1, v{TMP+3}"); A(f"v_lshrrev_b32 v{TMP+4}, 5, v{vLANE}"); A(f"v_add_u32 v{TMP+3}, v{TMP+3}, v{TMP+4}")
    A(f"v_lshlrev_b32 v{TMP+3}, 1, v{TMP+3}"); A(f"v_add_u32 v{TMP+3}, s37, v{TMP+3}")
    A(f"buffer_load_ushort v{vB2}, v{TMP+3}, {sT2}, 0 offen nt")
    A(f"buffer_load_ushort v{vXH}, v{TMP+3}, {sT1}, 0 offen nt")
    g.lab("L_xgpub")
    A(f"s_cmp_lg_u32 {sWAVE}, 0"); A("s_cbranch_scc1 L_loop_back")
    A("s_getreg_b32 s37, hwreg(HW_REG_XCC_ID)"); A("s_and_b32 s37, s37, 15")
    A(f"v_mov_b32 v{TMP+6}, s37"); A(f"v_mov_b32 v{TMP+7}, {sTAG}"); A(f"s_lshl_b32 s37, {sRI}, 3"); A(f"s_add_u32 s37, s37, {XG:#x}"); A(f"v_mov_b32 v{TMP+5}, 0")
    A("s_mov_b64 exec, 1")
    A(f"buffer_store_dwordx2 v[{TMP+6}:{TMP+7}], v{TMP+5}, {sWS}, s37 offen sc1")
    A("s_mov_b64 exec, -1")
    A("s_branch L_loop_back")
    g.lab("L_xgload")
    A(f"s_cmp_eq_u32 {sROLE}, 0"); A("s_cbranch_scc1 L_loop_back")
    A(f"v_lshlrev_b32 v{TMP+14}, 3, v{vLANE}"); A(f"v_add_u32 v{TMP+14}, {XG:#x}, v{TMP+14}")
    A(f"buffer_load_dwordx2 v[{TMP+12}:{TMP+13}], v{TMP+14}, {sWS}, 0 offen sc1")
    A("s_branch L_loop_back")
    g.lab("L_s0")
    stamp(3)
    if dbg and dbg != 4: A(f"v_writelane_b32 v{vSTAMP}, {sSTEP}, 15")
    g.c("S0: in-wave reduce")
    T = TMP
    allreduce_high(g, vL, T)
    reduce_scatter(g, [ACC+i for i in range(32)], [32, 16, 8])
    A(f"v_lshrrev_b32 v7, 4, v{vLANE}"); A("v_lshlrev_b32 v7, 8, v7")
    A(f"v_and_b32 v8, 7, v{vLANE}"); A("v_lshlrev_b32 v8, 5, v8")
    A(f"v_bfe_u32 v9, v{vLANE}, 3, 1"); A("v_lshlrev_b32 v9, 4, v9")
    A("v_add3_u32 v7, v7, v8, v9")
    A(f"s_lshl_b32 s37, {sWAVE}, 10"); A("v_add_u32 v7, s37, v7")
    A(f"ds_write_b128 v7, v[{ACC}:{ACC+3}] offset:{L_O}")
    A(f"v_mov_b32 v8, v{vM}"); A(f"v_mov_b32 v9, v{vL}")
    A(f"s_lshl_b32 s37, {sWAVE}, 3"); A("v_mov_b32 v10, s37")
    A(f"ds_write_b64 v10, v[8:9] offset:{L_ST}")
    A("s_mov_b32 s41, 0x05040100"); A("s_mov_b32 s42, 0x07060302")
    A("s_waitcnt vmcnt(0) lgkmcnt(0)")
    A("s_barrier")
    tst(16)
    A(f"s_cmp_gt_u32 {sWAVE}, 1"); A("s_cbranch_scc1 L_rw")
    g.c("waves 0-1: cross-wave combine + publish (thread t: dims 2t, 2t+1)")
    OW = 68
    A("v_mov_b32 v7, 0")
    for i in range(4): A(f"ds_read_b128 v[{T+4*i}:{T+4*i+3}], v7 offset:{L_ST+16*i}")
    A("v_lshlrev_b32 v8, 3, v0")
    for w in range(8): A(f"ds_read_b64 v[{OW+2*w}:{OW+2*w+1}], v8 offset:{L_O+1024*w}")
    A("s_waitcnt lgkmcnt(8)")
    A(f"v_max3_f32 v9, v{T}, v{T+2}, v{T+4}"); A(f"v_max3_f32 v10, v{T+6}, v{T+8}, v{T+10}"); A(f"v_max3_f32 v9, v9, v{T+12}, v{T+14}"); A(f"v_max_f32 v9, v9, v10")
    A(f"v_mul_f32 v11, {sC}, v9")
    for w in range(8): A(f"v_fma_f32 v{T+2*w}, v{T+2*w}, {sC}, -v11")
    for w in range(8): A(f"v_exp_f32 v{T+2*w}, v{T+2*w}")
    A("v_lshrrev_b32 v7, 3, v0"); A("v_lshlrev_b32 v7, 11, v7")
    A("v_and_b32 v8, 7, v0"); A("v_cmp_eq_u32 vcc, 0, v8"); A("v_lshlrev_b32 v8, 4, v8"); A("v_add_u32 v7, v7, v8")
    A(f"s_lshl_b32 s37, {sH}, 15"); A(f"s_lshl_b32 s38, {sS}, 7"); A("s_add_u32 s37, s37, s38"); A(f"s_add_u32 s37, s37, {OP:#x}")
    PG = 84
    A(f"v_mov_b32 v{PG+3}, {sTAG}")
    A("s_waitcnt lgkmcnt(0)")
    A(f"v_mul_f32 v{PG}, v{T}, v{OW}"); A(f"v_mul_f32 v{PG+1}, v{T}, v{OW+1}"); A(f"v_mul_f32 v10, v{T}, v{T+1}")
    for w in range(1, 8):
        A(f"v_fmac_f32 v{PG}, v{T+2*w}, v{OW+2*w}"); A(f"v_fmac_f32 v{PG+1}, v{T+2*w}, v{OW+2*w+1}"); A(f"v_fmac_f32 v10, v{T+2*w}, v{T+2*w+1}")
    A(f"v_cndmask_b32 v{PG+2}, v10, v9, vcc")
    A(f"buffer_store_dwordx4 v[{PG}:{PG+3}], v7, {sWS}, s37 offen sc1")
    tst(17)
    if dbg == 5: A("s_waitcnt vmcnt(0)"); tst(61)
    g.lab("L_rw")
    A(f"s_cmp_eq_u32 {sROLE}, 0"); A("s_cbranch_scc1 L_end")
    def lstore(text):
        l1, l2 = g.new("ls"), g.new("ls")
        A(f"s_cmp_eq_u32 {sLOC}, 0"); A(f"s_cbranch_scc1 {l1}")
        A(text); A(f"s_branch {l2}")
        g.lab(l1); A(text + " sc1"); g.lab(l2)
    g.c("first gather round of this wave's 16-dim slice, pre-touch of later hand-off lines, weight preparation")
    vOA = 50
    A(f"v_lshlrev_b32 v{vOA}, 4, v{vLANE}")
    A(f"s_and_b32 s39, {sS}, 8"); A(f"s_add_u32 s39, s39, {sWAVE}"); A("s_lshl_b32 s39, s39, 11")
    A(f"s_lshl_b32 s38, {sH}, 15"); A("s_add_u32 s38, s38, s39"); A(f"s_add_u32 s38, s38, {OP:#x}")
    A(f"v_add_u32 v{vOA}, s38, v{vOA}")
    def g0(): A(f"buffer_load_dwordx4 v[{T+8}:{T+11}], v{vOA}, {sWS}, 0 offen sc1")
    def g1(): A(f"buffer_load_dwordx4 v[{T+12}:{T+15}], v{vOA}, {sWS}, 0 offen offset:1024 sc1")
    g0(); g1()
    if PT:
        lpt = g.new("pt"); l7 = g.new("pt7"); l5 = g.new("pt5"); l6 = g.new("pt6")
        A(f"s_cmp_lt_u32 {sROLE}, 2"); A(f"s_cbranch_scc1 {lpt}")
        A(f"v_lshlrev_b32 v7, 4, v{vLANE}")
        DM = 88
        A(f"s_cmp_lg_u32 {sWAVE}, 7"); A(f"s_cbranch_scc1 {l7}")
        A(f"s_mul_i32 s37, {sRI}, {FSTR}"); A(f"s_add_u32 s37, s37, {FP:#x}")
        for k in range(7):
            A(f"buffer_load_dwordx4 v[{DM}:{DM+3}], v7, {sWS}, s37 offen sc1"); A("s_add_u32 s37, s37, 1024")
        g.lab(l7)
        A(f"s_cmp_lg_u32 {sWAVE}, 5"); A(f"s_cbranch_scc1 {l5}")
        A(f"s_mov_b32 s37, {HG:#x}")
        A(f"buffer_load_dwordx4 v[{DM}:{DM+3}], v7, {sWS}, s37 offen sc1"); A(f"buffer_load_dwordx4 v[{DM}:{DM+3}], v7, {sWS}, s37 offen offset:1024 sc1")
        g.lab(l5)
        A(f"s_cmp_lg_u32 {sWAVE}, 6"); A(f"s_cbranch_scc1 {l6}")
        A(f"s_mul_i32 s37, {sRI}, {YSTR}"); A(f"s_add_u32 s37, s37, {YP:#x}")
        for k in range(4):
            A(f"buffer_load_dwordx4 v[{DM}:{DM+3}], v7, {sWS}, s37 offen sc1"); A("s_add_u32 s37, s37, 1024")
        g.lab(l6)
        g.lab(lpt)
    W1R = R0 + 64; W2R = R0 + 96; XPR = 68; APR = 72; AC = 88; XA = [ACC + i for i in range(8)]; PA = ACC + 8
    vFA = 48; vC = 49; vYA = 51
    def ffn_prep():
        A(f"v_lshlrev_b32 v7, 4, v{vLANE}"); A(f"s_mul_i32 s37, {sWAVE}, {7*1024}"); A("v_add_u32 v7, s37, v7")
        for j in range(7): A(f"ds_read_b128 v[{W1R+4*j}:{W1R+4*j+3}], v7 offset:{L_W1 + 1024*j}")
        for i in range(4): A(f"v_mov_b32 v{W1R+28+i}, 0")
        A(f"s_and_b32 s37, {sWAVE}, 3"); A("s_lshl_b32 s37, s37, 8"); A(f"s_lshr_b32 s38, {sWAVE}, 2"); A("s_lshl_b32 s38, s38, 15"); A("s_add_u32 s37, s37, s38"); A(f"s_add_u32 s37, s37, {L_W2}")
        A(f"v_lshlrev_b32 v8, 2, v{vLANE}"); A("v_add_u32 v8, s37, v8")
        for i in range(16): A(f"ds_read2st64_b32 v[{W2R+2*i}:{W2R+2*i+1}], v8 offset0:{8*i} offset1:{8*i+4}")
        for r_ in (vXH, vB2, vB1): A(f"v_lshlrev_b32 v{r_}, 16, v{r_}")
        for k in range(2):
            for e in range(4):
                x = XA[4*k+e]
                A(f"v_lshlrev_b32 v{x}, 2, v{vLANE}"); A(f"v_add_u32 v{x}, {4*56*k + e}, v{x}")
                A("s_movk_i32 s37, 1171"); A(f"v_mul_u32_u24 v9, s37, v{x}"); A("v_lshrrev_b32 v9, 16, v9")
                A(f"v_mul_u32_u24 v10, 56, v9"); A(f"v_sub_u32 v10, v{x}, v10")
                A(f"v_lshrrev_b32 v11, 4, v10"); A(f"v_lshl_add_u32 v9, v9, 2, v11")
                A("v_and_b32 v11, 7, v10"); A("v_lshl_add_u32 v9, v9, 3, v11")
                A("v_bfe_u32 v11, v10, 3, 1"); A("v_lshlrev_b32 v11, 1, v11"); A(f"v_lshl_add_u32 v{x}, v9, 2, v11")
        A("s_waitcnt lgkmcnt(0)")
        for jj in range(4):
            for i in range(4): perm_pair(g, W1R+8*jj+i, W1R+8*jj+4+i, 9)
        for i in range(16): perm_pair(g, W2R+2*i, W2R+2*i+1, 9)
        A(f"s_and_b32 s37, {sWAVE}, 3"); A("s_lshl_b32 s37, s37, 6"); A(f"v_add_u32 v{vC}, s37, v{vLANE}")
        A(f"v_lshrrev_b32 v{vFA}, 3, v{vC}"); A(f"s_movk_i32 s38, {FSTR}"); A(f"v_mul_lo_u32 v{vFA}, v{vFA}, s38"); A(f"v_and_b32 v9, 7, v{vC}"); A("v_lshlrev_b32 v9, 4, v9"); A(f"v_add_u32 v{vFA}, v{vFA}, v9")
        A(f"s_lshl_b32 s37, {sRI}, 1"); A(f"s_lshr_b32 s38, {sWAVE}, 2"); A("s_add_u32 s37, s37, s38"); A("s_lshl_b32 s37, s37, 7"); A(f"s_add_u32 s37, s37, {FP:#x}"); A(f"v_add_u32 v{vFA}, s37, v{vFA}")
    lnf = g.new("noffn")
    A(f"s_cmp_lt_u32 {sROLE}, 2"); A(f"s_cbranch_scc1 {lnf}")
    A(f"s_cmp_eq_u32 {sWAVE}, 5"); A(f"s_cselect_b32 s37, 1, 0"); A(f"s_cmp_eq_u32 {sWAVE}, 6"); A(f"s_cselect_b32 s37, 1, s37")
    A("s_cmp_eq_u32 s37, 0"); A(f"s_cbranch_scc1 {lnf}")
    ffn_prep()
    g.lab(lnf)
    A(f"v_lshrrev_b32 v{vYA}, 3, v0"); A(f"s_movk_i32 s38, {YSTR}"); A(f"v_mul_lo_u32 v{vYA}, v{vYA}, s38"); A("v_and_b32 v9, 7, v0"); A("v_lshlrev_b32 v9, 4, v9"); A(f"v_add_u32 v{vYA}, v{vYA}, v9")
    A(f"s_lshl_b32 s37, {sRI}, 7"); A(f"s_add_u32 s37, s37, {YP:#x}"); A(f"v_add_u32 v{vYA}, s37, v{vYA}")
    for i in range(8): A(f"v_mov_b32 v{PA+i}, 0")
    vLW = 52
    A(f"v_lshlrev_b32 v{vLW}, 5, v{vLANE}"); A(f"s_mul_i32 s37, {sWAVE}, 1792"); A(f"v_add_u32 v{vLW}, s37, v{vLW}")
    g.c("hop 1: combine the 16 partials of this wave's 16 dims")
    if dbg == 5: A("s_mov_b32 s92, 47"); tst(47)
    selpoll(g, [(g0, [T+11]), (g1, [T+15])], 9, 10, first_issued=True, sleep=H1SLEEP, dbgbase=48 if dbg == 5 else None)
    tst(18)
    for dst, src, ln in ((T, T+10, 0), (T+4, T+14, 0), (T+1, T+10, 1), (T+5, T+14, 1)):
        A(f"v_mov_b32_dpp v{dst}, v{src} row_newbcast:{ln} row_mask:0xf bank_mask:0x3")
    for dst, src, ln in ((T, T+10, 8), (T+4, T+14, 8), (T+1, T+10, 9), (T+5, T+14, 9)):
        A(f"v_mov_b32_dpp v{dst}, v{src} row_newbcast:{ln} row_mask:0xf bank_mask:0xc")
    A(f"v_max_f32 v9, v{T}, v{T+4}"); g.nop(2)
    allreduce_high(g, 9, 10, op="v_max_f32")
    A(f"v_sub_f32 v{T}, v{T}, v9"); A(f"v_sub_f32 v{T+4}, v{T+4}, v9")
    A(f"v_mul_f32 v{T}, {sC}, v{T}"); A(f"v_mul_f32 v{T+4}, {sC}, v{T+4}")
    A(f"v_exp_f32 v{T}, v{T}"); A(f"v_exp_f32 v{T+4}, v{T+4}"); g.nop(1)
    A(f"v_mul_f32 v{T+16}, v{T}, v{T+1}"); A(f"v_mul_f32 v{T+17}, v{T}, v{T+8}"); A(f"v_mul_f32 v{T+18}, v{T}, v{T+9}")
    A(f"v_fmac_f32 v{T+16}, v{T+4}, v{T+5}"); A(f"v_fmac_f32 v{T+17}, v{T+4}, v{T+12}"); A(f"v_fmac_f32 v{T+18}, v{T+4}, v{T+13}")
    g.nop(2)
    allreduce_high(g, [T+16, T+17, T+18], [T+19, T+20, T+21])
    A(f"v_rcp_f32 v{T+16}, v{T+16}"); g.nop(1)
    A(f"v_mul_f32 v{T+17}, v{T+17}, v{T+16}"); A(f"v_mul_f32 v{T+18}, v{T+18}, v{T+16}")
    A(f"v_cvt_pk_bf16_f32 v{T+20}, v{T+17}, v{T+18}"); g.nop(1)
    for i in range(8): A(f"v_readlane_b32 s{64+i}, v{T+20}, {i}")
    g.nop(1)
    tst(19)
    g.c("wo product for this wave's 16 rows (lanes < 56: 8 columns each)")
    for i in range(8):
        for e in range(4):
            A(f"v_dot2c_f32_bf16 v{PA+2*e}, s{64+i}, v{R0+8*i+e}")
            A(f"v_dot2c_f32_bf16 v{PA+2*e+1}, s{64+i}, v{R0+8*i+4+e}")
    A("s_mov_b32 exec_lo, -1"); A("s_mov_b32 exec_hi, 0x00ffffff"); g.nop(2)
    A(f"ds_write_b128 v{vLW}, v[{PA}:{PA+3}] offset:{L_YW}"); A(f"ds_write_b128 v{vLW}, v[{PA+4}:{PA+7}] offset:{L_YW+16}")
    A("s_mov_b64 exec, -1")
    A("s_waitcnt lgkmcnt(0)")
    A("s_barrier")
    tst(20)
    A(f"s_cmp_gt_u32 {sWAVE}, 3"); A("s_cbranch_scc1 L_ysent")
    A("v_lshlrev_b32 v8, 3, v0")
    for w in range(8): A(f"ds_read_b64 v[{T+2*w}:{T+2*w+1}], v8 offset:{L_YW+1792*w}")
    A(f"v_mov_b32 v{T+18}, 0"); A(f"v_mov_b32 v{T+19}, {sTAG}")
    A("v_cmp_gt_u32 vcc, 224, v0")
    A("s_waitcnt lgkmcnt(0)")
    for st in (4, 2, 1):
        for i in range(st): A(f"v_pk_add_f32 v[{T+2*i}:{T+2*i+1}], v[{T+2*i}:{T+2*i+1}], v[{T+2*(i+st)}:{T+2*(i+st)+1}]")
    A(f"v_mov_b32 v{T+16}, v{T}"); A(f"v_mov_b32 v{T+17}, v{T+1}")
    A("s_and_saveexec_b64 s[50:51], vcc")
    lstore(f"buffer_store_dwordx4 v[{T+16}:{T+19}], v{vYA}, {sWS}, 0 offen")
    A("s_mov_b64 exec, -1")
    tst(21)
    g.lab("L_ysent")
    A(f"s_cmp_lt_u32 {sROLE}, 2"); A("s_cbranch_scc1 L_end")
    def red16(a_, b_, t_):
        g.nop(2)
        A(f"v_permlane32_swap_b32 v{a_}, v{b_}"); g.nop(1)
        A(f"v_add_f32 v{a_}, v{a_}, v{b_}")
        A(f"v_mov_b32 v{t_}, v{a_}"); g.nop(2)
        A(f"v_permlane16_swap_b32 v{a_}, v{t_}"); g.nop(1)
        A(f"v_add_f32 v{a_}, v{a_}, v{t_}"); g.nop(2)
        dpp(g, "v_add_f32", a_, a_, a_, "row_ror:8"); g.nop(1)
    A(f"s_cmp_eq_u32 {sWAVE}, 5"); A("s_cbranch_scc1 L_a_ln")
    A(f"s_cmp_eq_u32 {sWAVE}, 6"); A("s_cbranch_scc1 L_yred")
    ffn_prep()
    A("s_branch L_a_wait")
    g.lab("L_yred")
    g.c("wave 6: reduce the 32 y partials of 16 columns -> h, publish")
    YG = T
    A(f"v_lshlrev_b32 v7, 4, v{vLANE}")
    A(f"s_mul_i32 s37, {sRI}, {YSTR}"); A(f"s_add_u32 s37, s37, {YP:#x}"); A("v_add_u32 v7, s37, v7")
    A(f"v_and_b32 v8, 7, v{vLANE}"); A("v_lshlrev_b32 v8, 1, v8"); A(f"v_lshrrev_b32 v11, 5, v{vLANE}"); A("v_add_u32 v8, v8, v11"); A("v_lshlrev_b32 v8, 2, v8")
    A(f"v_lshlrev_b32 v11, 3, v{vLANE}")
    A(f"s_lshl_b32 s46, {sRI}, 6"); A(f"s_add_u32 s46, s46, {HG:#x}")
    def mky(k):
        return lambda: A(f"buffer_load_dwordx4 v[{YG+4*k}:{YG+4*k+3}], v7, {sWS}, 0 offen{(' offset:%d' % (1024*k)) if k else ''} sc1")
    if dbg == 5: A("s_mov_b32 s92, 31"); tst(31)
    selpoll(g, [(mky(k), [YG+4*k+3]) for k in range(4)], 9, 10, dbgbase=32 if dbg == 5 else None)
    tst(22)
    A(f"v_pk_add_f32 v[{YG}:{YG+1}], v[{YG}:{YG+1}], v[{YG+4}:{YG+5}]"); A(f"v_pk_add_f32 v[{YG+8}:{YG+9}], v[{YG+8}:{YG+9}], v[{YG+12}:{YG+13}]")
    A(f"v_pk_add_f32 v[{YG}:{YG+1}], v[{YG}:{YG+1}], v[{YG+8}:{YG+9}]")
    red16(YG, YG+1, 9)
    bf16r(g, YG, YG)
    A(f"v_add_f32 v{YG}, v{YG}, v{vXH}")
    bf16r(g, YG, YG)
    A(f"v_mov_b32 v9, v{YG}"); A(f"v_mov_b32 v10, v{YG}")
    A(f"v_mov_b32 v{T+5}, {sTAG}"); A(f"v_mov_b32 v{T+7}, {sTAG}")
    A("v_permlane32_swap_b32 v9, v10"); g.nop(1)
    A(f"v_lshrrev_b32 v{T+4}, 16, v9"); A(f"v_or_b32 v{T+4}, v{T+4}, v10"); g.nop(2)
    A(f"v_mov_b32_dpp v{T+6}, v{T+4} quad_perm:[1,0,3,2] row_mask:0xf bank_mask:0xf")
    A("s_mov_b64 exec, 0x55")
    lstore(f"buffer_store_dwordx4 v[{T+4}:{T+7}], v11, {sWS}, s46 offen")
    A("s_mov_b32 exec_lo, 0xff"); A("s_mov_b32 exec_hi, 0xff")
    A(f"ds_write_b32 v8, v{YG} offset:{L_HV}")
    A("s_mov_b64 exec, -1")
    tst(24)
    A("s_branch L_a_wait")
    g.lab("L_a_ln")
    g.c("wave 5: gather h, layernorm, write xln pairs")
    A(f"v_lshlrev_b32 v7, 4, v{vLANE}"); A(f"v_add_u32 v7, {HG:#x}, v7")
    for i in range(8): A(f"v_mov_b32 v{T+i}, {sTAG}")
    A("s_mov_b32 exec_lo, -1"); A("s_mov_b32 exec_hi, 0x00ffffff")
    def hg_loads():
        A(f"buffer_load_dwordx4 v[{T}:{T+3}], v7, {sWS}, 0 offen sc1")
        A(f"buffer_load_dwordx4 v[{T+4}:{T+7}], v7, {sWS}, 0 offen offset:896 sc1")
    poll(g, hg_loads, [T+1, T+3, T+5, T+7], 9, 10)
    A("s_mov_b64 exec, -1")
    tst(25)
    A("s_mov_b32 s44, -1"); A("s_mov_b32 s45, 0x00ffffff")
    PK = [T, T+2, T+4, T+6]
    layernorm_pk(g, PK, T+8, [7, 8, 9, 10, 11, 3], "s[44:45]")
    A("s_mov_b64 exec, s[44:45]")
    for p in range(4):
        A(f"ds_write_b16 v{XA[2*p]}, v{PK[p]} offset:{L_XP}")
        A(f"ds_write_b16_d16_hi v{XA[2*p+1]}, v{PK[p]} offset:{L_XP}")
    A("s_mov_b64 exec, -1")
    g.lab("L_a_wait")
    A(f"v_lshrrev_b32 v7, 3, v{vLANE}"); A("v_lshlrev_b32 v7, 2, v7"); A(f"s_lshl_b32 s37, {sWAVE}, 7"); A("v_add_u32 v7, s37, v7")
    for i in range(8): A(f"v_mov_b32 v{AC+i}, 0")
    A("s_waitcnt lgkmcnt(0)")
    A("s_barrier")
    tst(26)
    for jj in range(4): A(f"ds_read_b32 v{XPR+jj}, v7 offset:{L_XP + 32*jj}")
    A(f"v_lshlrev_b32 v10, 2, v{vLANE}"); A(f"s_lshl_b32 s37, {sWAVE}, 8"); A("v_add_u32 v11, s37, v10")
    A("s_waitcnt lgkmcnt(0)")
    for jj in range(4):
        for i in range(4):
            A(f"v_dot2c_f32_bf16 v{AC+2*i}, v{W1R+8*jj+i}, v{XPR+jj}")
            A(f"v_dot2c_f32_bf16 v{AC+2*i+1}, v{W1R+8*jj+4+i}, v{XPR+jj}")
    r = reduce_scatter(g, [AC+i for i in range(8)], [32, 16, 8])[0]
    A(f"ds_write_b32 v11, v{r} offset:{L_AP}")
    A(f"v_and_b32 v8, 7, v{vLANE}"); A("v_lshlrev_b32 v8, 4, v8"); A(f"v_lshrrev_b32 v9, 3, v{vLANE}"); A("v_lshlrev_b32 v9, 1, v9"); A("v_add_u32 v8, v8, v9")
    A(f"s_lshr_b32 s37, {sWAVE}, 2"); A("s_lshl_b32 s37, s37, 6"); A("v_mov_b32 v9, s37")
    A("s_waitcnt lgkmcnt(0)")
    A("s_barrier")
    tst(27)
    for w in range(8): A(f"ds_read_b32 v{AC+w}, v10 offset:{L_AP + 256*w}")
    A(f"v_mov_b32 v{T+2}, 0"); A(f"v_mov_b32 v{T+3}, {sTAG}")
    A(f"v_cmp_gt_u32 vcc, 224, v{vC}")
    A("s_waitcnt lgkmcnt(0)")
    for st in (4, 2, 1):
        for i in range(st): A(f"v_add_f32 v{AC+i}, v{AC+i}, v{AC+i+st}")
    bf16r(g, AC, AC)
    A(f"v_add_f32 v{AC}, v{AC}, v{vB1}")
    bf16r(g, AC, AC)
    A(f"v_max_f32 v{AC}, 0, v{AC}")
    A(f"v_mul_f32 v{AC}, v{AC}, v{AC}")
    A(f"v_cvt_pk_bf16_f32 v{AC}, v{AC}, v{AC}")
    A(f"ds_write_b16 v8, v{AC} offset:{L_AL}")
    A("s_waitcnt lgkmcnt(0)")
    for i in range(4): A(f"ds_read_b128 v[{APR+4*i}:{APR+4*i+3}], v9 offset:{L_AL + 16*i}")
    for i in range(8): A(f"v_mov_b32 v{AC+i}, 0")
    A("s_waitcnt lgkmcnt(0)")
    for i in range(16):
        A(f"v_dot2c_f32_bf16 v{AC+(i&3)}, v{W2R+2*i}, v{APR+i}")
        A(f"v_dot2c_f32_bf16 v{AC+4+(i&3)}, v{W2R+2*i+1}, v{APR+i}")
    A("s_and_saveexec_b64 s[50:51], vcc"); g.nop(2)
    A(f"v_add_f32 v{AC}, v{AC}, v{AC+1}"); A(f"v_add_f32 v{AC+2}, v{AC+2}, v{AC+3}"); A(f"v_add_f32 v{AC+4}, v{AC+4}, v{AC+5}"); A(f"v_add_f32 v{AC+6}, v{AC+6}, v{AC+7}")
    A(f"v_add_f32 v{T}, v{AC}, v{AC+2}"); A(f"v_add_f32 v{T+1}, v{AC+4}, v{AC+6}")
    A("s_cbranch_execz L_a_nost")
    lstore(f"buffer_store_dwordx4 v[{T}:{T+3}], v{vFA}, {sWS}, 0 offen")
    g.lab("L_a_nost")
    A("s_mov_b64 exec, -1")
    tst(28)
    A(f"s_cmp_lg_u32 {sWAVE}, 7"); A("s_cbranch_scc1 L_end")
    g.c("wave 7: final reduce of the 56 partials for 16 columns")
    FG = R0
    A(f"v_lshlrev_b32 v7, 4, v{vLANE}")
    A(f"s_mul_i32 s37, {sRI}, {FSTR}"); A(f"s_add_u32 s37, s37, {FP:#x}"); A("v_add_u32 v7, s37, v7")
    A("s_movk_i32 s43, 0x1000")
    A(f"v_and_b32 v8, 7, v{vLANE}"); A("v_lshlrev_b32 v8, 1, v8"); A(f"v_lshrrev_b32 v11, 5, v{vLANE}"); A("v_add_u32 v8, v8, v11")
    A(f"v_lshlrev_b32 v11, 2, v8"); A(f"ds_read_b32 v{T+8}, v11 offset:{L_HV}")
    A(f"v_lshlrev_b32 v{T+9}, 1, v8")
    srd(g, 16, 84, 896)
    def mkf(k):
        so = "0" if k < 4 else "s43"
        off = f" offset:{1024*(k&3)}" if (k & 3) else ""
        return lambda: A(f"buffer_load_dwordx4 v[{FG+4*k}:{FG+4*k+3}], v7, {sWS}, {so} offen{off} sc1")
    if dbg == 5: A("s_mov_b32 s92, 39"); tst(30)
    selpoll(g, [(mkf(k), [FG+4*k+3]) for k in range(7)], 9, 10, dbgbase=40 if dbg == 5 else None)
    tst(29)
    def pka(x, y): A(f"v_pk_add_f32 v[{x}:{x+1}], v[{x}:{x+1}], v[{y}:{y+1}]")
    pka(FG, FG+4); pka(FG+8, FG+12); pka(FG+16, FG+20)
    pka(FG, FG+8); pka(FG+16, FG+24)
    pka(FG, FG+16)
    red16(FG, FG+1, 9)
    bf16r(g, FG, FG)
    A(f"v_add_f32 v{FG}, v{FG}, v{vB2}")
    bf16r(g, FG, FG)
    A("s_waitcnt lgkmcnt(0)")
    A(f"v_add_f32 v{FG}, v{FG}, v{T+8}")
    A(f"v_cvt_pk_bf16_f32 v{FG}, v{FG}, v{FG}")
    A(f"s_lshl_b32 s37, {sRI}, 5")
    A("s_mov_b32 exec_lo, 0xff"); A("s_mov_b32 exec_hi, 0xff")
    A(f"buffer_store_short v{FG}, v{T+9}, {sT1}, s37 offen")
    A(f"s_cmp_lg_u32 {sRI}, 0"); A("s_cbranch_scc1 L_end")
    A(f"s_add_u32 s38, {sEP}, 1"); A("v_mov_b32 v8, s38"); A("v_mov_b32 v9, 0")
    A("s_mov_b64 exec, 1")
    A(f"buffer_store_dword v8, v9, {sWS}, 0 offen sc1")
    g.lab("L_end")
    if dbg == 4:
        A("s_mov_b64 exec, -1")
        stamp(9)
    if dbg and dbg != 4:
        A("s_mov_b64 exec, -1")
        stamp(9)
        if dbg not in (3, 5): A("s_mov_b64 exec, 0xffff")
        A(f"s_lshl_b32 s37, s2, 3"); A(f"s_add_u32 s37, s37, {sWAVE}"); A(f"s_lshl_b32 s37, s37, {8 if dbg in (3, 5) else 6}"); A(f"s_add_u32 s37, s37, {DBG:#x}")
        A(f"v_lshlrev_b32 v7, 2, v{vLANE}")
        A(f"buffer_store_dword v{vSTAMP}, v7, {sWS}, s37 offen")
    g.lab("L_exit")
    A("s_endpgm")
    if GNT:
        for i, l in enumerate(g.L):
            if l.rstrip().endswith("sc1"):
                if "buffer_store" in l and (GNT & 1): g.L[i] = l + " nt"
                if "buffer_load" in l and (GNT & 2): g.L[i] = l + " nt"
    hdr = open("cdna_kernels/" + NAME + ".s.ref").read().split("\n")
    head = []
    for l in hdr:
        if l.startswith("; @launch"): head.append(f"; @launch grid=(256,1,1) block=(512,1,1) lds={LDS_BYTES}")
        elif l.startswith(";"): head.append(l)
        else: break
    return "\n".join(head) + f"""
.amdgcn_target "amdgcn-amd-amdhsa--gfx950"
.text
.globl {NAME}_kernel
.p2align 8
.type {NAME}_kernel,@function
{NAME}_kernel:
""" + "\n".join(g.L) + f"""
.section .rodata,"a"
.p2align 6
.amdhsa_kernel {NAME}_kernel
  .amdhsa_next_free_vgpr 256
  .amdhsa_next_free_sgpr 102
  .amdhsa_accum_offset 256
  .amdhsa_group_segment_fixed_size 0
  .amdhsa_kernarg_size 104
  .amdhsa_user_sgpr_count 2
  .amdhsa_user_sgpr_kernarg_segment_ptr 1
  .amdhsa_system_sgpr_workgroup_id_x 1
  .amdhsa_float_denorm_mode_32 3
.end_amdhsa_kernel
"""
if __name__ == "__main__":
    out = sys.argv[1] if len(sys.argv) > 1 else "k/v3.s"
    kw = {}
    for a in sys.argv[2:]:
        k, v = a.split("="); kw[k] = int(v)
    open(out, "w").write(generate(**kw))
    open(out.replace(".s", "_dbg.s"), "w").write(generate(dbg=1, **kw))
    open(out.replace(".s", "_lt.s"), "w").write(generate(dbg=2, **kw))
    open(out.replace(".s", "_st.s"), "w").write(generate(dbg=3, **kw))
    open(out.replace(".s", "_hb.s"), "w").write(generate(dbg=4, **kw))
    open(out.replace(".s", "_tl.s"), "w").write(generate(dbg=5, **kw))
    print("wrote", out)
```

```python
import struct, sys, math
NAME = "sequential_preLN__mha_block_cached__dense_activation_squared_relu__decode"
def f2u(x): return struct.unpack("<I", struct.pack("<f", x))[0]
CSC = f2u(0.0625 * math.log2(math.e)); EPS = f2u(1e-5); INVN = f2u(1.0 / 448.0); NEG_BIG = f2u(-3.0e38)

EPOCH = 0x0
ST = 0x200000
OP = 0x10000
HG = 0x98000
FP = 0x9A000
XG = 0x9800
QP = 0xD0000
YSTR = 4096 + 128
FSTR = 7168 + 128
YP = 0x100000
CNT = 0x1E8000
DBG = 0x300000
L_Q = 0x0; L_TAG = 0x200; L_ST = 0x400; L_OB = 0x480; L_CL = 0x4C0; L_HV = 0x600; L_AL = 0x500; L_O = 0x800; L_HP = 0x2800
L_XP = 0x2A00
L_X = 0x3000
L_AP = 0x3800
L_YW = 0x4000; L_W1 = 0x8000; L_W2 = 0x16000
LDS_BYTES = 0x26000

class Gen:
    def __init__(self): self.L = []; self.uid = 0
    def A(self, s): self.L.append("    " + s)
    def lab(self, s): self.L.append(s + ":")
    def c(self, s): self.L.append("    ; " + s)
    def new(self, p): self.uid += 1; return f"L_{p}_{self.uid}"
    def nop(self, n):
        if n > 0: self.A(f"s_nop {n-1}")

sKS = "s[4:7]"; sVS = "s[8:11]"; sWS = "s[12:15]"; sT1 = "s[16:19]"; sT2 = "s[20:23]"
sWAVE = "s24"; sH = "s25"; sS = "s26"; sTAG = "s27"; sEP = "s28"; sBASE = "s29"; sBUD = "s30"
sLAM = "s31"; sZ = "s32"; sC = "s33"; sSTEP = "s34"; sROLE = "s35"; sRI = "s36"
sGO = "s70"; sI0 = "s71"; sLIM = "s74"; sDC = "s75"; sBASE0 = "s59"; sMK = {2: ("s60", "s61"), 3: ("s62", "s63")}; sMC = {2: ("s76", "s77"), 3: ("s78", "s79")}
sNXT = "s52"; sV2 = "s53"; sV3 = "s54"; sLAM0 = "s55"; sROT = "s56"
vLANE = 1; vOFF = 2; vM = 4; vMC = 5; vL = 6
Q = 16; ACC = 32; RING = 96; TMP = 224
vXH = 64; vB2 = 65; vB1 = 66; vSTAMP = 251
sLOC = "s57"
R0 = RING
D = 4

def srd(g, dst, lo, nbytes):
    g.A(f"s_mov_b32 s{dst}, s{lo}"); g.A(f"s_mov_b32 s{dst+1}, s{lo+1}")
    g.A(f"s_mov_b32 s{dst+2}, {nbytes:#x}"); g.A(f"s_mov_b32 s{dst+3}, 0x20000")
def bf16r(g, dst, src, tmp=None):
    tmp = dst if tmp is None else tmp
    g.A(f"v_cvt_pk_bf16_f32 v{tmp}, v{src}, v{src}")
    g.A(f"v_and_b32 v{dst}, 0xffff0000, v{tmp}")
def dpp(g, op, dst, src0, src1, ctrl, rm=0xf, bm=0xf):
    g.A(f"{op}_dpp v{dst}, v{src0}, v{src1} {ctrl} row_mask:{rm:#x} bank_mask:{bm:#x}")
def wave_sum2(g, a, b, sa, sb):
    g.nop(2)
    for ctrl in ("row_ror:8", "row_ror:4", "row_ror:2", "row_ror:1"):
        dpp(g, "v_add_f32", a, a, a, ctrl); dpp(g, "v_add_f32", b, b, b, ctrl); g.nop(1)
    dpp(g, "v_add_f32", a, a, a, "row_bcast:15", rm=0xa); dpp(g, "v_add_f32", b, b, b, "row_bcast:15", rm=0xa); g.nop(1)
    dpp(g, "v_add_f32", a, a, a, "row_bcast:31", rm=0xc); dpp(g, "v_add_f32", b, b, b, "row_bcast:31", rm=0xc); g.nop(1)
    g.A(f"v_readlane_b32 {sa}, v{a}, 63"); g.A(f"v_readlane_b32 {sb}, v{b}, 63")
    g.nop(2)
def layernorm(g, vals, t, masked=None):
    c, s1, s2, y, mean, rs = t[:6]
    g.A(f"v_readfirstlane_b32 s37, v{vals[0]}")
    g.A(f"v_mov_b32 v{s1}, 0"); g.A(f"v_mov_b32 v{s2}, 0")
    if masked: g.A(f"s_mov_b64 exec, {masked}")
    for v in vals:
        g.A(f"v_subrev_f32 v{y}, s37, v{v}")
        g.A(f"v_add_f32 v{s1}, v{s1}, v{y}")
        g.A(f"v_fmac_f32 v{s2}, v{y}, v{y}")
    if masked: g.A("s_mov_b64 exec, -1")
    wave_sum2(g, s1, s2, "s38", "s39")
    g.A(f"s_mov_b32 s40, {INVN:#x}")
    g.A(f"v_mul_f32 v{y}, s38, v{rs}") if False else None
    g.A(f"v_mov_b32 v{y}, s38"); g.A(f"v_mov_b32 v{s2}, s39")
    g.A(f"v_mul_f32 v{y}, s40, v{y}"); g.A(f"v_mul_f32 v{s2}, s40, v{s2}")
    g.A(f"v_add_f32 v{mean}, s37, v{y}")
    g.A(f"v_fma_f32 v{s2}, -v{y}, v{y}, v{s2}")
    g.A(f"v_max_f32 v{s2}, 0, v{s2}")
    bf16r(g, mean, mean)
    bf16r(g, s2, s2)
    g.A(f"v_add_f32 v{s2}, {EPS:#x}, v{s2}")
    bf16r(g, s2, s2)
    g.A(f"v_sqrt_f32 v{s2}, v{s2}")
    for v in vals: g.A(f"v_sub_f32 v{v}, v{v}, v{mean}")
    bf16r(g, s2, s2)
    g.A(f"v_rcp_f32 v{rs}, v{s2}")
    for v in vals: bf16r(g, v, v)
    for v in vals:
        g.A(f"v_mul_f32 v{y}, v{v}, v{rs}")
        g.A(f"v_fma_f32 v{v}, -v{y}, v{s2}, v{v}")
        g.A(f"v_fma_f32 v{v}, v{v}, v{rs}, v{y}")
    for v in vals: bf16r(g, v, v)
def layernorm_pk(g, pk, w, t, masked):
    c, s1, s2, y, mean, rs = t[:6]
    for i in range(4):
        g.A(f"v_lshlrev_b32 v{w+2*i}, 16, v{pk[i]}"); g.A(f"v_and_b32 v{w+2*i+1}, 0xffff0000, v{pk[i]}")
    g.A(f"v_readfirstlane_b32 s37, v{w}")
    g.A(f"v_mov_b32 v{s1}, 0"); g.A(f"v_mov_b32 v{s2}, 0")
    g.A(f"s_mov_b64 exec, {masked}")
    for i in range(8):
        g.A(f"v_subrev_f32 v{y}, s37, v{w+i}")
        g.A(f"v_add_f32 v{s1}, v{s1}, v{y}")
        g.A(f"v_fmac_f32 v{s2}, v{y}, v{y}")
    g.A("s_mov_b64 exec, -1")
    wave_sum2(g, s1, s2, "s38", "s39")
    g.A(f"s_mov_b32 s40, {INVN:#x}")
    g.A(f"v_mov_b32 v{y}, s38"); g.A(f"v_mov_b32 v{s2}, s39")
    g.A(f"v_mul_f32 v{y}, s40, v{y}"); g.A(f"v_mul_f32 v{s2}, s40, v{s2}")
    g.A(f"v_add_f32 v{mean}, s37, v{y}")
    g.A(f"v_fma_f32 v{s2}, -v{y}, v{y}, v{s2}")
    g.A(f"v_cvt_pk_bf16_f32 v{mean}, v{mean}, v{mean}")
    g.A(f"v_max_f32 v{s2}, 0, v{s2}")
    g.A(f"v_and_b32 v{mean}, 0xffff0000, v{mean}")
    bf16r(g, s2, s2)
    g.A(f"v_add_f32 v{s2}, {EPS:#x}, v{s2}")
    for i in range(0, 4): g.A(f"v_sub_f32 v{w+i}, v{w+i}, v{mean}")
    bf16r(g, s2, s2)
    g.A(f"v_sqrt_f32 v{s2}, v{s2}")
    for i in range(4, 8): g.A(f"v_sub_f32 v{w+i}, v{w+i}, v{mean}")
    bf16r(g, s2, s2)
    g.A(f"v_rcp_f32 v{rs}, v{s2}")
    for i in range(4): g.A(f"v_cvt_pk_bf16_f32 v{pk[i]}, v{w+2*i}, v{w+2*i+1}")
    for i in range(4):
        g.A(f"v_lshlrev_b32 v{w+2*i}, 16, v{pk[i]}"); g.A(f"v_and_b32 v{w+2*i+1}, 0xffff0000, v{pk[i]}")
    for i in range(8): g.A(f"v_mul_f32 v{w+8+i}, v{w+i}, v{rs}")
    for i in range(8): g.A(f"v_fma_f32 v{w+i}, -v{w+8+i}, v{s2}, v{w+i}")
    for i in range(8): g.A(f"v_fma_f32 v{w+i}, v{w+i}, v{rs}, v{w+8+i}")
    for i in range(4): g.A(f"v_cvt_pk_bf16_f32 v{pk[i]}, v{w+2*i}, v{w+2*i+1}")
def reduce_scatter(g, regs, stages, pre=3):
    regs = list(regs)
    g.nop(pre)
    for st in stages:
        h = len(regs) // 2
        lo, hi = regs[:h], regs[h:]
        if st in (32, 16):
            for a, b in zip(lo, hi): g.A(f"v_permlane{st}_swap_b32 v{a}, v{b}")
            g.nop(1 if h > 1 else 2)
            if h >= 2 and lo[0] % 2 == 0 and hi[0] % 2 == 0 and lo == list(range(lo[0], lo[0] + h)) and hi == list(range(hi[0], hi[0] + h)):
                for j in range(0, h, 2): g.A(f"v_pk_add_f32 v[{lo[j]}:{lo[j]+1}], v[{lo[j]}:{lo[j]+1}], v[{hi[j]}:{hi[j]+1}]")
                g.nop(2)
            else:
                for a, b in zip(lo, hi): g.A(f"v_add_f32 v{a}, v{a}, v{b}")
                g.nop(max(0, 2 - (h - 1 - h // 2)))
        elif st == 8:
            for a, b in zip(lo, hi): dpp(g, "v_add_f32", a, a, a, "row_ror:8", bm=0x3)
            for a, b in zip(lo, hi): dpp(g, "v_add_f32", a, b, b, "row_ror:8", bm=0xc)
            g.nop(2)
        elif st == 4:
            for a, b in zip(lo, hi): dpp(g, "v_add_f32", a, a, a, "row_shl:4", bm=0x5)
            for a, b in zip(lo, hi): dpp(g, "v_add_f32", a, b, b, "row_shr:4", bm=0xa)
            g.nop(2)
        regs = lo
    return regs
def allreduce_low(g, r, bits, op="v_add_f32"):
    for b in bits:
        ctrl = {0: "quad_perm:[1,0,3,2]", 1: "quad_perm:[2,3,0,1]", 2: "row_half_mirror"}[b]
        dpp(g, op, r, r, r, ctrl); g.nop(2)
def allreduce_high(g, regs, tmps, op="v_add_f32"):
    if not isinstance(regs, list): regs = [regs]; tmps = [tmps]
    n = len(regs)
    for r in regs: dpp(g, op, r, r, r, "row_ror:8")
    for st in (16, 32):
        for r, t in zip(regs, tmps): g.A(f"v_mov_b32 v{t}, v{r}")
        g.nop(max(0, 3 - n) if n > 1 else 2)
        for r, t in zip(regs, tmps): g.A(f"v_permlane{st}_swap_b32 v{r}, v{t}")
        g.nop(1)
        for r, t in zip(regs, tmps): g.A(f"{op} v{r}, v{r}, v{t}")
    g.nop(2)
def poll(g, emit_loads, tagregs, t0, t1, sleep=0):
    lp = g.new("poll"); ok = g.new("ok")
    g.lab(lp)
    emit_loads()
    g.A("s_waitcnt vmcnt(0)")
    g.A(f"v_xor_b32 v{t0}, {sTAG}, v{tagregs[0]}")
    for t in tagregs[1:]:
        g.A(f"v_xor_b32 v{t1}, {sTAG}, v{t}")
        g.A(f"v_or_b32 v{t0}, v{t0}, v{t1}")
    g.A(f"v_cmp_ne_u32 vcc, 0, v{t0}")
    g.A(f"s_cbranch_vccz {ok}")
    if sleep: g.A(f"s_sleep {sleep}")
    g.A(f"s_sub_u32 {sBUD}, {sBUD}, 1")
    g.A(f"s_cbranch_scc0 {lp}")
    g.A(f"s_mov_b32 {sBUD}, 0")
    g.lab(ok)
def selpoll(g, groups, t0, t1, sflags="s49", first_issued=False, sleep=0, dbgbase=None):
    n = len(groups)
    lp = g.new("sp"); ok = g.new("spok"); chk = g.new("spchk")
    g.A(f"s_mov_b32 {sflags}, {(1 << n) - 1}")
    if first_issued: g.A(f"s_branch {chk}")
    g.lab(lp)
    for i, (ld, tags) in enumerate(groups):
        sk = g.new("sk")
        g.A(f"s_bitcmp1_b32 {sflags}, {i}"); g.A(f"s_cbranch_scc0 {sk}")
        ld()
        g.lab(sk)
    g.lab(chk)
    g.A("s_waitcnt vmcnt(0)")
    if dbgbase is not None:
        g.A("s_memrealtime s[90:91]"); g.A("s_waitcnt lgkmcnt(0)")
        g.A("s_add_u32 s92, s92, 1"); g.A(f"s_min_u32 m0, s92, {dbgbase+7}"); g.A("s_nop 0")
        g.A(f"v_writelane_b32 v{vSTAMP}, s90, m0")
    for i, (ld, tags) in enumerate(groups):
        sk = g.new("sc")
        g.A(f"s_bitcmp1_b32 {sflags}, {i}"); g.A(f"s_cbranch_scc0 {sk}")
        if len(tags) == 1:
            g.A(f"v_cmp_ne_u32 vcc, {sTAG}, v{tags[0]}")
        else:
            g.A(f"v_xor_b32 v{t0}, {sTAG}, v{tags[0]}")
            for t in tags[1:]:
                g.A(f"v_xor_b32 v{t1}, {sTAG}, v{t}"); g.A(f"v_or_b32 v{t0}, v{t0}, v{t1}")
            g.A(f"v_cmp_ne_u32 vcc, 0, v{t0}")
        g.A(f"s_cbranch_vccnz {sk}")
        g.A(f"s_bitset0_b32 {sflags}, {i}")
        g.lab(sk)
    g.A(f"s_cmp_eq_u32 {sflags}, 0"); g.A(f"s_cbranch_scc1 {ok}")
    if sleep: g.A(f"s_sleep {sleep}")
    g.A(f"s_sub_u32 {sBUD}, {sBUD}, 1")
    g.A(f"s_cbranch_scc0 {lp}")
    g.A(f"s_mov_b32 {sBUD}, 0")
    g.lab(ok)
def pipepoll(g, n, emit_load, final, setA, setB, tagoffs, t0, scratch, stagger, first_in_final=False, sflags="s49"):
    done = g.new("ppd"); lp = g.new("ppl")
    def check(base, copy):
        for i in range(n):
            sk = g.new("pc")
            g.A(f"s_bitcmp1_b32 {sflags}, {i}"); g.A(f"s_cbranch_scc0 {sk}")
            r = base + 4*i
            if len(tagoffs) == 1:
                g.A(f"v_cmp_ne_u32 vcc, {sTAG}, v{r+tagoffs[0]}")
            else:
                g.A(f"v_xor_b32 v{t0}, {sTAG}, v{r+tagoffs[0]}"); g.A(f"v_xor_b32 v{t0+1}, {sTAG}, v{r+tagoffs[1]}")
                g.A(f"v_or_b32 v{t0}, v{t0}, v{t0+1}"); g.A(f"v_cmp_ne_u32 vcc, 0, v{t0}")
            g.A(f"s_cbranch_vccnz {sk}")
            g.A(f"s_bitset0_b32 {sflags}, {i}")
            if copy:
                for e in range(4):
                    if e not in tagoffs: g.A(f"v_mov_b32 v{final+4*i+e}, v{r+e}")
            g.lab(sk)
    def issue(base):
        for i in range(n):
            dm = g.new("pi"); nx = g.new("pn")
            g.A(f"s_bitcmp1_b32 {sflags}, {i}"); g.A(f"s_cbranch_scc0 {dm}")
            emit_load(i, base + 4*i); g.A(f"s_branch {nx}")
            g.lab(dm)
            g.A("s_mov_b64 exec, 1"); g.A(f"buffer_load_dword v{scratch}, v{scratch+1}, {sWS}, 0 offen"); g.A("s_mov_b64 exec, -1")
            g.lab(nx)
    g.A(f"s_mov_b32 {sflags}, {(1 << n) - 1}")
    g.A(f"v_mov_b32 v{scratch+1}, 0x7ff00000")
    if first_in_final:
        g.A("s_waitcnt vmcnt(0)")
        check(final, False)
        g.A(f"s_cmp_eq_u32 {sflags}, 0"); g.A(f"s_cbranch_scc1 {done}")
    issue(setA)
    if stagger: g.A(f"s_sleep {stagger}")
    g.lab(lp)
    issue(setB)
    g.A(f"s_waitcnt vmcnt({n})")
    check(setA, True)
    g.A(f"s_cmp_eq_u32 {sflags}, 0"); g.A(f"s_cbranch_scc1 {done}")
    issue(setA)
    g.A(f"s_waitcnt vmcnt({n})")
    check(setB, True)
    g.A(f"s_cmp_eq_u32 {sflags}, 0"); g.A(f"s_cbranch_scc1 {done}")
    g.A(f"s_sub_u32 {sBUD}, {sBUD}, 1")
    g.A(f"s_cbranch_scc0 {lp}")
    g.A(f"s_mov_b32 {sBUD}, 0")
    g.lab(done)
def perm_pair(g, a, b, tmp):
    g.A(f"v_perm_b32 v{tmp}, v{b}, v{a}, s41")
    g.A(f"v_perm_b32 v{b}, v{b}, v{a}, s42")
    g.A(f"v_mov_b32 v{a}, v{tmp}")

def generate(dbg=False, SK=3, DD=2, B0=1, TLBW=0, X5=1, ADF=0, HALF=0, RWX=16, ROT=64, BAR=1, H1SLEEP=0, PACE=4, NS=25, COMP=14, QPRE=3, PRE=4, QD=0, H1N=14, CPF=16, CPFN=3, SD=0, NOCOMP=0, FAKE=0, LOOK=1, CSTR=4352, AFL=2, GNT=0, TOUCH=0, NOLOC=0, TPF=0, PT=3, PTD=0, PP=3, PPS1=5, PPS2=7):
    g = Gen(); A = g.A
    HF = 512 - HALF
    NIT = HF + 2*HALF
    def stepstamp():
        if dbg == 3:
            A("s_memrealtime s[90:91]"); A("s_waitcnt lgkmcnt(0)")
            A("s_add_u32 s92, s92, 1"); A("s_min_u32 m0, s92, 63"); A("s_nop 0")
            A(f"v_writelane_b32 v{vSTAMP}, s90, m0")
    def hstamp(slot, cond_id, wave=0):
        if dbg == 4:
            l = g.new("hs")
            A(f"s_cmp_lg_u32 s2, {cond_id}"); A(f"s_cbranch_scc1 {l}")
            A(f"s_cmp_lg_u32 {sWAVE}, {wave}"); A(f"s_cbranch_scc1 {l}")
            A("s_memrealtime s[90:91]"); A("s_waitcnt lgkmcnt(0)")
            A("s_mov_b32 s96, s86"); A("s_mov_b32 s97, s87"); A("s_mov_b32 s98, 256"); A("s_mov_b32 s99, 0x20000")
            A(f"v_mov_b32 v252, s90"); A(f"v_mov_b32 v253, {4*slot}")
            A("s_mov_b64 s[92:93], exec"); A("s_mov_b64 exec, 1")
            A("buffer_store_dword v252, v253, s[96:99], 0 offen")
            A("s_mov_b64 exec, s[92:93]")
            g.lab(l)
    def tst(i):
        if dbg == 5:
            A("s_memrealtime s[90:91]"); A("s_waitcnt lgkmcnt(0)")
            A(f"v_writelane_b32 v{vSTAMP}, s90, {i}")
    def code_pf(wave, lab_from, lab_to, n, vd):
        l = g.new("cpf"); lp = g.new("cpc")
        A(f"s_cmp_lg_u32 {sWAVE}, {wave}"); A(f"s_cbranch_scc1 {l}")
        A("s_getpc_b64 s[96:97]")
        g.lab(lp)
        A(f"s_add_u32 s96, s96, {lab_from}-{lp}"); A("s_addc_u32 s97, s97, 0")
        A(f"v_lshlrev_b32 v3, 7, v{vLANE}")
        A(f"s_mov_b32 s98, {lab_to}-{lab_from}")
        le = g.new("cpe")
        for i in range(n):
            A("v_cmp_gt_u32 vcc, s98, v3"); A("s_and_b64 exec, exec, vcc")
            A(f"s_cbranch_execz {le}")
            A(f"global_load_dword v{vd}, v3, s[96:97]")
            A("v_add_u32 v3, 0x2000, v3")
        g.lab(le)
        A("s_mov_b64 exec, -1")
        g.lab(l)
    def stamp(i):
        if dbg == 5:
            if i in (3, 9): tst(i)
            return
        if dbg == 4:
            if i == 2:
                hstamp(2, 0); hstamp(3, 255)
            if i == 3:
                hstamp(4, 0); hstamp(5, 77); hstamp(6, 130); hstamp(7, 255)
            if i == 9:
                hstamp(8, 3); hstamp(9, 0); hstamp(10, 19)
            return
        if dbg == 3 and i in (3, 9):
            A("s_memrealtime s[90:91]"); A("s_waitcnt lgkmcnt(0)")
            A(f"v_writelane_b32 v{vSTAMP}, s90, {i}")
        if dbg == 1 or (dbg == 2 and i in (2, 3, 9, 4, 5)) :
            A("s_memrealtime s[90:91]"); A("s_waitcnt lgkmcnt(0)")
            A(f"v_writelane_b32 v{vSTAMP}, s90, {i}")
    A("s_cmp_ge_u32 s2, 256")
    A("s_cbranch_scc1 L_exit")
    if dbg: A("s_memrealtime s[94:95]")
    A("s_load_dwordx16 s[64:79], s[0:1], 0")
    A("s_load_dwordx8 s[80:87], s[0:1], 64")
    A("s_load_dwordx2 s[88:89], s[0:1], 96")
    A(f"v_and_b32 v{vLANE}, 63, v0")
    if CPF:
        g.c("code prefetch into L2 (wave 7 of the first CPF workgroups)")
        A(f"s_cmp_ge_u32 s2, {CPF}"); A("s_cbranch_scc1 L_nocpf")
        A("v_cmp_lt_u32 vcc, 447, v0"); A("s_cbranch_vccz L_nocpf")
        A("s_getpc_b64 s[96:97]")
        g.lab("L_pc")
        A(f"v_lshlrev_b32 v3, 7, v{vLANE}")
        A("s_mov_b32 s98, L_exit-L_pc")
        for i in range(CPFN):
            A("v_cmp_gt_u32 vcc, s98, v3"); A("s_and_b64 exec, exec, vcc")
            A(f"s_cbranch_execz L_cpfend")
            A(f"global_load_dword v{252+(i&3)}, v3, s[96:97]")
            A("v_add_u32 v3, 0x2000, v3")
        g.lab("L_cpfend")
        A("s_mov_b64 exec, -1")
        g.lab("L_nocpf")
    A("v_lshrrev_b32 v3, 6, v0")
    A(f"v_lshrrev_b32 v7, 3, v{vLANE}")
    A(f"v_readfirstlane_b32 {sWAVE}, v3")
    A("v_lshlrev_b32 v7, 9, v7")
    A(f"v_and_b32 v{vOFF}, 7, v{vLANE}")
    A(f"v_lshlrev_b32 v{vOFF}, 4, v{vOFF}")
    A(f"v_add_u32 v{vOFF}, v{vOFF}, v7")
    A(f"s_lshr_b32 {sH}, s2, 4")
    A(f"s_and_b32 {sS}, s2, 15")
    A(f"s_lshl_b32 {sBASE}, {sH}, 24"); A(f"s_mov_b32 {sBASE0}, {sBASE}")
    A(f"s_mul_i32 {sROT}, {sH}, {ROT*8}")
    A(f"s_lshl_b32 {sLAM0}, {sS}, 3"); A(f"s_add_u32 {sLAM0}, {sLAM0}, {sWAVE}")
    A(f"s_mov_b32 {sZ}, 0")
    A(f"s_mov_b32 {sC}, {CSC:#x}")
    A(f"s_mov_b32 {sBUD}, 0x40000")
    A("s_waitcnt lgkmcnt(0)")
    if dbg and dbg != 4: A(f"v_mov_b32 v{vSTAMP}, 0"); A(f"v_writelane_b32 v{vSTAMP}, s94, 0")
    srd(g, 4, 66, 0x10000000); srd(g, 8, 68, 0x10000000); srd(g, 12, 88, 0x40000000)
    hstamp(0, 0); hstamp(1, 255)
    def tile_addr(vdst):
        if SK:
            A(f"s_mul_i32 s46, {sZ}, {SK}"); A(f"s_add_u32 s46, s46, {sS}"); A("s_and_b32 s46, s46, 15"); A("s_lshl_b32 s46, s46, 3")
            A(f"s_add_u32 s46, s46, {sWAVE}"); A(f"s_lshl_b32 s47, {sZ}, 7"); A("s_add_u32 s46, s46, s47")
        else:
            A(f"s_lshl_b32 s46, {sZ}, 7"); A(f"s_add_u32 s46, s46, {sLAM0}")
        A(f"s_add_u32 s46, s46, {sROT}"); A("s_and_b32 s46, s46, 4095"); A("s_lshl_b32 s46, s46, 12")
        A(f"s_add_u32 s46, s46, {sBASE}")
        A(f"v_add_u32 v{vdst}, s46, v{vOFF}")
        A(f"s_add_u32 {sZ}, {sZ}, 1")
    def tile_addr_dyn(vdst, smk):
        A(f"s_lshl_b32 s46, {sNXT}, 6"); A(f"s_lshl_b32 s47, {sWAVE}, 3"); A("s_add_u32 s46, s46, s47")
        if HALF:
            A(f"s_lshl_b32 s47, {sNXT}, 5"); A(f"s_add_u32 s47, s47, {32*HF}"); A(f"s_lshl_b32 s49, {sWAVE}, 2"); A("s_add_u32 s47, s47, s49")
            A(f"s_cmp_lt_u32 {sNXT}, {HF}"); A("s_cselect_b32 s46, s46, s47")
            A(f"s_cselect_b32 {smk[1]}, -1, 0"); A(f"s_mov_b32 {smk[0]}, -1")
        else:
            A(f"s_mov_b32 {smk[0]}, -1"); A(f"s_mov_b32 {smk[1]}, -1")
        A(f"s_lshl_b32 s47, {sROT}, 3"); A("s_add_u32 s46, s46, s47"); A("s_and_b32 s46, s46, 32767"); A("s_lshl_b32 s46, s46, 9")
        A(f"s_add_u32 s46, s46, {sBASE0}")
        A(f"s_cmp_lt_u32 {sNXT}, {NIT}")
        A(f"s_cselect_b32 s46, s46, 0x80000000")
        A(f"s_cselect_b32 {smk[0]}, {smk[0]}, 1"); A(f"s_cselect_b32 {smk[1]}, {smk[1]}, 0")
        A(f"v_add_u32 v{vdst}, s46, v{vOFF}")
    def loads(b, srdn, va):
        for j in range(4):
            off = f" offset:{j*128}" if j else ""
            A(f"buffer_load_dwordx4 v[{b+4*j}:{b+4*j+3}], v{va}, {srdn}, 0 offen{off} nt")
    VA = [12, 13, 14, 15]
    KB = [RING + 32*k for k in range(D)]; VB = [RING + 32*k + 16 for k in range(D)]
    if X5:
        KB.append(64); VB.append(80); VA.append(3)
    DP = D + (1 if X5 else 0)
    A(f"s_cmp_lg_u32 {sWAVE}, 0")
    A("s_cbranch_scc1 L_others")
    g.c("wave0: x, epoch, wq partial loads (64 cols x 112 rows)")
    A("s_setprio 3")
    srd(g, 16, 64, 896); srd(g, 20, 70, 448*8192)
    A("v_mov_b32 v8, 0")
    A(f"v_lshlrev_b32 v9, 1, v{vLANE}")
    XR = [88+k for k in range(7)]
    for k in range(7): A(f"buffer_load_ushort v{XR[k]}, v9, {sT1}, 0 offen offset:{128*k} nt")
    A(f"buffer_load_dword v95, v8, {sWS}, 0 offen sc1")
    A(f"s_mul_i32 s44, {sH}, {CSTR}"); A(f"s_add_u32 s44, s44, {CNT:#x}")
    A(f"s_cmp_lg_u32 {sS}, 0"); A("s_cbranch_scc1 L_nozero")
    A("s_mov_b64 exec, 1")
    A(f"buffer_store_dword v8, v8, {sWS}, s44 offen sc1")
    A("s_mov_b64 exec, -1")
    g.lab("L_nozero")
    A("s_and_b32 s43, s2, 3")
    A("s_lshr_b32 s44, s2, 2"); A("s_lshl_b32 s44, s44, 7")
    A(f"s_mul_i32 s45, s43, {112*8192}"); A("s_add_u32 s44, s44, s45")
    A(f"v_lshrrev_b32 v10, 3, v{vLANE}"); A("v_lshlrev_b32 v10, 13, v10")
    A(f"v_and_b32 v11, 7, v{vLANE}"); A("v_lshlrev_b32 v11, 4, v11"); A("v_add3_u32 v10, v10, v11, s44")
    WQ = 32
    for j in range(14):
        A(f"s_mov_b32 s45, {j*8*8192}")
        A(f"buffer_load_dwordx4 v[{WQ+4*j}:{WQ+4*j+3}], v10, {sT2}, s45 offen nt")
    if TOUCH & 2:
        A(f"v_lshlrev_b32 v11, 4, v{vLANE}")
        A(f"s_lshl_b32 s44, {sH}, 13"); A(f"s_add_u32 s44, s44, {QP:#x}")
        for kq in range(8):
            A(f"buffer_load_dwordx4 v[{TMP+20}:{TMP+23}], v11, {sWS}, s44 offen sc1")
            A("s_add_u32 s44, s44, 1024")
    if B0: A("s_barrier")
    g.c("wave0: layernorm(x), q partial")
    A("s_waitcnt vmcnt(15)")
    stamp(13)
    for k in range(7): A(f"v_lshlrev_b32 v{XR[k]}, 16, v{XR[k]}")
    layernorm(g, XR, [TMP, TMP+1, TMP+2, TMP+3, TMP+4, TMP+5])
    A(f"v_lshlrev_b32 v9, 2, v{vLANE}")
    for k in range(7): A(f"ds_write_b32 v9, v{XR[k]} offset:{L_X + 256*k}")
    A("s_mul_i32 s45, s43, 448")
    A(f"v_lshrrev_b32 v9, 3, v{vLANE}"); A("v_lshlrev_b32 v9, 2, v9"); A("v_add_u32 v9, s45, v9")
    A("s_waitcnt lgkmcnt(0)")
    XJ = [TMP + j for j in range(14)]
    for j in range(14): A(f"ds_read_b32 v{XJ[j]}, v9 offset:{L_X + 32*j}")
    A(f"s_waitcnt vmcnt({14 + (8 if TOUCH & 2 else 0)})")
    A(f"v_readfirstlane_b32 {sEP}, v95")
    for i in range(8): A(f"v_mov_b32 v{Q+i}, 0")
    A(f"s_mul_i32 {sTAG}, {sEP}, 0x9E3779B1")
    A(f"s_add_u32 {sTAG}, {sTAG}, 0x85EBCA6B")
    A("s_waitcnt vmcnt(0) lgkmcnt(0)")
    stamp(14)
    for j in range(14):
        xl = TMP + 14 + (j & 1)
        A(f"v_lshrrev_b32 v{xl}, 16, v{XJ[j]}")
        for i in range(4):
            A(f"v_dot2c_f32_bf16 v{Q+2*i}, v{WQ+4*j+i}, v{xl}")
            A(f"v_dot2c_f32_bf16 v{Q+2*i+1}, v{WQ+4*j+i}, v{XJ[j]}")
    r = reduce_scatter(g, [Q+i for i in range(8)], [32, 16, 8])[0]
    A(f"v_mov_b32_dpp v{r+2}, v{r} row_ror:8 row_mask:0xf bank_mask:0xf")
    A(f"v_mov_b32 v{r+1}, {sTAG}"); A(f"v_mov_b32 v{r+3}, {sTAG}")
    A(f"v_and_b32 v9, 7, v{vLANE}"); A("v_lshlrev_b32 v9, 6, v9")
    A(f"v_lshrrev_b32 v11, 3, v{vLANE}"); A("v_lshlrev_b32 v11, 3, v11"); A("v_add_u32 v9, v9, v11")
    A(f"s_lshl_b32 s44, {sH}, 13"); A("s_lshl_b32 s45, s43, 11"); A("s_add_u32 s44, s44, s45")
    A(f"s_lshr_b32 s45, {sS}, 2"); A("s_lshl_b32 s45, s45, 9"); A("s_add_u32 s44, s44, s45"); A(f"s_add_u32 s44, s44, {QP:#x}")
    A("s_mov_b32 exec_lo, 0x00ff00ff"); A("s_mov_b32 exec_hi, 0x00ff00ff")
    A(f"buffer_store_dwordx4 v[{r}:{r+3}], v9, {sWS}, s44 offen sc1")
    A("s_mov_b64 exec, -1")
    stamp(1)
    g.c("wave0: gather q partials of own head")
    A(f"v_lshlrev_b32 v9, 4, v{vLANE}")
    A(f"s_lshl_b32 s44, {sH}, 13"); A(f"s_add_u32 s44, s44, {QP:#x}")
    A("v_add_u32 v9, s44, v9")
    A(f"v_lshlrev_b32 v11, 4, v{vLANE}")
    for i in range(4): A(f"v_mov_b32 v{TMP+16+i}, 0")
    A(f"ds_write_b128 v11, v[{TMP+16}:{TMP+19}] offset:{L_XP}")
    for k in range(QPRE):
        tile_addr(VA[k]); loads(KB[k], sKS, VA[k]); loads(VB[k], sVS, VA[k])
    if QD: A(f"s_sleep {QD}")
    QG = 32
    def q_loads():
        for kq in range(4):
            A(f"s_movk_i32 s45, {kq*2048}")
            for i in range(2):
                off = f" offset:{i*1024}" if i else ""
                A(f"buffer_load_dwordx4 v[{QG+8*kq+4*i}:{QG+8*kq+4*i+3}], v9, {sWS}, s45 offen{off} sc1")
    qtags = [QG+4*m+1 for m in range(8)] + [QG+4*m+3 for m in range(8)]
    q_loads()
    A("s_barrier")
    stamp(12)
    A("s_waitcnt vmcnt(0)")
    A(f"v_xor_b32 v{TMP+5}, {sTAG}, v{qtags[0]}")
    for t in qtags[1:]:
        A(f"v_xor_b32 v{TMP+6}, {sTAG}, v{t}"); A(f"v_or_b32 v{TMP+5}, v{TMP+5}, v{TMP+6}")
    A(f"v_cmp_ne_u32 vcc, 0, v{TMP+5}")
    A("s_cbranch_vccz L_qok")
    A(f"s_sub_u32 {sBUD}, {sBUD}, 1")
    poll(g, q_loads, qtags, TMP+5, TMP+6)
    g.lab("L_qok")
    stamp(10)
    if dbg == 1: A(f"v_writelane_b32 v{vSTAMP}, {sBUD}, 11")
    for i in range(2):
        for e in (0, 2):
            A(f"v_add_f32 v{QG+4*i+e}, v{QG+4*i+e}, v{QG+8+4*i+e}")
            A(f"v_add_f32 v{QG+16+4*i+e}, v{QG+16+4*i+e}, v{QG+24+4*i+e}")
            A(f"v_add_f32 v{QG+4*i+e}, v{QG+4*i+e}, v{QG+16+4*i+e}")
        A(f"v_cvt_pk_bf16_f32 v{TMP+8+i}, v{QG+4*i}, v{QG+4*i+2}")
    A(f"v_lshlrev_b32 v9, 2, v{vLANE}")
    A(f"ds_write_b32 v9, v{TMP+8} offset:{L_Q}")
    A(f"ds_write_b32 v9, v{TMP+9} offset:{L_Q+256}")
    A(f"v_mov_b32 v{TMP+12}, {sTAG}"); A(f"v_mov_b32 v{TMP+13}, {sEP}"); A(f"v_mov_b32 v{TMP+7}, 0")
    A(f"ds_write_b64 v{TMP+7}, v[{TMP+12}:{TMP+13}] offset:{L_TAG}")
    for k in range(QPRE, DP):
        tile_addr(VA[k]); loads(KB[k], sKS, VA[k]); loads(VB[k], sVS, VA[k])
    A("s_setprio 0")
    A("s_waitcnt lgkmcnt(0)")
    A("s_branch L_waitq")
    g.lab("L_others")
    if B0: A("s_barrier")
    if SD: A(f"s_sleep {SD}")
    groups = []
    for k in range(DP): groups += [("K", k), ("V", k)]
    for gi, (kind, k) in enumerate(groups):
        if gi == PRE: A("s_barrier")
        if kind == "K": tile_addr(VA[k]); loads(KB[k], sKS, VA[k])
        else: loads(VB[k], sVS, VA[k])
    if TLBW:
        g.c("warm the address translation of this head's K/V pages through the scalar path (wave TLBW)")
        lw = g.new("tw")
        A(f"s_cmp_lg_u32 {sWAVE}, {TLBW}"); A(f"s_cbranch_scc1 {lw}")
        A(f"s_add_u32 s96, s66, {sBASE}"); A("s_addc_u32 s97, s67, 0")
        A(f"s_add_u32 s98, s68, {sBASE}"); A("s_addc_u32 s99, s69, 0")
        for p in range(8):
            A(f"s_load_dword s100, s[96:97], 0"); A(f"s_load_dword s101, s[98:99], 0")
            A("s_add_u32 s96, s96, 0x200000"); A("s_addc_u32 s97, s97, 0"); A("s_add_u32 s98, s98, 0x200000"); A("s_addc_u32 s99, s99, 0")
        g.lab(lw)
    g.lab("L_waitq")
    A("s_barrier")
    stamp(2)
    if dbg == 5:
        A("s_memtime s[90:91]"); A("s_waitcnt lgkmcnt(0)"); A(f"v_writelane_b32 v{vSTAMP}, s90, 58")
        A("s_memrealtime s[90:91]"); A("s_waitcnt lgkmcnt(0)"); A(f"v_writelane_b32 v{vSTAMP}, s90, 59")
    A(f"v_and_b32 v7, 7, v{vLANE}"); A("v_lshlrev_b32 v7, 4, v7")
    for c in range(4): A(f"ds_read_b128 v[{Q+4*c}:{Q+4*c+3}], v7 offset:{L_Q + 128*c}")
    A("v_mov_b32 v8, 0")
    A(f"ds_read_b64 v[10:11], v8 offset:{L_TAG}")
    for i in range(32): A(f"v_mov_b32 v{ACC+i}, 0")
    A(f"v_mov_b32 v{vM}, {NEG_BIG:#x}"); A(f"v_mov_b32 v{vMC}, {NEG_BIG:#x}"); A(f"v_mov_b32 v{vL}, 0")
    A("s_and_b32 s37, s2, 7"); A(f"s_lshr_b32 {sRI}, s2, 3")
    A(f"s_mov_b32 {sLOC}, 0")
    A("s_cmp_lt_u32 s2, 224"); A("s_cselect_b32 s38, 2, 1")
    A("s_cmp_eq_u32 s37, 0"); A(f"s_cselect_b32 {sROLE}, s38, 0")
    A("s_waitcnt lgkmcnt(0)")
    A(f"v_readfirstlane_b32 {sTAG}, v10"); A(f"v_readfirstlane_b32 {sEP}, v11")
    A(f"s_mov_b32 {sSTEP}, 0")
    if dbg == 3: A("s_mov_b32 s92, 15")
    resc = []
    def body(k, kwait, vwait, issue, pre=None, post=None):
        kb, vb = KB[k], VB[k]
        g.c(f"slot {k} ({issue})")
        if pre: pre()
        stepstamp()
        A(f"s_waitcnt vmcnt({kwait})")
        for r_ in range(4): A(f"v_dot2_f32_bf16 v{7+r_}, v{kb+r_}, v{Q+r_}, 0")
        for r_ in range(4, 16 if not NOCOMP else 4): A(f"v_dot2c_f32_bf16 v{7+(r_&3)}, v{kb+r_}, v{Q+r_}")
        if issue == "static": tile_addr(VA[k]); loads(kb, sKS, VA[k])
        elif issue == "dyn":
            tile_addr_dyn(VA[k], sMK[k])
            A(f"s_mov_b64 exec, s[{sMK[k][0][1:]}:{sMK[k][1][1:]}]"); loads(kb, sKS, VA[k]); A("s_mov_b64 exec, -1")
        else: g.nop(3)
        A("v_add_f32 v7, v7, v8"); A("v_add_f32 v9, v9, v10"); A("v_add_f32 v7, v7, v9"); g.nop(2)
        allreduce_low(g, 7, [0, 1, 2])
        A("v_cvt_pk_bf16_f32 v8, v7, v7")
        A("v_lshlrev_b32 v7, 16, v8")
        if issue == "dyn" and HALF:
            A(f"v_cndmask_b32 v7, v3, v7, s[{sMC[k][0][1:]}:{sMC[k][1][1:]}]")
        A(f"v_cmp_gt_f32 vcc, v7, v{vM}")
        lr, lc = g.new("resc"), g.new("cont")
        A(f"s_cbranch_vccnz {lr}")
        g.lab(lc)
        A(f"v_fma_f32 v8, v7, {sC}, -v{vMC}")
        A("v_exp_f32 v8, v8"); g.nop(1)
        A(f"v_add_f32 v{vL}, v{vL}, v8")
        A("v_cvt_pk_bf16_f32 v9, v8, 0")
        A("v_cvt_pk_bf16_f32 v10, 0, v8")
        A(f"s_waitcnt vmcnt({vwait})")
        for c in range(4 if not NOCOMP else 0):
            for i in range(4):
                A(f"v_dot2c_f32_bf16 v{ACC+8*c+2*i}, v{vb+4*c+i}, v9")
                A(f"v_dot2c_f32_bf16 v{ACC+8*c+2*i+1}, v{vb+4*c+i}, v10")
        if issue == "static": loads(vb, sVS, VA[k])
        elif issue == "dyn":
            A(f"s_mov_b64 exec, s[{sMK[k][0][1:]}:{sMK[k][1][1:]}]"); loads(vb, sVS, VA[k]); A("s_mov_b64 exec, -1")
            if HALF: A(f"s_mov_b64 s[{sMC[k][0][1:]}:{sMC[k][1][1:]}], s[{sMK[k][0][1:]}:{sMK[k][1][1:]}]")
        if post: post()
        resc.append((lr, lc))
    if X5:
        g.c("first revolution: five prefetched tiles")
        for k in range(D): body(k, 36, 36, "static", pre=lambda: A("s_barrier"))
        body(4, 36, 32, "none", pre=lambda: A("s_barrier"))
    NREV = (NS - 9) // 4 if X5 else (NS - 4) // 4
    assert (NS - (9 if X5 else 4)) % 4 == 0
    H1, H2 = (4, 8) if X5 else (8, 12)
    g.lab("L_loop")
    for k in range(D):
        body(k, 28, 28, "static", pre=(lambda: A("s_barrier")) if (BAR == 1 or (BAR == 4 and k == 0) or (BAR == 2 and k % 2 == 0)) else None)
    A(f"s_add_u32 {sSTEP}, {sSTEP}, 4")
    A(f"s_cmp_eq_u32 {sSTEP}, {H1}"); A("s_cbranch_scc1 L_wload")
    A(f"s_cmp_eq_u32 {sSTEP}, {H2}"); A("s_cbranch_scc1 L_xgload")
    g.lab("L_loop_back")
    A(f"s_cmp_lt_u32 {sSTEP}, {4*NREV}"); A("s_cbranch_scc1 L_loop")
    g.c("transition: consume slots 0,1 without issue")
    A(f"s_add_u32 s37, {sS}, {16*NS}"); A(f"v_mov_b32 v{TMP}, s37"); A(f"v_mov_b32 v{TMP+1}, 0")
    A(f"ds_write_b32 v{TMP+1}, v{TMP} offset:{L_CL}")
    A(f"s_mov_b32 {sV2}, 1"); A(f"s_mov_b32 {sV3}, 1"); A("s_mov_b32 s58, 0")
    A("s_mov_b64 s[76:77], -1"); A("s_mov_b64 s[78:79], -1"); A(f"v_mov_b32 v3, {NEG_BIG:#x}")
    A(f"s_cmp_eq_u32 {sROLE}, 0"); A(f"s_cselect_b32 {sLIM}, 0, {RWX}"); A(f"s_sub_u32 {sLIM}, {NIT}, {sLIM}"); A(f"s_mov_b32 {sDC}, 0"); A(f"s_mov_b32 {sI0}, 0"); A(f"s_mov_b32 {sGO}, 0")
    A("s_mov_b32 s41, 0x05040100"); A("s_mov_b32 s42, 0x07060302")
    if LOOK == 2: A(f"s_sub_u32 s37, {sS}, 16"); A(f"v_mov_b32 v{TMP+5}, s37")
    A(f"s_mul_i32 s48, {sH}, {CSTR}"); A(f"s_add_u32 s48, s48, {CNT:#x}")
    def xg_check():
        l = g.new("xgs"); l2 = g.new("xgok")
        A(f"s_cmp_eq_u32 {sROLE}, 0"); A(f"s_cbranch_scc1 {l}")
        A("s_mov_b32 exec_lo, -1"); A("s_mov_b32 exec_hi, 0")
        A(f"v_cmp_ne_u32 vcc, {sTAG}, v{TMP+13}")
        A(f"s_cbranch_vccz {l2}")
        A(f"v_lshlrev_b32 v{TMP+14}, 3, v{vLANE}"); A(f"v_add_u32 v{TMP+14}, {XG:#x}, v{TMP+14}")
        poll(g, lambda: A(f"buffer_load_dwordx2 v[{TMP+12}:{TMP+13}], v{TMP+14}, {sWS}, 0 offen sc1"), [TMP+13], TMP+8, TMP+9)
        g.lab(l2)
        A("s_getreg_b32 s37, hwreg(HW_REG_XCC_ID)"); A("s_and_b32 s37, s37, 15")
        A(f"v_cmp_ne_u32 vcc, s37, v{TMP+12}")
        A("s_cmp_eq_u64 vcc, 0"); A(f"s_cselect_b32 {sLOC}, 1, 0")
        if NOLOC: A(f"s_mov_b32 {sLOC}, 0")
        A("s_mov_b64 exec, -1")
        g.lab(l)
    def wo_load():
        l = g.new("wol")
        A("s_waitcnt lgkmcnt(0)")
        A(f"s_cmp_eq_u32 {sROLE}, 0"); A(f"s_cbranch_scc1 {l}")
        srd(g, 16, 72, 4096*896)
        A(f"s_lshl_b32 s37, {sH}, 4"); A(f"s_and_b32 s38, {sS}, 8"); A("s_add_u32 s37, s37, s38"); A(f"s_add_u32 s37, s37, {sWAVE}")
        A(f"s_mul_i32 s37, s37, {16*896}")
        A(f"v_lshlrev_b32 v{TMP+8}, 4, v{vLANE}")
        for i in range(16):
            A(f"buffer_load_dwordx4 v[{R0+4*i}:{R0+4*i+3}], v{TMP+8}, {sT1}, s37 offen nt")
            A("s_add_u32 s37, s37, 896")
        g.lab(l)
    body(0, 28, 24, "none", pre=lambda: A("s_barrier"), post=xg_check)
    body(1, 20, 16, "none", pre=lambda: A("s_barrier"), post=wo_load)
    if DD == 1: body(2, 12, 8, "none", pre=lambda: A("s_barrier"))
    if dbg == 2: stamp(5)
    if TPF & 1: code_pf(6, "L_s0", "L_exit", 2, TMP+20)
    g.lab("L_dyn")
    for k in (2, 3):
        p = k & 1
        sV = sV2 if (k == 2 or DD == 1) else sV3
        RA = [TMP+3, TMP+5]
        def pre(k=k, p=p, sV=sV):
            A("s_barrier")
            A(f"ds_read_b32 v{TMP+2}, v{TMP+1} offset:{L_CL + 4*p}")
            A(f"s_cmp_eq_u32 {sV}, 0"); A("s_cbranch_scc1 L_s0")
            A("s_waitcnt lgkmcnt(0)")
            A(f"v_readfirstlane_b32 {sNXT}, v{TMP+2}")
            l = g.new("noclaim")
            A(f"s_cmp_lg_u32 {sWAVE}, 0"); A(f"s_cbranch_scc1 {l}")
            A(f"s_mov_b32 {sGO}, 0")
            A(f"s_cmp_ge_u32 {sNXT}, {sLIM}"); A(f"s_cbranch_scc1 {l}")
            if ADF:
                la = g.new("ad")
                A(f"s_cmp_eq_u32 {sDC}, 1"); A(f"s_cselect_b32 {sI0}, {sNXT}, {sI0}")
                A(f"s_cmp_lt_u32 {sDC}, 3"); A(f"s_cbranch_scc1 {la}")
                A(f"s_cmp_eq_u32 {sS}, 3"); A(f"s_cbranch_scc1 {la}")
                A(f"s_cmp_eq_u32 {sS}, 12"); A(f"s_cbranch_scc1 {la}")
                A(f"s_sub_u32 s37, {sDC}, 1")
                A(f"s_sub_u32 s38, {sNXT}, {sI0}"); A("s_lshl_b32 s39, s37, 4"); A("s_sub_u32 s38, s38, s39")
                A(f"s_mul_i32 s38, s38, {ADF}")
                A(f"s_sub_u32 s39, {NIT}, {sNXT}"); A("s_mul_i32 s39, s39, s37"); A("s_lshl_b32 s39, s39, 1")
                A("s_cmp_lt_i32 s39, s38"); A(f"s_cbranch_scc1 {l}")
                g.lab(la)
            A(f"s_mov_b32 {sGO}, 1")
            ra = RA[p] if LOOK == 2 else RA[0]
            A(f"v_mov_b32 v{ra}, 1")
            A("s_mov_b64 exec, 1")
            if FAKE in (0, 3): A(f"buffer_atomic_add v{ra}, v{TMP+1}, {sWS}, s48 offen {['sc0', 'sc0 sc1', 'sc0 nt', 'sc0 sc1 nt'][AFL]}")
            elif FAKE == 2: A(f"buffer_load_dword v{ra}, v{TMP+1}, {sWS}, s48 offen sc1")
            A("s_mov_b64 exec, -1")
            g.lab(l)
        def post(k=k, p=p, sV=sV):
            A(f"s_cmp_lt_u32 {sNXT}, {NIT}"); A(f"s_cselect_b32 {sV}, 1, 0")
            if dbg: A(f"s_add_u32 {sSTEP}, {sSTEP}, {sV}")
            if PT & 4:
                lt = g.new("ept")
                A(f"s_cmp_lg_u32 {sWAVE}, 4"); A(f"s_cbranch_scc1 {lt}")
                A(f"s_cmp_lt_u32 {sNXT}, {NIT}"); A(f"s_cbranch_scc1 {lt}")
                A(f"s_cmp_eq_u32 s58, 1"); A(f"s_cbranch_scc1 {lt}")
                A("s_mov_b32 s58, 1")
                A(f"v_lshlrev_b32 v{TMP+8}, 4, v{vLANE}")
                A(f"s_lshl_b32 s38, {sH}, 15"); A(f"s_lshl_b32 s39, {sS}, 11"); A("s_add_u32 s38, s38, s39"); A(f"s_add_u32 s38, s38, {OP:#x}")
                A(f"buffer_load_dwordx4 v[{TMP+20}:{TMP+23}], v{TMP+8}, {sWS}, s38 offen sc1")
                A(f"buffer_load_dwordx4 v[{TMP+20}:{TMP+23}], v{TMP+8}, {sWS}, s38 offen offset:1024 sc1")
                g.lab(lt)
            lp_ = g.new("wop")
            A(f"s_add_u32 {sDC}, {sDC}, 1"); A(f"s_cmp_lg_u32 {sDC}, 2"); A(f"s_cbranch_scc1 {lp_}")
            A(f"s_cmp_eq_u32 {sROLE}, 0"); A(f"s_cbranch_scc1 {lp_}")
            if k == 3:
                for i in range(8):
                    for e in range(4): perm_pair(g, R0+8*i+e, R0+8*i+4+e, 9)
            g.lab(lp_)
            l = g.new("nopub")
            A(f"s_cmp_lg_u32 {sWAVE}, 0"); A(f"s_cbranch_scc1 {l}")
            ra = RA[p^1] if LOOK == 2 else RA[0]
            A(f"s_waitcnt vmcnt({17 if LOOK == 2 else 8})")
            if FAKE: A(f"s_add_u32 s49, {sNXT}, 16"); A(f"v_mov_b32 v{ra}, s49")
            else: A(f"v_add_u32 v{ra}, {16*(NS+LOOK)}, v{ra}")
            A(f"v_mov_b32 v{TMP+4}, 0xffff")
            A(f"s_cmp_eq_u32 {sGO}, 1"); A("s_cselect_b64 vcc, -1, 0")
            A(f"v_cndmask_b32 v{TMP+4}, v{TMP+4}, v{ra}, vcc")
            A("s_mov_b64 exec, 1")
            A(f"ds_write_b32 v{TMP+1}, v{TMP+4} offset:{L_CL + 4*(p^1)}")
            A("s_mov_b64 exec, -1")
            A("s_waitcnt lgkmcnt(0)")
            g.lab(l)
        if DD == 1: body(3, 4, 4, "dyn", pre=pre, post=post)
        else: body(k, 12, 12, "dyn", pre=pre, post=post)
    A("s_branch L_dyn")
    for lr, lc in resc:
        g.lab(lr)
        A("v_mov_b32 v8, v7"); g.nop(2)
        dpp(g, "v_max_f32", 8, 8, 8, "row_ror:8"); g.nop(2)
        dpp(g, "v_max_f32", 8, 8, 8, "row_bcast:15", rm=0xa); g.nop(2)
        dpp(g, "v_max_f32", 8, 8, 8, "row_bcast:31", rm=0xc); g.nop(1)
        A("v_readlane_b32 s47, v8, 63"); g.nop(2)
        A(f"v_max_f32 v9, s47, v{vM}")
        A(f"v_sub_f32 v10, v{vM}, v9")
        A(f"v_mul_f32 v10, {sC}, v10")
        A("v_exp_f32 v10, v10")
        A(f"v_mov_b32 v{vM}, v9")
        A(f"v_mul_f32 v{vMC}, {sC}, v9")
        A(f"v_mul_f32 v{vL}, v10, v{vL}")
        for i in range(32): A(f"v_mul_f32 v{ACC+i}, v10, v{ACC+i}")
        A(f"s_branch {lc}")
    g.lab("L_wload")
    if dbg == 2: stamp(4)
    A(f"s_cmp_eq_u32 {sROLE}, 0"); A("s_cbranch_scc1 L_loop_back")
    A(f"s_cmp_eq_u32 {sROLE}, 1"); A("s_cbranch_scc1 L_xgpub")
    g.c("role WG: w1[:, 64a..+64) (wave w rows 56w + 8j + (l>>3), chunk l&7), w2 rows 64a + 8w + j, b1, x, b2, xcc granule")
    srd(g, 16, 76, 448*3584); srd(g, 20, 80, 1792*896)
    A(f"v_lshrrev_b32 v{TMP}, 3, v{vLANE}"); A("s_movk_i32 s37, 3584"); A(f"v_mul_lo_u32 v{TMP}, v{TMP}, s37")
    A(f"v_and_b32 v{TMP+1}, 7, v{vLANE}"); A(f"v_lshlrev_b32 v{TMP+1}, 4, v{TMP+1}"); A(f"v_add_u32 v{TMP}, v{TMP}, v{TMP+1}")
    A(f"s_mul_i32 s37, {sWAVE}, {56*3584}"); A(f"s_lshl_b32 s38, {sRI}, 7"); A("s_add_u32 s37, s37, s38")
    A(f"s_mul_i32 s38, {sWAVE}, {7*1024}"); A(f"s_add_u32 s38, s38, {L_W1}")
    for j in range(7):
        A("s_mov_b32 m0, s38"); A("s_nop 0")
        A(f"buffer_load_dwordx4 v{TMP}, {sT1}, s37 offen nt lds")
        A(f"s_add_u32 s37, s37, {8*3584}"); A("s_add_u32 s38, s38, 1024")
    A(f"v_lshlrev_b32 v{TMP+2}, 4, v{vLANE}")
    A(f"s_lshl_b32 s37, {sRI}, 6"); A(f"s_lshl_b32 s38, {sWAVE}, 3"); A("s_add_u32 s37, s37, s38"); A("s_mul_i32 s37, s37, 896")
    A(f"s_lshl_b32 s38, {sWAVE}, 13"); A(f"s_add_u32 s38, s38, {L_W2}")
    for j in range(8):
        A("s_mov_b32 m0, s38"); A("s_nop 0")
        A(f"buffer_load_dwordx4 v{TMP+2}, {sT2}, s37 offen nt lds")
        A("s_add_u32 s37, s37, 896"); A("s_add_u32 s38, s38, 1024")
    srd(g, 16, 78, 1792*2)
    A(f"v_and_b32 v{TMP+1}, 7, v{vLANE}"); A(f"v_lshlrev_b32 v{TMP+1}, 3, v{TMP+1}"); A(f"v_lshrrev_b32 v{TMP+3}, 3, v{vLANE}"); A(f"v_add_u32 v{TMP+1}, v{TMP+1}, v{TMP+3}")
    A(f"v_lshlrev_b32 v{TMP+1}, 1, v{TMP+1}"); A(f"s_lshl_b32 s37, {sRI}, 7"); A(f"v_add_u32 v{TMP+1}, s37, v{TMP+1}")
    A(f"buffer_load_ushort v{vB1}, v{TMP+1}, {sT1}, 0 offen nt")
    srd(g, 16, 64, 896); srd(g, 20, 82, 896)
    A(f"s_lshl_b32 s37, {sRI}, 5")
    A(f"v_and_b32 v{TMP+3}, 7, v{vLANE}"); A(f"v_lshlrev_b32 v{TMP+3}, 1, v{TMP+3}"); A(f"v_lshrrev_b32 v{TMP+4}, 5, v{vLANE}"); A(f"v_add_u32 v{TMP+3}, v{TMP+3}, v{TMP+4}")
    A(f"v_lshlrev_b32 v{TMP+3}, 1, v{TMP+3}"); A(f"v_add_u32 v{TMP+3}, s37, v{TMP+3}")
    A(f"buffer_load_ushort v{vB2}, v{TMP+3}, {sT2}, 0 offen nt")
    A(f"buffer_load_ushort v{vXH}, v{TMP+3}, {sT1}, 0 offen nt")
    g.lab("L_xgpub")
    A(f"s_cmp_lg_u32 {sWAVE}, 0"); A("s_cbranch_scc1 L_loop_back")
    A("s_getreg_b32 s37, hwreg(HW_REG_XCC_ID)"); A("s_and_b32 s37, s37, 15")
    A(f"v_mov_b32 v{TMP+6}, s37"); A(f"v_mov_b32 v{TMP+7}, {sTAG}"); A(f"s_lshl_b32 s37, {sRI}, 3"); A(f"s_add_u32 s37, s37, {XG:#x}"); A(f"v_mov_b32 v{TMP+5}, 0")
    A("s_mov_b64 exec, 1")
    A(f"buffer_store_dwordx2 v[{TMP+6}:{TMP+7}], v{TMP+5}, {sWS}, s37 offen sc1")
    A("s_mov_b64 exec, -1")
    A("s_branch L_loop_back")
    g.lab("L_xgload")
    A(f"s_cmp_eq_u32 {sROLE}, 0"); A("s_cbranch_scc1 L_loop_back")
    A(f"v_lshlrev_b32 v{TMP+14}, 3, v{vLANE}"); A(f"v_add_u32 v{TMP+14}, {XG:#x}, v{TMP+14}")
    A(f"buffer_load_dwordx2 v[{TMP+12}:{TMP+13}], v{TMP+14}, {sWS}, 0 offen sc1")
    A("s_branch L_loop_back")
    g.lab("L_s0")
    stamp(3)
    if dbg and dbg != 4: A(f"v_writelane_b32 v{vSTAMP}, {sSTEP}, 15")
    g.c("S0: in-wave reduce")
    T = TMP
    allreduce_high(g, vL, T)
    reduce_scatter(g, [ACC+i for i in range(32)], [32, 16, 8])
    A(f"v_lshrrev_b32 v7, 4, v{vLANE}"); A("v_lshlrev_b32 v7, 8, v7")
    A(f"v_and_b32 v8, 7, v{vLANE}"); A("v_lshlrev_b32 v8, 5, v8")
    A(f"v_bfe_u32 v9, v{vLANE}, 3, 1"); A("v_lshlrev_b32 v9, 4, v9")
    A("v_add3_u32 v7, v7, v8, v9")
    A(f"s_lshl_b32 s37, {sWAVE}, 10"); A("v_add_u32 v7, s37, v7")
    A(f"ds_write_b128 v7, v[{ACC}:{ACC+3}] offset:{L_O}")
    A(f"v_mov_b32 v8, v{vM}"); A(f"v_mov_b32 v9, v{vL}")
    A(f"s_lshl_b32 s37, {sWAVE}, 3"); A("v_mov_b32 v10, s37")
    A(f"ds_write_b64 v10, v[8:9] offset:{L_ST}")
    A("s_mov_b32 s41, 0x05040100"); A("s_mov_b32 s42, 0x07060302")
    A("s_waitcnt vmcnt(0) lgkmcnt(0)")
    A("s_barrier")
    tst(16)
    A(f"s_cmp_gt_u32 {sWAVE}, 1"); A("s_cbranch_scc1 L_rw")
    g.c("waves 0-1: cross-wave combine + publish (thread t: dims 2t, 2t+1)")
    OW = 68
    A("v_mov_b32 v7, 0")
    for i in range(4): A(f"ds_read_b128 v[{T+4*i}:{T+4*i+3}], v7 offset:{L_ST+16*i}")
    A("v_lshlrev_b32 v8, 3, v0")
    for w in range(8): A(f"ds_read_b64 v[{OW+2*w}:{OW+2*w+1}], v8 offset:{L_O+1024*w}")
    A("s_waitcnt lgkmcnt(8)")
    A(f"v_max3_f32 v9, v{T}, v{T+2}, v{T+4}"); A(f"v_max3_f32 v10, v{T+6}, v{T+8}, v{T+10}"); A(f"v_max3_f32 v9, v9, v{T+12}, v{T+14}"); A(f"v_max_f32 v9, v9, v10")
    A(f"v_mul_f32 v11, {sC}, v9")
    for w in range(8): A(f"v_fma_f32 v{T+2*w}, v{T+2*w}, {sC}, -v11")
    for w in range(8): A(f"v_exp_f32 v{T+2*w}, v{T+2*w}")
    A("v_lshrrev_b32 v7, 3, v0"); A("v_lshlrev_b32 v7, 11, v7")
    A("v_and_b32 v8, 7, v0"); A("v_cmp_eq_u32 vcc, 0, v8"); A("v_lshlrev_b32 v8, 4, v8"); A("v_add_u32 v7, v7, v8")
    A(f"s_lshl_b32 s37, {sH}, 15"); A(f"s_lshl_b32 s38, {sS}, 7"); A("s_add_u32 s37, s37, s38"); A(f"s_add_u32 s37, s37, {OP:#x}")
    PG = 84
    A(f"v_mov_b32 v{PG+3}, {sTAG}")
    A("s_waitcnt lgkmcnt(0)")
    A(f"v_mul_f32 v{PG}, v{T}, v{OW}"); A(f"v_mul_f32 v{PG+1}, v{T}, v{OW+1}"); A(f"v_mul_f32 v10, v{T}, v{T+1}")
    for w in range(1, 8):
        A(f"v_fmac_f32 v{PG}, v{T+2*w}, v{OW+2*w}"); A(f"v_fmac_f32 v{PG+1}, v{T+2*w}, v{OW+2*w+1}"); A(f"v_fmac_f32 v10, v{T+2*w}, v{T+2*w+1}")
    A(f"v_cndmask_b32 v{PG+2}, v10, v9, vcc")
    A(f"buffer_store_dwordx4 v[{PG}:{PG+3}], v7, {sWS}, s37 offen sc1")
    tst(17)
    if dbg == 5: A("s_waitcnt vmcnt(0)"); tst(61)
    g.lab("L_rw")
    A(f"s_cmp_eq_u32 {sROLE}, 0"); A("s_cbranch_scc1 L_end")
    def lstore(text):
        l1, l2 = g.new("ls"), g.new("ls")
        A(f"s_cmp_eq_u32 {sLOC}, 0"); A(f"s_cbranch_scc1 {l1}")
        A(text); A(f"s_branch {l2}")
        g.lab(l1); A(text + " sc1"); g.lab(l2)
    g.c("first gather round of this wave's 16-dim slice, pre-touch of later hand-off lines, weight preparation")
    vOA = 50
    A(f"v_lshlrev_b32 v{vOA}, 4, v{vLANE}")
    A(f"s_and_b32 s39, {sS}, 8"); A(f"s_add_u32 s39, s39, {sWAVE}"); A("s_lshl_b32 s39, s39, 11")
    A(f"s_lshl_b32 s38, {sH}, 15"); A("s_add_u32 s38, s38, s39"); A(f"s_add_u32 s38, s38, {OP:#x}")
    A(f"v_add_u32 v{vOA}, s38, v{vOA}")
    def g0(): A(f"buffer_load_dwordx4 v[{T+8}:{T+11}], v{vOA}, {sWS}, 0 offen sc1")
    def g1(): A(f"buffer_load_dwordx4 v[{T+12}:{T+15}], v{vOA}, {sWS}, 0 offen offset:1024 sc1")
    g0(); g1()
    if PT:
        lpt = g.new("pt"); l7 = g.new("pt7"); l5 = g.new("pt5"); l6 = g.new("pt6")
        A(f"s_cmp_lt_u32 {sROLE}, 2"); A(f"s_cbranch_scc1 {lpt}")
        A(f"v_lshlrev_b32 v7, 4, v{vLANE}")
        DM = 88
        A(f"s_cmp_lg_u32 {sWAVE}, 7"); A(f"s_cbranch_scc1 {l7}")
        A(f"s_mul_i32 s37, {sRI}, {FSTR}"); A(f"s_add_u32 s37, s37, {FP:#x}")
        for k in range(7):
            A(f"buffer_load_dwordx4 v[{DM}:{DM+3}], v7, {sWS}, s37 offen sc1"); A("s_add_u32 s37, s37, 1024")
        g.lab(l7)
        A(f"s_cmp_lg_u32 {sWAVE}, 5"); A(f"s_cbranch_scc1 {l5}")
        A(f"s_mov_b32 s37, {HG:#x}")
        A(f"buffer_load_dwordx4 v[{DM}:{DM+3}], v7, {sWS}, s37 offen sc1"); A(f"buffer_load_dwordx4 v[{DM}:{DM+3}], v7, {sWS}, s37 offen offset:1024 sc1")
        g.lab(l5)
        A(f"s_cmp_lg_u32 {sWAVE}, 6"); A(f"s_cbranch_scc1 {l6}")
        A(f"s_mul_i32 s37, {sRI}, {YSTR}"); A(f"s_add_u32 s37, s37, {YP:#x}")
        for k in range(4):
            A(f"buffer_load_dwordx4 v[{DM}:{DM+3}], v7, {sWS}, s37 offen sc1"); A("s_add_u32 s37, s37, 1024")
        g.lab(l6)
        g.lab(lpt)
    W1R = R0 + 64; W2R = R0 + 96; XPR = 68; APR = 72; AC = 88; XA = [ACC + i for i in range(8)]; PA = ACC + 8
    vFA = 48; vC = 49; vYA = 51
    def ffn_prep():
        A(f"v_lshlrev_b32 v7, 4, v{vLANE}"); A(f"s_mul_i32 s37, {sWAVE}, {7*1024}"); A("v_add_u32 v7, s37, v7")
        for j in range(7): A(f"ds_read_b128 v[{W1R+4*j}:{W1R+4*j+3}], v7 offset:{L_W1 + 1024*j}")
        for i in range(4): A(f"v_mov_b32 v{W1R+28+i}, 0")
        A(f"s_and_b32 s37, {sWAVE}, 3"); A("s_lshl_b32 s37, s37, 8"); A(f"s_lshr_b32 s38, {sWAVE}, 2"); A("s_lshl_b32 s38, s38, 15"); A("s_add_u32 s37, s37, s38"); A(f"s_add_u32 s37, s37, {L_W2}")
        A(f"v_lshlrev_b32 v8, 2, v{vLANE}"); A("v_add_u32 v8, s37, v8")
        for i in range(16): A(f"ds_read2st64_b32 v[{W2R+2*i}:{W2R+2*i+1}], v8 offset0:{8*i} offset1:{8*i+4}")
        for r_ in (vXH, vB2, vB1): A(f"v_lshlrev_b32 v{r_}, 16, v{r_}")
        for k in range(2):
            for e in range(4):
                x = XA[4*k+e]
                A(f"v_lshlrev_b32 v{x}, 2, v{vLANE}"); A(f"v_add_u32 v{x}, {4*56*k + e}, v{x}")
                A("s_movk_i32 s37, 1171"); A(f"v_mul_u32_u24 v9, s37, v{x}"); A("v_lshrrev_b32 v9, 16, v9")
                A(f"v_mul_u32_u24 v10, 56, v9"); A(f"v_sub_u32 v10, v{x}, v10")
                A(f"v_lshrrev_b32 v11, 4, v10"); A(f"v_lshl_add_u32 v9, v9, 2, v11")
                A("v_and_b32 v11, 7, v10"); A("v_lshl_add_u32 v9, v9, 3, v11")
                A("v_bfe_u32 v11, v10, 3, 1"); A("v_lshlrev_b32 v11, 1, v11"); A(f"v_lshl_add_u32 v{x}, v9, 2, v11")
        A("s_waitcnt lgkmcnt(0)")
        for jj in range(4):
            for i in range(4): perm_pair(g, W1R+8*jj+i, W1R+8*jj+4+i, 9)
        for i in range(16): perm_pair(g, W2R+2*i, W2R+2*i+1, 9)
        A(f"s_and_b32 s37, {sWAVE}, 3"); A("s_lshl_b32 s37, s37, 6"); A(f"v_add_u32 v{vC}, s37, v{vLANE}")
        A(f"v_lshrrev_b32 v{vFA}, 3, v{vC}"); A(f"s_movk_i32 s38, {FSTR}"); A(f"v_mul_lo_u32 v{vFA}, v{vFA}, s38"); A(f"v_and_b32 v9, 7, v{vC}"); A("v_lshlrev_b32 v9, 4, v9"); A(f"v_add_u32 v{vFA}, v{vFA}, v9")
        A(f"s_lshl_b32 s37, {sRI}, 1"); A(f"s_lshr_b32 s38, {sWAVE}, 2"); A("s_add_u32 s37, s37, s38"); A("s_lshl_b32 s37, s37, 7"); A(f"s_add_u32 s37, s37, {FP:#x}"); A(f"v_add_u32 v{vFA}, s37, v{vFA}")
    lnf = g.new("noffn")
    A(f"s_cmp_lt_u32 {sROLE}, 2"); A(f"s_cbranch_scc1 {lnf}")
    A(f"s_cmp_eq_u32 {sWAVE}, 5"); A(f"s_cselect_b32 s37, 1, 0"); A(f"s_cmp_eq_u32 {sWAVE}, 6"); A(f"s_cselect_b32 s37, 1, s37")
    A("s_cmp_eq_u32 s37, 0"); A(f"s_cbranch_scc1 {lnf}")
    ffn_prep()
    g.lab(lnf)
    A(f"v_lshrrev_b32 v{vYA}, 3, v0"); A(f"s_movk_i32 s38, {YSTR}"); A(f"v_mul_lo_u32 v{vYA}, v{vYA}, s38"); A("v_and_b32 v9, 7, v0"); A("v_lshlrev_b32 v9, 4, v9"); A(f"v_add_u32 v{vYA}, v{vYA}, v9")
    A(f"s_lshl_b32 s37, {sRI}, 7"); A(f"s_add_u32 s37, s37, {YP:#x}"); A(f"v_add_u32 v{vYA}, s37, v{vYA}")
    for i in range(8): A(f"v_mov_b32 v{PA+i}, 0")
    vLW = 52
    A(f"v_lshlrev_b32 v{vLW}, 5, v{vLANE}"); A(f"s_mul_i32 s37, {sWAVE}, 1792"); A(f"v_add_u32 v{vLW}, s37, v{vLW}")
    g.c("hop 1: combine the 16 partials of this wave's 16 dims")
    if dbg == 5: A("s_mov_b32 s92, 47"); tst(47)
    selpoll(g, [(g0, [T+11]), (g1, [T+15])], 9, 10, first_issued=True, sleep=H1SLEEP, dbgbase=48 if dbg == 5 else None)
    tst(18)
    for dst, src, ln in ((T, T+10, 0), (T+4, T+14, 0), (T+1, T+10, 1), (T+5, T+14, 1)):
        A(f"v_mov_b32_dpp v{dst}, v{src} row_newbcast:{ln} row_mask:0xf bank_mask:0x3")
    for dst, src, ln in ((T, T+10, 8), (T+4, T+14, 8), (T+1, T+10, 9), (T+5, T+14, 9)):
        A(f"v_mov_b32_dpp v{dst}, v{src} row_newbcast:{ln} row_mask:0xf bank_mask:0xc")
    A(f"v_max_f32 v9, v{T}, v{T+4}"); g.nop(2)
    allreduce_high(g, 9, 10, op="v_max_f32")
    A(f"v_sub_f32 v{T}, v{T}, v9"); A(f"v_sub_f32 v{T+4}, v{T+4}, v9")
    A(f"v_mul_f32 v{T}, {sC}, v{T}"); A(f"v_mul_f32 v{T+4}, {sC}, v{T+4}")
    A(f"v_exp_f32 v{T}, v{T}"); A(f"v_exp_f32 v{T+4}, v{T+4}"); g.nop(1)
    A(f"v_mul_f32 v{T+16}, v{T}, v{T+1}"); A(f"v_mul_f32 v{T+17}, v{T}, v{T+8}"); A(f"v_mul_f32 v{T+18}, v{T}, v{T+9}")
    A(f"v_fmac_f32 v{T+16}, v{T+4}, v{T+5}"); A(f"v_fmac_f32 v{T+17}, v{T+4}, v{T+12}"); A(f"v_fmac_f32 v{T+18}, v{T+4}, v{T+13}")
    g.nop(2)
    allreduce_high(g, [T+16, T+17, T+18], [T+19, T+20, T+21])
    A(f"v_rcp_f32 v{T+16}, v{T+16}"); g.nop(1)
    A(f"v_mul_f32 v{T+17}, v{T+17}, v{T+16}"); A(f"v_mul_f32 v{T+18}, v{T+18}, v{T+16}")
    A(f"v_cvt_pk_bf16_f32 v{T+20}, v{T+17}, v{T+18}"); g.nop(1)
    for i in range(8): A(f"v_readlane_b32 s{64+i}, v{T+20}, {i}")
    g.nop(1)
    tst(19)
    g.c("wo product for this wave's 16 rows (lanes < 56: 8 columns each)")
    for i in range(8):
        for e in range(4):
            A(f"v_dot2c_f32_bf16 v{PA+2*e}, s{64+i}, v{R0+8*i+e}")
            A(f"v_dot2c_f32_bf16 v{PA+2*e+1}, s{64+i}, v{R0+8*i+4+e}")
    A("s_mov_b32 exec_lo, -1"); A("s_mov_b32 exec_hi, 0x00ffffff"); g.nop(2)
    A(f"ds_write_b128 v{vLW}, v[{PA}:{PA+3}] offset:{L_YW}"); A(f"ds_write_b128 v{vLW}, v[{PA+4}:{PA+7}] offset:{L_YW+16}")
    A("s_mov_b64 exec, -1")
    A("s_waitcnt lgkmcnt(0)")
    A("s_barrier")
    tst(20)
    A(f"s_cmp_gt_u32 {sWAVE}, 3"); A("s_cbranch_scc1 L_ysent")
    A("v_lshlrev_b32 v8, 3, v0")
    for w in range(8): A(f"ds_read_b64 v[{T+2*w}:{T+2*w+1}], v8 offset:{L_YW+1792*w}")
    A(f"v_mov_b32 v{T+18}, 0"); A(f"v_mov_b32 v{T+19}, {sTAG}")
    A("v_cmp_gt_u32 vcc, 224, v0")
    A("s_waitcnt lgkmcnt(0)")
    for st in (4, 2, 1):
        for i in range(st): A(f"v_pk_add_f32 v[{T+2*i}:{T+2*i+1}], v[{T+2*i}:{T+2*i+1}], v[{T+2*(i+st)}:{T+2*(i+st)+1}]")
    A(f"v_mov_b32 v{T+16}, v{T}"); A(f"v_mov_b32 v{T+17}, v{T+1}")
    A("s_and_saveexec_b64 s[50:51], vcc")
    lstore(f"buffer_store_dwordx4 v[{T+16}:{T+19}], v{vYA}, {sWS}, 0 offen")
    A("s_mov_b64 exec, -1")
    tst(21)
    g.lab("L_ysent")
    A(f"s_cmp_lt_u32 {sROLE}, 2"); A("s_cbranch_scc1 L_end")
    def red16(a_, b_, t_):
        g.nop(2)
        A(f"v_permlane32_swap_b32 v{a_}, v{b_}"); g.nop(1)
        A(f"v_add_f32 v{a_}, v{a_}, v{b_}")
        A(f"v_mov_b32 v{t_}, v{a_}"); g.nop(2)
        A(f"v_permlane16_swap_b32 v{a_}, v{t_}"); g.nop(1)
        A(f"v_add_f32 v{a_}, v{a_}, v{t_}"); g.nop(2)
        dpp(g, "v_add_f32", a_, a_, a_, "row_ror:8"); g.nop(1)
    A(f"s_cmp_eq_u32 {sWAVE}, 5"); A("s_cbranch_scc1 L_a_ln")
    A(f"s_cmp_eq_u32 {sWAVE}, 6"); A("s_cbranch_scc1 L_yred")
    ffn_prep()
    A("s_branch L_a_wait")
    g.lab("L_yred")
    g.c("wave 6: reduce the 32 y partials of 16 columns -> h, publish")
    YG = T
    A(f"v_lshlrev_b32 v7, 4, v{vLANE}")
    A(f"s_mul_i32 s37, {sRI}, {YSTR}"); A(f"s_add_u32 s37, s37, {YP:#x}"); A("v_add_u32 v7, s37, v7")
    A(f"v_and_b32 v8, 7, v{vLANE}"); A("v_lshlrev_b32 v8, 1, v8"); A(f"v_lshrrev_b32 v11, 5, v{vLANE}"); A("v_add_u32 v8, v8, v11"); A("v_lshlrev_b32 v8, 2, v8")
    A(f"v_lshlrev_b32 v11, 3, v{vLANE}")
    A(f"s_lshl_b32 s46, {sRI}, 6"); A(f"s_add_u32 s46, s46, {HG:#x}")
    def mky(k):
        return lambda: A(f"buffer_load_dwordx4 v[{YG+4*k}:{YG+4*k+3}], v7, {sWS}, 0 offen{(' offset:%d' % (1024*k)) if k else ''} sc1")
    if dbg == 5: A("s_mov_b32 s92, 31"); tst(31)
    selpoll(g, [(mky(k), [YG+4*k+3]) for k in range(4)], 9, 10, dbgbase=32 if dbg == 5 else None)
    tst(22)
    A(f"v_pk_add_f32 v[{YG}:{YG+1}], v[{YG}:{YG+1}], v[{YG+4}:{YG+5}]"); A(f"v_pk_add_f32 v[{YG+8}:{YG+9}], v[{YG+8}:{YG+9}], v[{YG+12}:{YG+13}]")
    A(f"v_pk_add_f32 v[{YG}:{YG+1}], v[{YG}:{YG+1}], v[{YG+8}:{YG+9}]")
    red16(YG, YG+1, 9)
    bf16r(g, YG, YG)
    A(f"v_add_f32 v{YG}, v{YG}, v{vXH}")
    bf16r(g, YG, YG)
    A(f"v_mov_b32 v9, v{YG}"); A(f"v_mov_b32 v10, v{YG}")
    A(f"v_mov_b32 v{T+5}, {sTAG}"); A(f"v_mov_b32 v{T+7}, {sTAG}")
    A("v_permlane32_swap_b32 v9, v10"); g.nop(1)
    A(f"v_lshrrev_b32 v{T+4}, 16, v9"); A(f"v_or_b32 v{T+4}, v{T+4}, v10"); g.nop(2)
    A(f"v_mov_b32_dpp v{T+6}, v{T+4} quad_perm:[1,0,3,2] row_mask:0xf bank_mask:0xf")
    A("s_mov_b64 exec, 0x55")
    lstore(f"buffer_store_dwordx4 v[{T+4}:{T+7}], v11, {sWS}, s46 offen")
    A("s_mov_b32 exec_lo, 0xff"); A("s_mov_b32 exec_hi, 0xff")
    A(f"ds_write_b32 v8, v{YG} offset:{L_HV}")
    A("s_mov_b64 exec, -1")
    tst(24)
    A("s_branch L_a_wait")
    g.lab("L_a_ln")
    g.c("wave 5: gather h, layernorm, write xln pairs")
    A(f"v_lshlrev_b32 v7, 4, v{vLANE}"); A(f"v_add_u32 v7, {HG:#x}, v7")
    for i in range(8): A(f"v_mov_b32 v{T+i}, {sTAG}")
    A("s_mov_b32 exec_lo, -1"); A("s_mov_b32 exec_hi, 0x00ffffff")
    def hg_loads():
        A(f"buffer_load_dwordx4 v[{T}:{T+3}], v7, {sWS}, 0 offen sc1")
        A(f"buffer_load_dwordx4 v[{T+4}:{T+7}], v7, {sWS}, 0 offen offset:896 sc1")
    poll(g, hg_loads, [T+1, T+3, T+5, T+7], 9, 10)
    A("s_mov_b64 exec, -1")
    tst(25)
    A("s_mov_b32 s44, -1"); A("s_mov_b32 s45, 0x00ffffff")
    PK = [T, T+2, T+4, T+6]
    layernorm_pk(g, PK, T+8, [7, 8, 9, 10, 11, 3], "s[44:45]")
    A("s_mov_b64 exec, s[44:45]")
    for p in range(4):
        A(f"ds_write_b16 v{XA[2*p]}, v{PK[p]} offset:{L_XP}")
        A(f"ds_write_b16_d16_hi v{XA[2*p+1]}, v{PK[p]} offset:{L_XP}")
    A("s_mov_b64 exec, -1")
    g.lab("L_a_wait")
    A(f"v_lshrrev_b32 v7, 3, v{vLANE}"); A("v_lshlrev_b32 v7, 2, v7"); A(f"s_lshl_b32 s37, {sWAVE}, 7"); A("v_add_u32 v7, s37, v7")
    for i in range(8): A(f"v_mov_b32 v{AC+i}, 0")
    A("s_waitcnt lgkmcnt(0)")
    A("s_barrier")
    tst(26)
    for jj in range(4): A(f"ds_read_b32 v{XPR+jj}, v7 offset:{L_XP + 32*jj}")
    A(f"v_lshlrev_b32 v10, 2, v{vLANE}"); A(f"s_lshl_b32 s37, {sWAVE}, 8"); A("v_add_u32 v11, s37, v10")
    A("s_waitcnt lgkmcnt(0)")
    for jj in range(4):
        for i in range(4):
            A(f"v_dot2c_f32_bf16 v{AC+2*i}, v{W1R+8*jj+i}, v{XPR+jj}")
            A(f"v_dot2c_f32_bf16 v{AC+2*i+1}, v{W1R+8*jj+4+i}, v{XPR+jj}")
    r = reduce_scatter(g, [AC+i for i in range(8)], [32, 16, 8])[0]
    A(f"ds_write_b32 v11, v{r} offset:{L_AP}")
    A(f"v_and_b32 v8, 7, v{vLANE}"); A("v_lshlrev_b32 v8, 4, v8"); A(f"v_lshrrev_b32 v9, 3, v{vLANE}"); A("v_lshlrev_b32 v9, 1, v9"); A("v_add_u32 v8, v8, v9")
    A(f"s_lshr_b32 s37, {sWAVE}, 2"); A("s_lshl_b32 s37, s37, 6"); A("v_mov_b32 v9, s37")
    A("s_waitcnt lgkmcnt(0)")
    A("s_barrier")
    tst(27)
    for w in range(8): A(f"ds_read_b32 v{AC+w}, v10 offset:{L_AP + 256*w}")
    A(f"v_mov_b32 v{T+2}, 0"); A(f"v_mov_b32 v{T+3}, {sTAG}")
    A(f"v_cmp_gt_u32 vcc, 224, v{vC}")
    A("s_waitcnt lgkmcnt(0)")
    for st in (4, 2, 1):
        for i in range(st): A(f"v_add_f32 v{AC+i}, v{AC+i}, v{AC+i+st}")
    bf16r(g, AC, AC)
    A(f"v_add_f32 v{AC}, v{AC}, v{vB1}")
    bf16r(g, AC, AC)
    A(f"v_max_f32 v{AC}, 0, v{AC}")
    A(f"v_mul_f32 v{AC}, v{AC}, v{AC}")
    A(f"v_cvt_pk_bf16_f32 v{AC}, v{AC}, v{AC}")
    A(f"ds_write_b16 v8, v{AC} offset:{L_AL}")
    A("s_waitcnt lgkmcnt(0)")
    for i in range(4): A(f"ds_read_b128 v[{APR+4*i}:{APR+4*i+3}], v9 offset:{L_AL + 16*i}")
    for i in range(8): A(f"v_mov_b32 v{AC+i}, 0")
    A("s_waitcnt lgkmcnt(0)")
    for i in range(16):
        A(f"v_dot2c_f32_bf16 v{AC+(i&3)}, v{W2R+2*i}, v{APR+i}")
        A(f"v_dot2c_f32_bf16 v{AC+4+(i&3)}, v{W2R+2*i+1}, v{APR+i}")
    A("s_and_saveexec_b64 s[50:51], vcc"); g.nop(2)
    A(f"v_add_f32 v{AC}, v{AC}, v{AC+1}"); A(f"v_add_f32 v{AC+2}, v{AC+2}, v{AC+3}"); A(f"v_add_f32 v{AC+4}, v{AC+4}, v{AC+5}"); A(f"v_add_f32 v{AC+6}, v{AC+6}, v{AC+7}")
    A(f"v_add_f32 v{T}, v{AC}, v{AC+2}"); A(f"v_add_f32 v{T+1}, v{AC+4}, v{AC+6}")
    A("s_cbranch_execz L_a_nost")
    lstore(f"buffer_store_dwordx4 v[{T}:{T+3}], v{vFA}, {sWS}, 0 offen")
    g.lab("L_a_nost")
    A("s_mov_b64 exec, -1")
    tst(28)
    A(f"s_cmp_lg_u32 {sWAVE}, 7"); A("s_cbranch_scc1 L_end")
    g.c("wave 7: final reduce of the 56 partials for 16 columns")
    FG = R0
    A(f"v_lshlrev_b32 v7, 4, v{vLANE}")
    A(f"s_mul_i32 s37, {sRI}, {FSTR}"); A(f"s_add_u32 s37, s37, {FP:#x}"); A("v_add_u32 v7, s37, v7")
    A("s_movk_i32 s43, 0x1000")
    A(f"v_and_b32 v8, 7, v{vLANE}"); A("v_lshlrev_b32 v8, 1, v8"); A(f"v_lshrrev_b32 v11, 5, v{vLANE}"); A("v_add_u32 v8, v8, v11")
    A(f"v_lshlrev_b32 v11, 2, v8"); A(f"ds_read_b32 v{T+8}, v11 offset:{L_HV}")
    A(f"v_lshlrev_b32 v{T+9}, 1, v8")
    srd(g, 16, 84, 896)
    def mkf(k):
        so = "0" if k < 4 else "s43"
        off = f" offset:{1024*(k&3)}" if (k & 3) else ""
        return lambda: A(f"buffer_load_dwordx4 v[{FG+4*k}:{FG+4*k+3}], v7, {sWS}, {so} offen{off} sc1")
    if dbg == 5: A("s_mov_b32 s92, 39"); tst(30)
    selpoll(g, [(mkf(k), [FG+4*k+3]) for k in range(7)], 9, 10, dbgbase=40 if dbg == 5 else None)
    tst(29)
    def pka(x, y): A(f"v_pk_add_f32 v[{x}:{x+1}], v[{x}:{x+1}], v[{y}:{y+1}]")
    pka(FG, FG+4); pka(FG+8, FG+12); pka(FG+16, FG+20)
    pka(FG, FG+8); pka(FG+16, FG+24)
    pka(FG, FG+16)
    red16(FG, FG+1, 9)
    bf16r(g, FG, FG)
    A(f"v_add_f32 v{FG}, v{FG}, v{vB2}")
    bf16r(g, FG, FG)
    A("s_waitcnt lgkmcnt(0)")
    A(f"v_add_f32 v{FG}, v{FG}, v{T+8}")
    A(f"v_cvt_pk_bf16_f32 v{FG}, v{FG}, v{FG}")
    A(f"s_lshl_b32 s37, {sRI}, 5")
    A("s_mov_b32 exec_lo, 0xff"); A("s_mov_b32 exec_hi, 0xff")
    A(f"buffer_store_short v{FG}, v{T+9}, {sT1}, s37 offen")
    A(f"s_cmp_lg_u32 {sRI}, 0"); A("s_cbranch_scc1 L_end")
    A(f"s_add_u32 s38, {sEP}, 1"); A("v_mov_b32 v8, s38"); A("v_mov_b32 v9, 0")
    A("s_mov_b64 exec, 1")
    A(f"buffer_store_dword v8, v9, {sWS}, 0 offen sc1")
    g.lab("L_end")
    if dbg == 4:
        A("s_mov_b64 exec, -1")
        stamp(9)
    if dbg and dbg != 4:
        A("s_mov_b64 exec, -1")
        stamp(9)
        if dbg not in (3, 5): A("s_mov_b64 exec, 0xffff")
        A(f"s_lshl_b32 s37, s2, 3"); A(f"s_add_u32 s37, s37, {sWAVE}"); A(f"s_lshl_b32 s37, s37, {8 if dbg in (3, 5) else 6}"); A(f"s_add_u32 s37, s37, {DBG:#x}")
        A(f"v_lshlrev_b32 v7, 2, v{vLANE}")
        A(f"buffer_store_dword v{vSTAMP}, v7, {sWS}, s37 offen")
    g.lab("L_exit")
    A("s_endpgm")
    if GNT:
        for i, l in enumerate(g.L):
            if l.rstrip().endswith("sc1"):
                if "buffer_store" in l and (GNT & 1): g.L[i] = l + " nt"
                if "buffer_load" in l and (GNT & 2): g.L[i] = l + " nt"
    hdr = open("cdna_kernels/" + NAME + ".s.ref").read().split("\n")
    head = []
    for l in hdr:
        if l.startswith("; @launch"): head.append(f"; @launch grid=(256,1,1) block=(512,1,1) lds={LDS_BYTES}")
        elif l.startswith(";"): head.append(l)
        else: break
    return "\n".join(head) + f"""
.amdgcn_target "amdgcn-amd-amdhsa--gfx950"
.text
.globl {NAME}_kernel
.p2align 8
.type {NAME}_kernel,@function
{NAME}_kernel:
""" + "\n".join(g.L) + f"""
.section .rodata,"a"
.p2align 6
.amdhsa_kernel {NAME}_kernel
  .amdhsa_next_free_vgpr 256
  .amdhsa_next_free_sgpr 102
  .amdhsa_accum_offset 256
  .amdhsa_group_segment_fixed_size 0
  .amdhsa_kernarg_size 104
  .amdhsa_user_sgpr_count 2
  .amdhsa_user_sgpr_kernarg_segment_ptr 1
  .amdhsa_system_sgpr_workgroup_id_x 1
  .amdhsa_float_denorm_mode_32 3
.end_amdhsa_kernel
"""
if __name__ == "__main__":
    out = sys.argv[1] if len(sys.argv) > 1 else "k/v3.s"
    kw = {}
    for a in sys.argv[2:]:
        k, v = a.split("="); kw[k] = int(v)
    open(out, "w").write(generate(**kw))
    open(out.replace(".s", "_dbg.s"), "w").write(generate(dbg=1, **kw))
    open(out.replace(".s", "_lt.s"), "w").write(generate(dbg=2, **kw))
    open(out.replace(".s", "_st.s"), "w").write(generate(dbg=3, **kw))
    open(out.replace(".s", "_hb.s"), "w").write(generate(dbg=4, **kw))
    open(out.replace(".s", "_tl.s"), "w").write(generate(dbg=5, **kw))
    print("wrote", out)
```

```python
import struct, sys, math
NAME = "sequential_preLN__mha_block_cached__dense_activation_squared_relu__decode"
def f2u(x): return struct.unpack("<I", struct.pack("<f", x))[0]
CSC = f2u(0.0625 * math.log2(math.e)); EPS = f2u(1e-5); INVN = f2u(1.0 / 448.0); NEG_BIG = f2u(-3.0e38)

EPOCH = 0x0
ST = 0x200000
OP = 0x10000
HG = 0x98000
FP = 0x9A000
XG = 0x9800
QP = 0xD0000
YSTR = 4096 + 128
FSTR = 7168 + 128
YP = 0x100000
CNT = 0x1E8000
DBG = 0x300000
L_Q = 0x0; L_TAG = 0x200; L_ST = 0x400; L_OB = 0x480; L_CL = 0x4C0; L_HV = 0x600; L_AL = 0x500; L_O = 0x800; L_HP = 0x2800
L_XP = 0x2A00
L_X = 0x3000
L_AP = 0x3800
L_YW = 0x4000; L_W1 = 0x8000; L_W2 = 0x16000
LDS_BYTES = 0x26000

class Gen:
    def __init__(self): self.L = []; self.uid = 0
    def A(self, s): self.L.append("    " + s)
    def lab(self, s): self.L.append(s + ":")
    def c(self, s): self.L.append("    ; " + s)
    def new(self, p): self.uid += 1; return f"L_{p}_{self.uid}"
    def nop(self, n):
        if n > 0: self.A(f"s_nop {n-1}")

sKS = "s[4:7]"; sVS = "s[8:11]"; sWS = "s[12:15]"; sT1 = "s[16:19]"; sT2 = "s[20:23]"
sWAVE = "s24"; sH = "s25"; sS = "s26"; sTAG = "s27"; sEP = "s28"; sBASE = "s29"; sBUD = "s30"
sLAM = "s31"; sZ = "s32"; sC = "s33"; sSTEP = "s34"; sROLE = "s35"; sRI = "s36"
sGO = "s70"; sI0 = "s71"; sLIM = "s74"; sDC = "s75"; sBASE0 = "s59"; sMK = {2: ("s60", "s61"), 3: ("s62", "s63")}; sMC = {2: ("s76", "s77"), 3: ("s78", "s79")}
sNXT = "s52"; sV2 = "s53"; sV3 = "s54"; sLAM0 = "s55"; sROT = "s56"
vLANE = 1; vOFF = 2; vM = 4; vMC = 5; vL = 6
Q = 16; ACC = 32; RING = 96; TMP = 224
vXH = 64; vB2 = 65; vB1 = 66; vSTAMP = 251
sLOC = "s57"
R0 = RING
D = 4

def srd(g, dst, lo, nbytes):
    g.A(f"s_mov_b32 s{dst}, s{lo}"); g.A(f"s_mov_b32 s{dst+1}, s{lo+1}")
    g.A(f"s_mov_b32 s{dst+2}, {nbytes:#x}"); g.A(f"s_mov_b32 s{dst+3}, 0x20000")
def bf16r(g, dst, src, tmp=None):
    tmp = dst if tmp is None else tmp
    g.A(f"v_cvt_pk_bf16_f32 v{tmp}, v{src}, v{src}")
    g.A(f"v_and_b32 v{dst}, 0xffff0000, v{tmp}")
def dpp(g, op, dst, src0, src1, ctrl, rm=0xf, bm=0xf):
    g.A(f"{op}_dpp v{dst}, v{src0}, v{src1} {ctrl} row_mask:{rm:#x} bank_mask:{bm:#x}")
def wave_sum2(g, a, b, sa, sb):
    g.nop(2)
    for ctrl in ("row_ror:8", "row_ror:4", "row_ror:2", "row_ror:1"):
        dpp(g, "v_add_f32", a, a, a, ctrl); dpp(g, "v_add_f32", b, b, b, ctrl); g.nop(1)
    dpp(g, "v_add_f32", a, a, a, "row_bcast:15", rm=0xa); dpp(g, "v_add_f32", b, b, b, "row_bcast:15", rm=0xa); g.nop(1)
    dpp(g, "v_add_f32", a, a, a, "row_bcast:31", rm=0xc); dpp(g, "v_add_f32", b, b, b, "row_bcast:31", rm=0xc); g.nop(1)
    g.A(f"v_readlane_b32 {sa}, v{a}, 63"); g.A(f"v_readlane_b32 {sb}, v{b}, 63")
    g.nop(2)
def layernorm(g, vals, t, masked=None):
    c, s1, s2, y, mean, rs = t[:6]
    g.A(f"v_readfirstlane_b32 s37, v{vals[0]}")
    g.A(f"v_mov_b32 v{s1}, 0"); g.A(f"v_mov_b32 v{s2}, 0")
    if masked: g.A(f"s_mov_b64 exec, {masked}")
    for v in vals:
        g.A(f"v_subrev_f32 v{y}, s37, v{v}")
        g.A(f"v_add_f32 v{s1}, v{s1}, v{y}")
        g.A(f"v_fmac_f32 v{s2}, v{y}, v{y}")
    if masked: g.A("s_mov_b64 exec, -1")
    wave_sum2(g, s1, s2, "s38", "s39")
    g.A(f"s_mov_b32 s40, {INVN:#x}")
    g.A(f"v_mul_f32 v{y}, s38, v{rs}") if False else None
    g.A(f"v_mov_b32 v{y}, s38"); g.A(f"v_mov_b32 v{s2}, s39")
    g.A(f"v_mul_f32 v{y}, s40, v{y}"); g.A(f"v_mul_f32 v{s2}, s40, v{s2}")
    g.A(f"v_add_f32 v{mean}, s37, v{y}")
    g.A(f"v_fma_f32 v{s2}, -v{y}, v{y}, v{s2}")
    g.A(f"v_max_f32 v{s2}, 0, v{s2}")
    bf16r(g, mean, mean)
    bf16r(g, s2, s2)
    g.A(f"v_add_f32 v{s2}, {EPS:#x}, v{s2}")
    bf16r(g, s2, s2)
    g.A(f"v_sqrt_f32 v{s2}, v{s2}")
    for v in vals: g.A(f"v_sub_f32 v{v}, v{v}, v{mean}")
    bf16r(g, s2, s2)
    g.A(f"v_rcp_f32 v{rs}, v{s2}")
    for v in vals: bf16r(g, v, v)
    for v in vals:
        g.A(f"v_mul_f32 v{y}, v{v}, v{rs}")
        g.A(f"v_fma_f32 v{v}, -v{y}, v{s2}, v{v}")
        g.A(f"v_fma_f32 v{v}, v{v}, v{rs}, v{y}")
    for v in vals: bf16r(g, v, v)
def layernorm_pk(g, pk, w, t, masked):
    c, s1, s2, y, mean, rs = t[:6]
    for i in range(4):
        g.A(f"v_lshlrev_b32 v{w+2*i}, 16, v{pk[i]}"); g.A(f"v_and_b32 v{w+2*i+1}, 0xffff0000, v{pk[i]}")
    g.A(f"v_readfirstlane_b32 s37, v{w}")
    g.A(f"v_mov_b32 v{s1}, 0"); g.A(f"v_mov_b32 v{s2}, 0")
    g.A(f"s_mov_b64 exec, {masked}")
    for i in range(8):
        g.A(f"v_subrev_f32 v{y}, s37, v{w+i}")
        g.A(f"v_add_f32 v{s1}, v{s1}, v{y}")
        g.A(f"v_fmac_f32 v{s2}, v{y}, v{y}")
    g.A("s_mov_b64 exec, -1")
    wave_sum2(g, s1, s2, "s38", "s39")
    g.A(f"s_mov_b32 s40, {INVN:#x}")
    g.A(f"v_mov_b32 v{y}, s38"); g.A(f"v_mov_b32 v{s2}, s39")
    g.A(f"v_mul_f32 v{y}, s40, v{y}"); g.A(f"v_mul_f32 v{s2}, s40, v{s2}")
    g.A(f"v_add_f32 v{mean}, s37, v{y}")
    g.A(f"v_fma_f32 v{s2}, -v{y}, v{y}, v{s2}")
    g.A(f"v_cvt_pk_bf16_f32 v{mean}, v{mean}, v{mean}")
    g.A(f"v_max_f32 v{s2}, 0, v{s2}")
    g.A(f"v_and_b32 v{mean}, 0xffff0000, v{mean}")
    bf16r(g, s2, s2)
    g.A(f"v_add_f32 v{s2}, {EPS:#x}, v{s2}")
    for i in range(0, 4): g.A(f"v_sub_f32 v{w+i}, v{w+i}, v{mean}")
    bf16r(g, s2, s2)
    g.A(f"v_sqrt_f32 v{s2}, v{s2}")
    for i in range(4, 8): g.A(f"v_sub_f32 v{w+i}, v{w+i}, v{mean}")
    bf16r(g, s2, s2)
    g.A(f"v_rcp_f32 v{rs}, v{s2}")
    for i in range(4): g.A(f"v_cvt_pk_bf16_f32 v{pk[i]}, v{w+2*i}, v{w+2*i+1}")
    for i in range(4):
        g.A(f"v_lshlrev_b32 v{w+2*i}, 16, v{pk[i]}"); g.A(f"v_and_b32 v{w+2*i+1}, 0xffff0000, v{pk[i]}")
    for i in range(8): g.A(f"v_mul_f32 v{w+8+i}, v{w+i}, v{rs}")
    for i in range(8): g.A(f"v_fma_f32 v{w+i}, -v{w+8+i}, v{s2}, v{w+i}")
    for i in range(8): g.A(f"v_fma_f32 v{w+i}, v{w+i}, v{rs}, v{w+8+i}")
    for i in range(4): g.A(f"v_cvt_pk_bf16_f32 v{pk[i]}, v{w+2*i}, v{w+2*i+1}")
def reduce_scatter(g, regs, stages, pre=3):
    regs = list(regs)
    g.nop(pre)
    for st in stages:
        h = len(regs) // 2
        lo, hi = regs[:h], regs[h:]
        if st in (32, 16):
            for a, b in zip(lo, hi): g.A(f"v_permlane{st}_swap_b32 v{a}, v{b}")
            g.nop(1 if h > 1 else 2)
            if h >= 2 and lo[0] % 2 == 0 and hi[0] % 2 == 0 and lo == list(range(lo[0], lo[0] + h)) and hi == list(range(hi[0], hi[0] + h)):
                for j in range(0, h, 2): g.A(f"v_pk_add_f32 v[{lo[j]}:{lo[j]+1}], v[{lo[j]}:{lo[j]+1}], v[{hi[j]}:{hi[j]+1}]")
                g.nop(2)
            else:
                for a, b in zip(lo, hi): g.A(f"v_add_f32 v{a}, v{a}, v{b}")
                g.nop(max(0, 2 - (h - 1 - h // 2)))
        elif st == 8:
            for a, b in zip(lo, hi): dpp(g, "v_add_f32", a, a, a, "row_ror:8", bm=0x3)
            for a, b in zip(lo, hi): dpp(g, "v_add_f32", a, b, b, "row_ror:8", bm=0xc)
            g.nop(2)
        elif st == 4:
            for a, b in zip(lo, hi): dpp(g, "v_add_f32", a, a, a, "row_shl:4", bm=0x5)
            for a, b in zip(lo, hi): dpp(g, "v_add_f32", a, b, b, "row_shr:4", bm=0xa)
            g.nop(2)
        regs = lo
    return regs
def allreduce_low(g, r, bits, op="v_add_f32"):
    for b in bits:
        ctrl = {0: "quad_perm:[1,0,3,2]", 1: "quad_perm:[2,3,0,1]", 2: "row_half_mirror"}[b]
        dpp(g, op, r, r, r, ctrl); g.nop(2)
def allreduce_high(g, regs, tmps, op="v_add_f32"):
    if not isinstance(regs, list): regs = [regs]; tmps = [tmps]
    n = len(regs)
    for r in regs: dpp(g, op, r, r, r, "row_ror:8")
    for st in (16, 32):
        for r, t in zip(regs, tmps): g.A(f"v_mov_b32 v{t}, v{r}")
        g.nop(max(0, 3 - n) if n > 1 else 2)
        for r, t in zip(regs, tmps): g.A(f"v_permlane{st}_swap_b32 v{r}, v{t}")
        g.nop(1)
        for r, t in zip(regs, tmps): g.A(f"{op} v{r}, v{r}, v{t}")
    g.nop(2)
def poll(g, emit_loads, tagregs, t0, t1, sleep=0):
    lp = g.new("poll"); ok = g.new("ok")
    g.lab(lp)
    emit_loads()
    g.A("s_waitcnt vmcnt(0)")
    g.A(f"v_xor_b32 v{t0}, {sTAG}, v{tagregs[0]}")
    for t in tagregs[1:]:
        g.A(f"v_xor_b32 v{t1}, {sTAG}, v{t}")
        g.A(f"v_or_b32 v{t0}, v{t0}, v{t1}")
    g.A(f"v_cmp_ne_u32 vcc, 0, v{t0}")
    g.A(f"s_cbranch_vccz {ok}")
    if sleep: g.A(f"s_sleep {sleep}")
    g.A(f"s_sub_u32 {sBUD}, {sBUD}, 1")
    g.A(f"s_cbranch_scc0 {lp}")
    g.A(f"s_mov_b32 {sBUD}, 0")
    g.lab(ok)
def selpoll(g, groups, t0, t1, sflags="s49", first_issued=False, sleep=0, dbgbase=None):
    n = len(groups)
    lp = g.new("sp"); ok = g.new("spok"); chk = g.new("spchk")
    g.A(f"s_mov_b32 {sflags}, {(1 << n) - 1}")
    if first_issued: g.A(f"s_branch {chk}")
    g.lab(lp)
    for i, (ld, tags) in enumerate(groups):
        sk = g.new("sk")
        g.A(f"s_bitcmp1_b32 {sflags}, {i}"); g.A(f"s_cbranch_scc0 {sk}")
        ld()
        g.lab(sk)
    g.lab(chk)
    g.A("s_waitcnt vmcnt(0)")
    if dbgbase is not None:
        g.A("s_memrealtime s[90:91]"); g.A("s_waitcnt lgkmcnt(0)")
        g.A("s_add_u32 s92, s92, 1"); g.A(f"s_min_u32 m0, s92, {dbgbase+7}"); g.A("s_nop 0")
        g.A(f"v_writelane_b32 v{vSTAMP}, s90, m0")
    for i, (ld, tags) in enumerate(groups):
        sk = g.new("sc")
        g.A(f"s_bitcmp1_b32 {sflags}, {i}"); g.A(f"s_cbranch_scc0 {sk}")
        if len(tags) == 1:
            g.A(f"v_cmp_ne_u32 vcc, {sTAG}, v{tags[0]}")
        else:
            g.A(f"v_xor_b32 v{t0}, {sTAG}, v{tags[0]}")
            for t in tags[1:]:
                g.A(f"v_xor_b32 v{t1}, {sTAG}, v{t}"); g.A(f"v_or_b32 v{t0}, v{t0}, v{t1}")
            g.A(f"v_cmp_ne_u32 vcc, 0, v{t0}")
        g.A(f"s_cbranch_vccnz {sk}")
        g.A(f"s_bitset0_b32 {sflags}, {i}")
        g.lab(sk)
    g.A(f"s_cmp_eq_u32 {sflags}, 0"); g.A(f"s_cbranch_scc1 {ok}")
    if sleep: g.A(f"s_sleep {sleep}")
    g.A(f"s_sub_u32 {sBUD}, {sBUD}, 1")
    g.A(f"s_cbranch_scc0 {lp}")
    g.A(f"s_mov_b32 {sBUD}, 0")
    g.lab(ok)
def pipepoll(g, n, emit_load, final, setA, setB, tagoffs, t0, scratch, stagger, first_in_final=False, sflags="s49"):
    done = g.new("ppd"); lp = g.new("ppl")
    def check(base, copy):
        for i in range(n):
            sk = g.new("pc")
            g.A(f"s_bitcmp1_b32 {sflags}, {i}"); g.A(f"s_cbranch_scc0 {sk}")
            r = base + 4*i
            if len(tagoffs) == 1:
                g.A(f"v_cmp_ne_u32 vcc, {sTAG}, v{r+tagoffs[0]}")
            else:
                g.A(f"v_xor_b32 v{t0}, {sTAG}, v{r+tagoffs[0]}"); g.A(f"v_xor_b32 v{t0+1}, {sTAG}, v{r+tagoffs[1]}")
                g.A(f"v_or_b32 v{t0}, v{t0}, v{t0+1}"); g.A(f"v_cmp_ne_u32 vcc, 0, v{t0}")
            g.A(f"s_cbranch_vccnz {sk}")
            g.A(f"s_bitset0_b32 {sflags}, {i}")
            if copy:
                for e in range(4):
                    if e not in tagoffs: g.A(f"v_mov_b32 v{final+4*i+e}, v{r+e}")
            g.lab(sk)
    def issue(base):
        for i in range(n):
            dm = g.new("pi"); nx = g.new("pn")
            g.A(f"s_bitcmp1_b32 {sflags}, {i}"); g.A(f"s_cbranch_scc0 {dm}")
            emit_load(i, base + 4*i); g.A(f"s_branch {nx}")
            g.lab(dm)
            g.A("s_mov_b64 exec, 1"); g.A(f"buffer_load_dword v{scratch}, v{scratch+1}, {sWS}, 0 offen"); g.A("s_mov_b64 exec, -1")
            g.lab(nx)
    g.A(f"s_mov_b32 {sflags}, {(1 << n) - 1}")
    g.A(f"v_mov_b32 v{scratch+1}, 0x7ff00000")
    if first_in_final:
        g.A("s_waitcnt vmcnt(0)")
        check(final, False)
        g.A(f"s_cmp_eq_u32 {sflags}, 0"); g.A(f"s_cbranch_scc1 {done}")
    issue(setA)
    if stagger: g.A(f"s_sleep {stagger}")
    g.lab(lp)
    issue(setB)
    g.A(f"s_waitcnt vmcnt({n})")
    check(setA, True)
    g.A(f"s_cmp_eq_u32 {sflags}, 0"); g.A(f"s_cbranch_scc1 {done}")
    issue(setA)
    g.A(f"s_waitcnt vmcnt({n})")
    check(setB, True)
    g.A(f"s_cmp_eq_u32 {sflags}, 0"); g.A(f"s_cbranch_scc1 {done}")
    g.A(f"s_sub_u32 {sBUD}, {sBUD}, 1")
    g.A(f"s_cbranch_scc0 {lp}")
    g.A(f"s_mov_b32 {sBUD}, 0")
    g.lab(done)
def perm_pair(g, a, b, tmp):
    g.A(f"v_perm_b32 v{tmp}, v{b}, v{a}, s41")
    g.A(f"v_perm_b32 v{b}, v{b}, v{a}, s42")
    g.A(f"v_mov_b32 v{a}, v{tmp}")

def generate(dbg=False, LP=3, SK=0, DD=2, B0=1, TLBW=0, X5=1, ADF=0, HALF=0, RWX=16, ROT=72, BAR=1, H1SLEEP=0, PACE=4, NS=25, COMP=14, QPRE=3, PRE=4, QD=0, H1N=14, CPF=16, CPFN=3, SD=0, NOCOMP=0, FAKE=0, LOOK=1, CSTR=4352, AFL=2, GNT=0, TOUCH=0, NOLOC=0, TPF=0, PT=3, PTD=0, PP=3, PPS1=5, PPS2=7):
    g = Gen(); A = g.A
    HF = 512 - HALF
    NIT = HF + 2*HALF
    def stepstamp():
        if dbg == 3:
            A("s_memrealtime s[90:91]"); A("s_waitcnt lgkmcnt(0)")
            A("s_add_u32 s92, s92, 1"); A("s_min_u32 m0, s92, 63"); A("s_nop 0")
            A(f"v_writelane_b32 v{vSTAMP}, s90, m0")
    def hstamp(slot, cond_id, wave=0):
        if dbg == 4:
            l = g.new("hs")
            A(f"s_cmp_lg_u32 s2, {cond_id}"); A(f"s_cbranch_scc1 {l}")
            A(f"s_cmp_lg_u32 {sWAVE}, {wave}"); A(f"s_cbranch_scc1 {l}")
            A("s_memrealtime s[90:91]"); A("s_waitcnt lgkmcnt(0)")
            A("s_mov_b32 s96, s86"); A("s_mov_b32 s97, s87"); A("s_mov_b32 s98, 256"); A("s_mov_b32 s99, 0x20000")
            A(f"v_mov_b32 v252, s90"); A(f"v_mov_b32 v253, {4*slot}")
            A("s_mov_b64 s[92:93], exec"); A("s_mov_b64 exec, 1")
            A("buffer_store_dword v252, v253, s[96:99], 0 offen")
            A("s_mov_b64 exec, s[92:93]")
            g.lab(l)
    def tst(i):
        if dbg == 5:
            A("s_memrealtime s[90:91]"); A("s_waitcnt lgkmcnt(0)")
            A(f"v_writelane_b32 v{vSTAMP}, s90, {i}")
    def code_pf(wave, lab_from, lab_to, n, vd):
        l = g.new("cpf"); lp = g.new("cpc")
        A(f"s_cmp_lg_u32 {sWAVE}, {wave}"); A(f"s_cbranch_scc1 {l}")
        A("s_getpc_b64 s[96:97]")
        g.lab(lp)
        A(f"s_add_u32 s96, s96, {lab_from}-{lp}"); A("s_addc_u32 s97, s97, 0")
        A(f"v_lshlrev_b32 v3, 7, v{vLANE}")
        A(f"s_mov_b32 s98, {lab_to}-{lab_from}")
        le = g.new("cpe")
        for i in range(n):
            A("v_cmp_gt_u32 vcc, s98, v3"); A("s_and_b64 exec, exec, vcc")
            A(f"s_cbranch_execz {le}")
            A(f"global_load_dword v{vd}, v3, s[96:97]")
            A("v_add_u32 v3, 0x2000, v3")
        g.lab(le)
        A("s_mov_b64 exec, -1")
        g.lab(l)
    def stamp(i):
        if dbg == 5:
            if i in (3, 9): tst(i)
            return
        if dbg == 4:
            if i == 2:
                hstamp(2, 0); hstamp(3, 255)
            if i == 3:
                hstamp(4, 0); hstamp(5, 77); hstamp(6, 130); hstamp(7, 255)
            if i == 9:
                hstamp(8, 3); hstamp(9, 0); hstamp(10, 19)
            return
        if dbg == 3 and i in (3, 9):
            A("s_memrealtime s[90:91]"); A("s_waitcnt lgkmcnt(0)")
            A(f"v_writelane_b32 v{vSTAMP}, s90, {i}")
        if dbg == 1 or (dbg == 2 and i in (2, 3, 9, 4, 5)) :
            A("s_memrealtime s[90:91]"); A("s_waitcnt lgkmcnt(0)")
            A(f"v_writelane_b32 v{vSTAMP}, s90, {i}")
    A("s_cmp_ge_u32 s2, 256")
    A("s_cbranch_scc1 L_exit")
    if dbg: A("s_memrealtime s[94:95]")
    A("s_load_dwordx16 s[64:79], s[0:1], 0")
    A("s_load_dwordx8 s[80:87], s[0:1], 64")
    A("s_load_dwordx2 s[88:89], s[0:1], 96")
    A(f"v_and_b32 v{vLANE}, 63, v0")
    if CPF:
        g.c("code prefetch into L2 (wave 7 of the first CPF workgroups)")
        A(f"s_cmp_ge_u32 s2, {CPF}"); A("s_cbranch_scc1 L_nocpf")
        A("v_cmp_lt_u32 vcc, 447, v0"); A("s_cbranch_vccz L_nocpf")
        A("s_getpc_b64 s[96:97]")
        g.lab("L_pc")
        A(f"v_lshlrev_b32 v3, 7, v{vLANE}")
        A("s_mov_b32 s98, L_exit-L_pc")
        for i in range(CPFN):
            A("v_cmp_gt_u32 vcc, s98, v3"); A("s_and_b64 exec, exec, vcc")
            A(f"s_cbranch_execz L_cpfend")
            A(f"global_load_dword v{252+(i&3)}, v3, s[96:97]")
            A("v_add_u32 v3, 0x2000, v3")
        g.lab("L_cpfend")
        A("s_mov_b64 exec, -1")
        g.lab("L_nocpf")
    A("v_lshrrev_b32 v3, 6, v0")
    A(f"v_lshrrev_b32 v7, 3, v{vLANE}")
    A(f"v_readfirstlane_b32 {sWAVE}, v3")
    A("v_lshlrev_b32 v7, 9, v7")
    A(f"v_and_b32 v{vOFF}, 7, v{vLANE}")
    A(f"v_lshlrev_b32 v{vOFF}, 4, v{vOFF}")
    A(f"v_add_u32 v{vOFF}, v{vOFF}, v7")
    A(f"s_lshr_b32 {sH}, s2, 4")
    A(f"s_and_b32 {sS}, s2, 15")
    A(f"s_lshl_b32 {sBASE}, {sH}, 24"); A(f"s_mov_b32 {sBASE0}, {sBASE}")
    A(f"s_mul_i32 {sROT}, {sH}, {ROT}")
    A(f"s_lshl_b32 {sLAM0}, {sS}, 3"); A(f"s_add_u32 {sLAM0}, {sLAM0}, {sWAVE}")
    A(f"s_mov_b32 {sZ}, 0")
    A(f"s_mov_b32 {sC}, {CSC:#x}")
    A(f"s_mov_b32 {sBUD}, 0x40000")
    A("s_waitcnt lgkmcnt(0)")
    if dbg and dbg != 4: A(f"v_mov_b32 v{vSTAMP}, 0"); A(f"v_writelane_b32 v{vSTAMP}, s94, 0")
    srd(g, 4, 66, 0x10000000); srd(g, 8, 68, 0x10000000); srd(g, 12, 88, 0x40000000)
    hstamp(0, 0); hstamp(1, 255)
    def phys_tile(sitem):
        if LP:
            A(f"s_and_b32 s46, {sitem}, {(1 << LP) - 1}"); A(f"s_lshl_b32 s46, s46, {9 - LP}")
            A(f"s_lshr_b32 s47, {sitem}, {LP}"); A("s_add_u32 s46, s46, s47")
            A(f"s_add_u32 s46, s46, {sROT}")
        else:
            A(f"s_add_u32 s46, {sitem}, {sROT}")
        A("s_and_b32 s46, s46, 511"); A("s_lshl_b32 s46, s46, 3"); A(f"s_add_u32 s46, s46, {sWAVE}"); A("s_lshl_b32 s46, s46, 12")
        A(f"s_add_u32 s46, s46, {sBASE}")
    def tile_addr(vdst):
        A(f"s_mul_i32 s49, {sZ}, {SK}"); A(f"s_add_u32 s49, s49, {sS}"); A("s_and_b32 s49, s49, 15")
        A(f"s_lshl_b32 s47, {sZ}, 4"); A("s_add_u32 s49, s49, s47")
        phys_tile("s49")
        A(f"v_add_u32 v{vdst}, s46, v{vOFF}")
        A(f"s_add_u32 {sZ}, {sZ}, 1")
    def tile_addr_dyn(vdst, smk):
        phys_tile(sNXT)
        A(f"s_cmp_lt_u32 {sNXT}, {NIT}")
        A(f"s_cselect_b32 s46, s46, 0x80000000")
        A(f"s_cselect_b32 {smk[0]}, -1, 1"); A(f"s_cselect_b32 {smk[1]}, -1, 0")
        A(f"v_add_u32 v{vdst}, s46, v{vOFF}")
    def loads(b, srdn, va):
        for j in range(4):
            off = f" offset:{j*128}" if j else ""
            A(f"buffer_load_dwordx4 v[{b+4*j}:{b+4*j+3}], v{va}, {srdn}, 0 offen{off} nt")
    VA = [12, 13, 14, 15]
    KB = [RING + 32*k for k in range(D)]; VB = [RING + 32*k + 16 for k in range(D)]
    if X5:
        KB.append(64); VB.append(80); VA.append(3)
    DP = D + (1 if X5 else 0)
    A(f"s_cmp_lg_u32 {sWAVE}, 0")
    A("s_cbranch_scc1 L_others")
    g.c("wave0: x, epoch, wq partial loads (64 cols x 112 rows)")
    A("s_setprio 3")
    srd(g, 16, 64, 896); srd(g, 20, 70, 448*8192)
    A("v_mov_b32 v8, 0")
    A(f"v_lshlrev_b32 v9, 1, v{vLANE}")
    XR = [88+k for k in range(7)]
    for k in range(7): A(f"buffer_load_ushort v{XR[k]}, v9, {sT1}, 0 offen offset:{128*k} nt")
    A(f"buffer_load_dword v95, v8, {sWS}, 0 offen sc1")
    A(f"s_mul_i32 s44, {sH}, {CSTR}"); A(f"s_add_u32 s44, s44, {CNT:#x}")
    A(f"s_cmp_lg_u32 {sS}, 0"); A("s_cbranch_scc1 L_nozero")
    A("s_mov_b64 exec, 1")
    A(f"buffer_store_dword v8, v8, {sWS}, s44 offen sc1")
    A("s_mov_b64 exec, -1")
    g.lab("L_nozero")
    A("s_and_b32 s43, s2, 3")
    A("s_lshr_b32 s44, s2, 2"); A("s_lshl_b32 s44, s44, 7")
    A(f"s_mul_i32 s45, s43, {112*8192}"); A("s_add_u32 s44, s44, s45")
    A(f"v_lshrrev_b32 v10, 3, v{vLANE}"); A("v_lshlrev_b32 v10, 13, v10")
    A(f"v_and_b32 v11, 7, v{vLANE}"); A("v_lshlrev_b32 v11, 4, v11"); A("v_add3_u32 v10, v10, v11, s44")
    WQ = 32
    for j in range(14):
        A(f"s_mov_b32 s45, {j*8*8192}")
        A(f"buffer_load_dwordx4 v[{WQ+4*j}:{WQ+4*j+3}], v10, {sT2}, s45 offen nt")
    if TOUCH & 2:
        A(f"v_lshlrev_b32 v11, 4, v{vLANE}")
        A(f"s_lshl_b32 s44, {sH}, 13"); A(f"s_add_u32 s44, s44, {QP:#x}")
        for kq in range(8):
            A(f"buffer_load_dwordx4 v[{TMP+20}:{TMP+23}], v11, {sWS}, s44 offen sc1")
            A("s_add_u32 s44, s44, 1024")
    if B0: A("s_barrier")
    g.c("wave0: layernorm(x), q partial")
    A("s_waitcnt vmcnt(15)")
    stamp(13)
    for k in range(7): A(f"v_lshlrev_b32 v{XR[k]}, 16, v{XR[k]}")
    layernorm(g, XR, [TMP, TMP+1, TMP+2, TMP+3, TMP+4, TMP+5])
    A(f"v_lshlrev_b32 v9, 2, v{vLANE}")
    for k in range(7): A(f"ds_write_b32 v9, v{XR[k]} offset:{L_X + 256*k}")
    A("s_mul_i32 s45, s43, 448")
    A(f"v_lshrrev_b32 v9, 3, v{vLANE}"); A("v_lshlrev_b32 v9, 2, v9"); A("v_add_u32 v9, s45, v9")
    A("s_waitcnt lgkmcnt(0)")
    XJ = [TMP + j for j in range(14)]
    for j in range(14): A(f"ds_read_b32 v{XJ[j]}, v9 offset:{L_X + 32*j}")
    A(f"s_waitcnt vmcnt({14 + (8 if TOUCH & 2 else 0)})")
    A(f"v_readfirstlane_b32 {sEP}, v95")
    for i in range(8): A(f"v_mov_b32 v{Q+i}, 0")
    A(f"s_mul_i32 {sTAG}, {sEP}, 0x9E3779B1")
    A(f"s_add_u32 {sTAG}, {sTAG}, 0x85EBCA6B")
    A("s_waitcnt vmcnt(0) lgkmcnt(0)")
    stamp(14)
    for j in range(14):
        xl = TMP + 14 + (j & 1)
        A(f"v_lshrrev_b32 v{xl}, 16, v{XJ[j]}")
        for i in range(4):
            A(f"v_dot2c_f32_bf16 v{Q+2*i}, v{WQ+4*j+i}, v{xl}")
            A(f"v_dot2c_f32_bf16 v{Q+2*i+1}, v{WQ+4*j+i}, v{XJ[j]}")
    r = reduce_scatter(g, [Q+i for i in range(8)], [32, 16, 8])[0]
    A(f"v_mov_b32_dpp v{r+2}, v{r} row_ror:8 row_mask:0xf bank_mask:0xf")
    A(f"v_mov_b32 v{r+1}, {sTAG}"); A(f"v_mov_b32 v{r+3}, {sTAG}")
    A(f"v_and_b32 v9, 7, v{vLANE}"); A("v_lshlrev_b32 v9, 6, v9")
    A(f"v_lshrrev_b32 v11, 3, v{vLANE}"); A("v_lshlrev_b32 v11, 3, v11"); A("v_add_u32 v9, v9, v11")
    A(f"s_lshl_b32 s44, {sH}, 13"); A("s_lshl_b32 s45, s43, 11"); A("s_add_u32 s44, s44, s45")
    A(f"s_lshr_b32 s45, {sS}, 2"); A("s_lshl_b32 s45, s45, 9"); A("s_add_u32 s44, s44, s45"); A(f"s_add_u32 s44, s44, {QP:#x}")
    A("s_mov_b32 exec_lo, 0x00ff00ff"); A("s_mov_b32 exec_hi, 0x00ff00ff")
    A(f"buffer_store_dwordx4 v[{r}:{r+3}], v9, {sWS}, s44 offen sc1")
    A("s_mov_b64 exec, -1")
    stamp(1)
    g.c("wave0: gather q partials of own head")
    A(f"v_lshlrev_b32 v9, 4, v{vLANE}")
    A(f"s_lshl_b32 s44, {sH}, 13"); A(f"s_add_u32 s44, s44, {QP:#x}")
    A("v_add_u32 v9, s44, v9")
    A(f"v_lshlrev_b32 v11, 4, v{vLANE}")
    for i in range(4): A(f"v_mov_b32 v{TMP+16+i}, 0")
    A(f"ds_write_b128 v11, v[{TMP+16}:{TMP+19}] offset:{L_XP}")
    for k in range(QPRE):
        tile_addr(VA[k]); loads(KB[k], sKS, VA[k]); loads(VB[k], sVS, VA[k])
    if QD: A(f"s_sleep {QD}")
    QG = 32
    def q_loads():
        for kq in range(4):
            A(f"s_movk_i32 s45, {kq*2048}")
            for i in range(2):
                off = f" offset:{i*1024}" if i else ""
                A(f"buffer_load_dwordx4 v[{QG+8*kq+4*i}:{QG+8*kq+4*i+3}], v9, {sWS}, s45 offen{off} sc1")
    qtags = [QG+4*m+1 for m in range(8)] + [QG+4*m+3 for m in range(8)]
    q_loads()
    A("s_barrier")
    stamp(12)
    A("s_waitcnt vmcnt(0)")
    A(f"v_xor_b32 v{TMP+5}, {sTAG}, v{qtags[0]}")
    for t in qtags[1:]:
        A(f"v_xor_b32 v{TMP+6}, {sTAG}, v{t}"); A(f"v_or_b32 v{TMP+5}, v{TMP+5}, v{TMP+6}")
    A(f"v_cmp_ne_u32 vcc, 0, v{TMP+5}")
    A("s_cbranch_vccz L_qok")
    A(f"s_sub_u32 {sBUD}, {sBUD}, 1")
    poll(g, q_loads, qtags, TMP+5, TMP+6)
    g.lab("L_qok")
    stamp(10)
    if dbg == 1: A(f"v_writelane_b32 v{vSTAMP}, {sBUD}, 11")
    for i in range(2):
        for e in (0, 2):
            A(f"v_add_f32 v{QG+4*i+e}, v{QG+4*i+e}, v{QG+8+4*i+e}")
            A(f"v_add_f32 v{QG+16+4*i+e}, v{QG+16+4*i+e}, v{QG+24+4*i+e}")
            A(f"v_add_f32 v{QG+4*i+e}, v{QG+4*i+e}, v{QG+16+4*i+e}")
        A(f"v_cvt_pk_bf16_f32 v{TMP+8+i}, v{QG+4*i}, v{QG+4*i+2}")
    A(f"v_lshlrev_b32 v9, 2, v{vLANE}")
    A(f"ds_write_b32 v9, v{TMP+8} offset:{L_Q}")
    A(f"ds_write_b32 v9, v{TMP+9} offset:{L_Q+256}")
    A(f"v_mov_b32 v{TMP+12}, {sTAG}"); A(f"v_mov_b32 v{TMP+13}, {sEP}"); A(f"v_mov_b32 v{TMP+7}, 0")
    A(f"ds_write_b64 v{TMP+7}, v[{TMP+12}:{TMP+13}] offset:{L_TAG}")
    for k in range(QPRE, DP):
        tile_addr(VA[k]); loads(KB[k], sKS, VA[k]); loads(VB[k], sVS, VA[k])
    A("s_setprio 0")
    A("s_waitcnt lgkmcnt(0)")
    A("s_branch L_waitq")
    g.lab("L_others")
    if B0: A("s_barrier")
    if SD: A(f"s_sleep {SD}")
    groups = []
    for k in range(DP): groups += [("K", k), ("V", k)]
    for gi, (kind, k) in enumerate(groups):
        if gi == PRE: A("s_barrier")
        if kind == "K": tile_addr(VA[k]); loads(KB[k], sKS, VA[k])
        else: loads(VB[k], sVS, VA[k])
    if TLBW:
        g.c("warm the address translation of this head's K/V pages through the scalar path (wave TLBW)")
        lw = g.new("tw")
        A(f"s_cmp_lg_u32 {sWAVE}, {TLBW}"); A(f"s_cbranch_scc1 {lw}")
        A(f"s_add_u32 s96, s66, {sBASE}"); A("s_addc_u32 s97, s67, 0")
        A(f"s_add_u32 s98, s68, {sBASE}"); A("s_addc_u32 s99, s69, 0")
        for p in range(8):
            A(f"s_load_dword s100, s[96:97], 0"); A(f"s_load_dword s101, s[98:99], 0")
            A("s_add_u32 s96, s96, 0x200000"); A("s_addc_u32 s97, s97, 0"); A("s_add_u32 s98, s98, 0x200000"); A("s_addc_u32 s99, s99, 0")
        g.lab(lw)
    g.lab("L_waitq")
    A("s_barrier")
    stamp(2)
    if dbg == 5:
        A("s_memtime s[90:91]"); A("s_waitcnt lgkmcnt(0)"); A(f"v_writelane_b32 v{vSTAMP}, s90, 58")
        A("s_memrealtime s[90:91]"); A("s_waitcnt lgkmcnt(0)"); A(f"v_writelane_b32 v{vSTAMP}, s90, 59")
    A(f"v_and_b32 v7, 7, v{vLANE}"); A("v_lshlrev_b32 v7, 4, v7")
    for c in range(4): A(f"ds_read_b128 v[{Q+4*c}:{Q+4*c+3}], v7 offset:{L_Q + 128*c}")
    A("v_mov_b32 v8, 0")
    A(f"ds_read_b64 v[10:11], v8 offset:{L_TAG}")
    for i in range(32): A(f"v_mov_b32 v{ACC+i}, 0")
    A(f"v_mov_b32 v{vM}, {NEG_BIG:#x}"); A(f"v_mov_b32 v{vMC}, {NEG_BIG:#x}"); A(f"v_mov_b32 v{vL}, 0")
    A("s_and_b32 s37, s2, 7"); A(f"s_lshr_b32 {sRI}, s2, 3")
    A(f"s_mov_b32 {sLOC}, 0")
    A("s_cmp_lt_u32 s2, 224"); A("s_cselect_b32 s38, 2, 1")
    A("s_cmp_eq_u32 s37, 0"); A(f"s_cselect_b32 {sROLE}, s38, 0")
    A("s_waitcnt lgkmcnt(0)")
    A(f"v_readfirstlane_b32 {sTAG}, v10"); A(f"v_readfirstlane_b32 {sEP}, v11")
    A(f"s_mov_b32 {sSTEP}, 0")
    if dbg == 3: A("s_mov_b32 s92, 15")
    resc = []
    def body(k, kwait, vwait, issue, pre=None, post=None):
        kb, vb = KB[k], VB[k]
        g.c(f"slot {k} ({issue})")
        if pre: pre()
        stepstamp()
        A(f"s_waitcnt vmcnt({kwait})")
        for r_ in range(4): A(f"v_dot2_f32_bf16 v{7+r_}, v{kb+r_}, v{Q+r_}, 0")
        for r_ in range(4, 16 if not NOCOMP else 4): A(f"v_dot2c_f32_bf16 v{7+(r_&3)}, v{kb+r_}, v{Q+r_}")
        if issue == "static": tile_addr(VA[k]); loads(kb, sKS, VA[k])
        elif issue == "dyn":
            tile_addr_dyn(VA[k], sMK[k])
            A(f"s_mov_b64 exec, s[{sMK[k][0][1:]}:{sMK[k][1][1:]}]"); loads(kb, sKS, VA[k]); A("s_mov_b64 exec, -1")
        else: g.nop(3)
        A("v_add_f32 v7, v7, v8"); A("v_add_f32 v9, v9, v10"); A("v_add_f32 v7, v7, v9"); g.nop(2)
        allreduce_low(g, 7, [0, 1, 2])
        A("v_cvt_pk_bf16_f32 v8, v7, v7")
        A("v_lshlrev_b32 v7, 16, v8")
        if issue == "dyn" and HALF:
            A(f"v_cndmask_b32 v7, v3, v7, s[{sMC[k][0][1:]}:{sMC[k][1][1:]}]")
        A(f"v_cmp_gt_f32 vcc, v7, v{vM}")
        lr, lc = g.new("resc"), g.new("cont")
        A(f"s_cbranch_vccnz {lr}")
        g.lab(lc)
        A(f"v_fma_f32 v8, v7, {sC}, -v{vMC}")
        A("v_exp_f32 v8, v8"); g.nop(1)
        A(f"v_add_f32 v{vL}, v{vL}, v8")
        A("v_cvt_pk_bf16_f32 v9, v8, 0")
        A("v_cvt_pk_bf16_f32 v10, 0, v8")
        A(f"s_waitcnt vmcnt({vwait})")
        for c in range(4 if not NOCOMP else 0):
            for i in range(4):
                A(f"v_dot2c_f32_bf16 v{ACC+8*c+2*i}, v{vb+4*c+i}, v9")
                A(f"v_dot2c_f32_bf16 v{ACC+8*c+2*i+1}, v{vb+4*c+i}, v10")
        if issue == "static": loads(vb, sVS, VA[k])
        elif issue == "dyn":
            A(f"s_mov_b64 exec, s[{sMK[k][0][1:]}:{sMK[k][1][1:]}]"); loads(vb, sVS, VA[k]); A("s_mov_b64 exec, -1")
            if HALF: A(f"s_mov_b64 s[{sMC[k][0][1:]}:{sMC[k][1][1:]}], s[{sMK[k][0][1:]}:{sMK[k][1][1:]}]")
        if post: post()
        resc.append((lr, lc))
    if X5:
        g.c("first revolution: five prefetched tiles")
        for k in range(D): body(k, 36, 36, "static", pre=lambda: A("s_barrier"))
        body(4, 36, 32, "none", pre=lambda: A("s_barrier"))
    NREV = (NS - 9) // 4 if X5 else (NS - 4) // 4
    assert (NS - (9 if X5 else 4)) % 4 == 0
    H1, H2 = (4, 8) if X5 else (8, 12)
    g.lab("L_loop")
    for k in range(D):
        body(k, 28, 28, "static", pre=(lambda: A("s_barrier")) if (BAR == 1 or (BAR == 4 and k == 0) or (BAR == 2 and k % 2 == 0)) else None)
    A(f"s_add_u32 {sSTEP}, {sSTEP}, 4")
    A(f"s_cmp_eq_u32 {sSTEP}, {H1}"); A("s_cbranch_scc1 L_wload")
    A(f"s_cmp_eq_u32 {sSTEP}, {H2}"); A("s_cbranch_scc1 L_xgload")
    g.lab("L_loop_back")
    A(f"s_cmp_lt_u32 {sSTEP}, {4*NREV}"); A("s_cbranch_scc1 L_loop")
    g.c("transition: consume slots 0,1 without issue")
    A(f"s_add_u32 s37, {sS}, {16*NS}"); A(f"v_mov_b32 v{TMP}, s37"); A(f"v_mov_b32 v{TMP+1}, 0")
    A(f"ds_write_b32 v{TMP+1}, v{TMP} offset:{L_CL}")
    A(f"s_mov_b32 {sV2}, 1"); A(f"s_mov_b32 {sV3}, 1"); A("s_mov_b32 s58, 0")
    A("s_mov_b64 s[76:77], -1"); A("s_mov_b64 s[78:79], -1"); A(f"v_mov_b32 v3, {NEG_BIG:#x}")
    A(f"s_cmp_eq_u32 {sROLE}, 0"); A(f"s_cselect_b32 {sLIM}, 0, {RWX}"); A(f"s_sub_u32 {sLIM}, {NIT}, {sLIM}"); A(f"s_mov_b32 {sDC}, 0"); A(f"s_mov_b32 {sI0}, 0"); A(f"s_mov_b32 {sGO}, 0")
    A("s_mov_b32 s41, 0x05040100"); A("s_mov_b32 s42, 0x07060302")
    if LOOK == 2: A(f"s_sub_u32 s37, {sS}, 16"); A(f"v_mov_b32 v{TMP+5}, s37")
    A(f"s_mul_i32 s48, {sH}, {CSTR}"); A(f"s_add_u32 s48, s48, {CNT:#x}")
    def xg_check():
        l = g.new("xgs"); l2 = g.new("xgok")
        A(f"s_cmp_eq_u32 {sROLE}, 0"); A(f"s_cbranch_scc1 {l}")
        A("s_mov_b32 exec_lo, -1"); A("s_mov_b32 exec_hi, 0")
        A(f"v_cmp_ne_u32 vcc, {sTAG}, v{TMP+13}")
        A(f"s_cbranch_vccz {l2}")
        A(f"v_lshlrev_b32 v{TMP+14}, 3, v{vLANE}"); A(f"v_add_u32 v{TMP+14}, {XG:#x}, v{TMP+14}")
        poll(g, lambda: A(f"buffer_load_dwordx2 v[{TMP+12}:{TMP+13}], v{TMP+14}, {sWS}, 0 offen sc1"), [TMP+13], TMP+8, TMP+9)
        g.lab(l2)
        A("s_getreg_b32 s37, hwreg(HW_REG_XCC_ID)"); A("s_and_b32 s37, s37, 15")
        A(f"v_cmp_ne_u32 vcc, s37, v{TMP+12}")
        A("s_cmp_eq_u64 vcc, 0"); A(f"s_cselect_b32 {sLOC}, 1, 0")
        if NOLOC: A(f"s_mov_b32 {sLOC}, 0")
        A("s_mov_b64 exec, -1")
        g.lab(l)
    def wo_load():
        l = g.new("wol")
        A("s_waitcnt lgkmcnt(0)")
        A(f"s_cmp_eq_u32 {sROLE}, 0"); A(f"s_cbranch_scc1 {l}")
        srd(g, 16, 72, 4096*896)
        A(f"s_lshl_b32 s37, {sH}, 4"); A(f"s_and_b32 s38, {sS}, 8"); A("s_add_u32 s37, s37, s38"); A(f"s_add_u32 s37, s37, {sWAVE}")
        A(f"s_mul_i32 s37, s37, {16*896}")
        A(f"v_lshlrev_b32 v{TMP+8}, 4, v{vLANE}")
        for i in range(16):
            A(f"buffer_load_dwordx4 v[{R0+4*i}:{R0+4*i+3}], v{TMP+8}, {sT1}, s37 offen nt")
            A("s_add_u32 s37, s37, 896")
        g.lab(l)
    body(0, 28, 24, "none", pre=lambda: A("s_barrier"), post=xg_check)
    body(1, 20, 16, "none", pre=lambda: A("s_barrier"), post=wo_load)
    if DD == 1: body(2, 12, 8, "none", pre=lambda: A("s_barrier"))
    if dbg == 2: stamp(5)
    if TPF & 1: code_pf(6, "L_s0", "L_exit", 2, TMP+20)
    g.lab("L_dyn")
    for k in (2, 3):
        p = k & 1
        sV = sV2 if (k == 2 or DD == 1) else sV3
        RA = [TMP+3, TMP+5]
        def pre(k=k, p=p, sV=sV):
            A("s_barrier")
            A(f"ds_read_b32 v{TMP+2}, v{TMP+1} offset:{L_CL + 4*p}")
            A(f"s_cmp_eq_u32 {sV}, 0"); A("s_cbranch_scc1 L_s0")
            A("s_waitcnt lgkmcnt(0)")
            A(f"v_readfirstlane_b32 {sNXT}, v{TMP+2}")
            l = g.new("noclaim")
            A(f"s_cmp_lg_u32 {sWAVE}, 0"); A(f"s_cbranch_scc1 {l}")
            A(f"s_mov_b32 {sGO}, 0")
            A(f"s_cmp_ge_u32 {sNXT}, {sLIM}"); A(f"s_cbranch_scc1 {l}")
            if ADF:
                la = g.new("ad")
                A(f"s_cmp_eq_u32 {sDC}, 1"); A(f"s_cselect_b32 {sI0}, {sNXT}, {sI0}")
                A(f"s_cmp_lt_u32 {sDC}, 3"); A(f"s_cbranch_scc1 {la}")
                A(f"s_cmp_eq_u32 {sS}, 3"); A(f"s_cbranch_scc1 {la}")
                A(f"s_cmp_eq_u32 {sS}, 12"); A(f"s_cbranch_scc1 {la}")
                A(f"s_sub_u32 s37, {sDC}, 1")
                A(f"s_sub_u32 s38, {sNXT}, {sI0}"); A("s_lshl_b32 s39, s37, 4"); A("s_sub_u32 s38, s38, s39")
                A(f"s_mul_i32 s38, s38, {ADF}")
                A(f"s_sub_u32 s39, {NIT}, {sNXT}"); A("s_mul_i32 s39, s39, s37"); A("s_lshl_b32 s39, s39, 1")
                A("s_cmp_lt_i32 s39, s38"); A(f"s_cbranch_scc1 {l}")
                g.lab(la)
            A(f"s_mov_b32 {sGO}, 1")
            ra = RA[p] if LOOK == 2 else RA[0]
            A(f"v_mov_b32 v{ra}, 1")
            A("s_mov_b64 exec, 1")
            if FAKE in (0, 3): A(f"buffer_atomic_add v{ra}, v{TMP+1}, {sWS}, s48 offen {['sc0', 'sc0 sc1', 'sc0 nt', 'sc0 sc1 nt'][AFL]}")
            elif FAKE == 2: A(f"buffer_load_dword v{ra}, v{TMP+1}, {sWS}, s48 offen sc1")
            A("s_mov_b64 exec, -1")
            g.lab(l)
        def post(k=k, p=p, sV=sV):
            A(f"s_cmp_lt_u32 {sNXT}, {NIT}"); A(f"s_cselect_b32 {sV}, 1, 0")
            if dbg: A(f"s_add_u32 {sSTEP}, {sSTEP}, {sV}")
            if PT & 4:
                lt = g.new("ept")
                A(f"s_cmp_lg_u32 {sWAVE}, 4"); A(f"s_cbranch_scc1 {lt}")
                A(f"s_cmp_lt_u32 {sNXT}, {NIT}"); A(f"s_cbranch_scc1 {lt}")
                A(f"s_cmp_eq_u32 s58, 1"); A(f"s_cbranch_scc1 {lt}")
                A("s_mov_b32 s58, 1")
                A(f"v_lshlrev_b32 v{TMP+8}, 4, v{vLANE}")
                A(f"s_lshl_b32 s38, {sH}, 15"); A(f"s_lshl_b32 s39, {sS}, 11"); A("s_add_u32 s38, s38, s39"); A(f"s_add_u32 s38, s38, {OP:#x}")
                A(f"buffer_load_dwordx4 v[{TMP+20}:{TMP+23}], v{TMP+8}, {sWS}, s38 offen sc1")
                A(f"buffer_load_dwordx4 v[{TMP+20}:{TMP+23}], v{TMP+8}, {sWS}, s38 offen offset:1024 sc1")
                g.lab(lt)
            lp_ = g.new("wop")
            A(f"s_add_u32 {sDC}, {sDC}, 1"); A(f"s_cmp_lg_u32 {sDC}, 2"); A(f"s_cbranch_scc1 {lp_}")
            A(f"s_cmp_eq_u32 {sROLE}, 0"); A(f"s_cbranch_scc1 {lp_}")
            if k == 3:
                for i in range(8):
                    for e in range(4): perm_pair(g, R0+8*i+e, R0+8*i+4+e, 9)
            g.lab(lp_)
            l = g.new("nopub")
            A(f"s_cmp_lg_u32 {sWAVE}, 0"); A(f"s_cbranch_scc1 {l}")
            ra = RA[p^1] if LOOK == 2 else RA[0]
            A(f"s_waitcnt vmcnt({17 if LOOK == 2 else 8})")
            if FAKE: A(f"s_add_u32 s49, {sNXT}, 16"); A(f"v_mov_b32 v{ra}, s49")
            else: A(f"v_add_u32 v{ra}, {16*(NS+LOOK)}, v{ra}")
            A(f"v_mov_b32 v{TMP+4}, 0xffff")
            A(f"s_cmp_eq_u32 {sGO}, 1"); A("s_cselect_b64 vcc, -1, 0")
            A(f"v_cndmask_b32 v{TMP+4}, v{TMP+4}, v{ra}, vcc")
            A("s_mov_b64 exec, 1")
            A(f"ds_write_b32 v{TMP+1}, v{TMP+4} offset:{L_CL + 4*(p^1)}")
            A("s_mov_b64 exec, -1")
            A("s_waitcnt lgkmcnt(0)")
            g.lab(l)
        if DD == 1: body(3, 4, 4, "dyn", pre=pre, post=post)
        else: body(k, 12, 12, "dyn", pre=pre, post=post)
    A("s_branch L_dyn")
    for lr, lc in resc:
        g.lab(lr)
        A("v_mov_b32 v8, v7"); g.nop(2)
        dpp(g, "v_max_f32", 8, 8, 8, "row_ror:8"); g.nop(2)
        dpp(g, "v_max_f32", 8, 8, 8, "row_bcast:15", rm=0xa); g.nop(2)
        dpp(g, "v_max_f32", 8, 8, 8, "row_bcast:31", rm=0xc); g.nop(1)
        A("v_readlane_b32 s47, v8, 63"); g.nop(2)
        A(f"v_max_f32 v9, s47, v{vM}")
        A(f"v_sub_f32 v10, v{vM}, v9")
        A(f"v_mul_f32 v10, {sC}, v10")
        A("v_exp_f32 v10, v10")
        A(f"v_mov_b32 v{vM}, v9")
        A(f"v_mul_f32 v{vMC}, {sC}, v9")
        A(f"v_mul_f32 v{vL}, v10, v{vL}")
        for i in range(32): A(f"v_mul_f32 v{ACC+i}, v10, v{ACC+i}")
        A(f"s_branch {lc}")
    g.lab("L_wload")
    if dbg == 2: stamp(4)
    A(f"s_cmp_eq_u32 {sROLE}, 0"); A("s_cbranch_scc1 L_loop_back")
    A(f"s_cmp_eq_u32 {sROLE}, 1"); A("s_cbranch_scc1 L_xgpub")
    g.c("role WG: w1[:, 64a..+64) (wave w rows 56w + 8j + (l>>3), chunk l&7), w2 rows 64a + 8w + j, b1, x, b2, xcc granule")
    srd(g, 16, 76, 448*3584); srd(g, 20, 80, 1792*896)
    A(f"v_lshrrev_b32 v{TMP}, 3, v{vLANE}"); A("s_movk_i32 s37, 3584"); A(f"v_mul_lo_u32 v{TMP}, v{TMP}, s37")
    A(f"v_and_b32 v{TMP+1}, 7, v{vLANE}"); A(f"v_lshlrev_b32 v{TMP+1}, 4, v{TMP+1}"); A(f"v_add_u32 v{TMP}, v{TMP}, v{TMP+1}")
    A(f"s_mul_i32 s37, {sWAVE}, {56*3584}"); A(f"s_lshl_b32 s38, {sRI}, 7"); A("s_add_u32 s37, s37, s38")
    A(f"s_mul_i32 s38, {sWAVE}, {7*1024}"); A(f"s_add_u32 s38, s38, {L_W1}")
    for j in range(7):
        A("s_mov_b32 m0, s38"); A("s_nop 0")
        A(f"buffer_load_dwordx4 v{TMP}, {sT1}, s37 offen nt lds")
        A(f"s_add_u32 s37, s37, {8*3584}"); A("s_add_u32 s38, s38, 1024")
    A(f"v_lshlrev_b32 v{TMP+2}, 4, v{vLANE}")
    A(f"s_lshl_b32 s37, {sRI}, 6"); A(f"s_lshl_b32 s38, {sWAVE}, 3"); A("s_add_u32 s37, s37, s38"); A("s_mul_i32 s37, s37, 896")
    A(f"s_lshl_b32 s38, {sWAVE}, 13"); A(f"s_add_u32 s38, s38, {L_W2}")
    for j in range(8):
        A("s_mov_b32 m0, s38"); A("s_nop 0")
        A(f"buffer_load_dwordx4 v{TMP+2}, {sT2}, s37 offen nt lds")
        A("s_add_u32 s37, s37, 896"); A("s_add_u32 s38, s38, 1024")
    srd(g, 16, 78, 1792*2)
    A(f"v_and_b32 v{TMP+1}, 7, v{vLANE}"); A(f"v_lshlrev_b32 v{TMP+1}, 3, v{TMP+1}"); A(f"v_lshrrev_b32 v{TMP+3}, 3, v{vLANE}"); A(f"v_add_u32 v{TMP+1}, v{TMP+1}, v{TMP+3}")
    A(f"v_lshlrev_b32 v{TMP+1}, 1, v{TMP+1}"); A(f"s_lshl_b32 s37, {sRI}, 7"); A(f"v_add_u32 v{TMP+1}, s37, v{TMP+1}")
    A(f"buffer_load_ushort v{vB1}, v{TMP+1}, {sT1}, 0 offen nt")
    srd(g, 16, 64, 896); srd(g, 20, 82, 896)
    A(f"s_lshl_b32 s37, {sRI}, 5")
    A(f"v_and_b32 v{TMP+3}, 7, v{vLANE}"); A(f"v_lshlrev_b32 v{TMP+3}, 1, v{TMP+3}"); A(f"v_lshrrev_b32 v{TMP+4}, 5, v{vLANE}"); A(f"v_add_u32 v{TMP+3}, v{TMP+3}, v{TMP+4}")
    A(f"v_lshlrev_b32 v{TMP+3}, 1, v{TMP+3}"); A(f"v_add_u32 v{TMP+3}, s37, v{TMP+3}")
    A(f"buffer_load_ushort v{vB2}, v{TMP+3}, {sT2}, 0 offen nt")
    A(f"buffer_load_ushort v{vXH}, v{TMP+3}, {sT1}, 0 offen nt")
    g.lab("L_xgpub")
    A(f"s_cmp_lg_u32 {sWAVE}, 0"); A("s_cbranch_scc1 L_loop_back")
    A("s_getreg_b32 s37, hwreg(HW_REG_XCC_ID)"); A("s_and_b32 s37, s37, 15")
    A(f"v_mov_b32 v{TMP+6}, s37"); A(f"v_mov_b32 v{TMP+7}, {sTAG}"); A(f"s_lshl_b32 s37, {sRI}, 3"); A(f"s_add_u32 s37, s37, {XG:#x}"); A(f"v_mov_b32 v{TMP+5}, 0")
    A("s_mov_b64 exec, 1")
    A(f"buffer_store_dwordx2 v[{TMP+6}:{TMP+7}], v{TMP+5}, {sWS}, s37 offen sc1")
    A("s_mov_b64 exec, -1")
    A("s_branch L_loop_back")
    g.lab("L_xgload")
    A(f"s_cmp_eq_u32 {sROLE}, 0"); A("s_cbranch_scc1 L_loop_back")
    A(f"v_lshlrev_b32 v{TMP+14}, 3, v{vLANE}"); A(f"v_add_u32 v{TMP+14}, {XG:#x}, v{TMP+14}")
    A(f"buffer_load_dwordx2 v[{TMP+12}:{TMP+13}], v{TMP+14}, {sWS}, 0 offen sc1")
    A("s_branch L_loop_back")
    g.lab("L_s0")
    stamp(3)
    if dbg and dbg != 4: A(f"v_writelane_b32 v{vSTAMP}, {sSTEP}, 15")
    g.c("S0: in-wave reduce")
    T = TMP
    allreduce_high(g, vL, T)
    reduce_scatter(g, [ACC+i for i in range(32)], [32, 16, 8])
    A(f"v_lshrrev_b32 v7, 4, v{vLANE}"); A("v_lshlrev_b32 v7, 8, v7")
    A(f"v_and_b32 v8, 7, v{vLANE}"); A("v_lshlrev_b32 v8, 5, v8")
    A(f"v_bfe_u32 v9, v{vLANE}, 3, 1"); A("v_lshlrev_b32 v9, 4, v9")
    A("v_add3_u32 v7, v7, v8, v9")
    A(f"s_lshl_b32 s37, {sWAVE}, 10"); A("v_add_u32 v7, s37, v7")
    A(f"ds_write_b128 v7, v[{ACC}:{ACC+3}] offset:{L_O}")
    A(f"v_mov_b32 v8, v{vM}"); A(f"v_mov_b32 v9, v{vL}")
    A(f"s_lshl_b32 s37, {sWAVE}, 3"); A("v_mov_b32 v10, s37")
    A(f"ds_write_b64 v10, v[8:9] offset:{L_ST}")
    A("s_mov_b32 s41, 0x05040100"); A("s_mov_b32 s42, 0x07060302")
    A("s_waitcnt vmcnt(0) lgkmcnt(0)")
    A("s_barrier")
    tst(16)
    A(f"s_cmp_gt_u32 {sWAVE}, 1"); A("s_cbranch_scc1 L_rw")
    g.c("waves 0-1: cross-wave combine + publish (thread t: dims 2t, 2t+1)")
    OW = 68
    A("v_mov_b32 v7, 0")
    for i in range(4): A(f"ds_read_b128 v[{T+4*i}:{T+4*i+3}], v7 offset:{L_ST+16*i}")
    A("v_lshlrev_b32 v8, 3, v0")
    for w in range(8): A(f"ds_read_b64 v[{OW+2*w}:{OW+2*w+1}], v8 offset:{L_O+1024*w}")
    A("s_waitcnt lgkmcnt(8)")
    A(f"v_max3_f32 v9, v{T}, v{T+2}, v{T+4}"); A(f"v_max3_f32 v10, v{T+6}, v{T+8}, v{T+10}"); A(f"v_max3_f32 v9, v9, v{T+12}, v{T+14}"); A(f"v_max_f32 v9, v9, v10")
    A(f"v_mul_f32 v11, {sC}, v9")
    for w in range(8): A(f"v_fma_f32 v{T+2*w}, v{T+2*w}, {sC}, -v11")
    for w in range(8): A(f"v_exp_f32 v{T+2*w}, v{T+2*w}")
    A("v_lshrrev_b32 v7, 3, v0"); A("v_lshlrev_b32 v7, 11, v7")
    A("v_and_b32 v8, 7, v0"); A("v_cmp_eq_u32 vcc, 0, v8"); A("v_lshlrev_b32 v8, 4, v8"); A("v_add_u32 v7, v7, v8")
    A(f"s_lshl_b32 s37, {sH}, 15"); A(f"s_lshl_b32 s38, {sS}, 7"); A("s_add_u32 s37, s37, s38"); A(f"s_add_u32 s37, s37, {OP:#x}")
    PG = 84
    A(f"v_mov_b32 v{PG+3}, {sTAG}")
    A("s_waitcnt lgkmcnt(0)")
    A(f"v_mul_f32 v{PG}, v{T}, v{OW}"); A(f"v_mul_f32 v{PG+1}, v{T}, v{OW+1}"); A(f"v_mul_f32 v10, v{T}, v{T+1}")
    for w in range(1, 8):
        A(f"v_fmac_f32 v{PG}, v{T+2*w}, v{OW+2*w}"); A(f"v_fmac_f32 v{PG+1}, v{T+2*w}, v{OW+2*w+1}"); A(f"v_fmac_f32 v10, v{T+2*w}, v{T+2*w+1}")
    A(f"v_cndmask_b32 v{PG+2}, v10, v9, vcc")
    A(f"buffer_store_dwordx4 v[{PG}:{PG+3}], v7, {sWS}, s37 offen sc1")
    tst(17)
    if dbg == 5: A("s_waitcnt vmcnt(0)"); tst(61)
    g.lab("L_rw")
    A(f"s_cmp_eq_u32 {sROLE}, 0"); A("s_cbranch_scc1 L_end")
    def lstore(text):
        l1, l2 = g.new("ls"), g.new("ls")
        A(f"s_cmp_eq_u32 {sLOC}, 0"); A(f"s_cbranch_scc1 {l1}")
        A(text); A(f"s_branch {l2}")
        g.lab(l1); A(text + " sc1"); g.lab(l2)
    g.c("first gather round of this wave's 16-dim slice, pre-touch of later hand-off lines, weight preparation")
    vOA = 50
    A(f"v_lshlrev_b32 v{vOA}, 4, v{vLANE}")
    A(f"s_and_b32 s39, {sS}, 8"); A(f"s_add_u32 s39, s39, {sWAVE}"); A("s_lshl_b32 s39, s39, 11")
    A(f"s_lshl_b32 s38, {sH}, 15"); A("s_add_u32 s38, s38, s39"); A(f"s_add_u32 s38, s38, {OP:#x}")
    A(f"v_add_u32 v{vOA}, s38, v{vOA}")
    def g0(): A(f"buffer_load_dwordx4 v[{T+8}:{T+11}], v{vOA}, {sWS}, 0 offen sc1")
    def g1(): A(f"buffer_load_dwordx4 v[{T+12}:{T+15}], v{vOA}, {sWS}, 0 offen offset:1024 sc1")
    g0(); g1()
    if PT:
        lpt = g.new("pt"); l7 = g.new("pt7"); l5 = g.new("pt5"); l6 = g.new("pt6")
        A(f"s_cmp_lt_u32 {sROLE}, 2"); A(f"s_cbranch_scc1 {lpt}")
        A(f"v_lshlrev_b32 v7, 4, v{vLANE}")
        DM = 88
        A(f"s_cmp_lg_u32 {sWAVE}, 7"); A(f"s_cbranch_scc1 {l7}")
        A(f"s_mul_i32 s37, {sRI}, {FSTR}"); A(f"s_add_u32 s37, s37, {FP:#x}")
        for k in range(7):
            A(f"buffer_load_dwordx4 v[{DM}:{DM+3}], v7, {sWS}, s37 offen sc1"); A("s_add_u32 s37, s37, 1024")
        g.lab(l7)
        A(f"s_cmp_lg_u32 {sWAVE}, 5"); A(f"s_cbranch_scc1 {l5}")
        A(f"s_mov_b32 s37, {HG:#x}")
        A(f"buffer_load_dwordx4 v[{DM}:{DM+3}], v7, {sWS}, s37 offen sc1"); A(f"buffer_load_dwordx4 v[{DM}:{DM+3}], v7, {sWS}, s37 offen offset:1024 sc1")
        g.lab(l5)
        A(f"s_cmp_lg_u32 {sWAVE}, 6"); A(f"s_cbranch_scc1 {l6}")
        A(f"s_mul_i32 s37, {sRI}, {YSTR}"); A(f"s_add_u32 s37, s37, {YP:#x}")
        for k in range(4):
            A(f"buffer_load_dwordx4 v[{DM}:{DM+3}], v7, {sWS}, s37 offen sc1"); A("s_add_u32 s37, s37, 1024")
        g.lab(l6)
        g.lab(lpt)
    W1R = R0 + 64; W2R = R0 + 96; XPR = 68; APR = 72; AC = 88; XA = [ACC + i for i in range(8)]; PA = ACC + 8
    vFA = 48; vC = 49; vYA = 51
    def ffn_prep():
        A(f"v_lshlrev_b32 v7, 4, v{vLANE}"); A(f"s_mul_i32 s37, {sWAVE}, {7*1024}"); A("v_add_u32 v7, s37, v7")
        for j in range(7): A(f"ds_read_b128 v[{W1R+4*j}:{W1R+4*j+3}], v7 offset:{L_W1 + 1024*j}")
        for i in range(4): A(f"v_mov_b32 v{W1R+28+i}, 0")
        A(f"s_and_b32 s37, {sWAVE}, 3"); A("s_lshl_b32 s37, s37, 8"); A(f"s_lshr_b32 s38, {sWAVE}, 2"); A("s_lshl_b32 s38, s38, 15"); A("s_add_u32 s37, s37, s38"); A(f"s_add_u32 s37, s37, {L_W2}")
        A(f"v_lshlrev_b32 v8, 2, v{vLANE}"); A("v_add_u32 v8, s37, v8")
        for i in range(16): A(f"ds_read2st64_b32 v[{W2R+2*i}:{W2R+2*i+1}], v8 offset0:{8*i} offset1:{8*i+4}")
        for r_ in (vXH, vB2, vB1): A(f"v_lshlrev_b32 v{r_}, 16, v{r_}")
        for k in range(2):
            for e in range(4):
                x = XA[4*k+e]
                A(f"v_lshlrev_b32 v{x}, 2, v{vLANE}"); A(f"v_add_u32 v{x}, {4*56*k + e}, v{x}")
                A("s_movk_i32 s37, 1171"); A(f"v_mul_u32_u24 v9, s37, v{x}"); A("v_lshrrev_b32 v9, 16, v9")
                A(f"v_mul_u32_u24 v10, 56, v9"); A(f"v_sub_u32 v10, v{x}, v10")
                A(f"v_lshrrev_b32 v11, 4, v10"); A(f"v_lshl_add_u32 v9, v9, 2, v11")
                A("v_and_b32 v11, 7, v10"); A("v_lshl_add_u32 v9, v9, 3, v11")
                A("v_bfe_u32 v11, v10, 3, 1"); A("v_lshlrev_b32 v11, 1, v11"); A(f"v_lshl_add_u32 v{x}, v9, 2, v11")
        A("s_waitcnt lgkmcnt(0)")
        for jj in range(4):
            for i in range(4): perm_pair(g, W1R+8*jj+i, W1R+8*jj+4+i, 9)
        for i in range(16): perm_pair(g, W2R+2*i, W2R+2*i+1, 9)
        A(f"s_and_b32 s37, {sWAVE}, 3"); A("s_lshl_b32 s37, s37, 6"); A(f"v_add_u32 v{vC}, s37, v{vLANE}")
        A(f"v_lshrrev_b32 v{vFA}, 3, v{vC}"); A(f"s_movk_i32 s38, {FSTR}"); A(f"v_mul_lo_u32 v{vFA}, v{vFA}, s38"); A(f"v_and_b32 v9, 7, v{vC}"); A("v_lshlrev_b32 v9, 4, v9"); A(f"v_add_u32 v{vFA}, v{vFA}, v9")
        A(f"s_lshl_b32 s37, {sRI}, 1"); A(f"s_lshr_b32 s38, {sWAVE}, 2"); A("s_add_u32 s37, s37, s38"); A("s_lshl_b32 s37, s37, 7"); A(f"s_add_u32 s37, s37, {FP:#x}"); A(f"v_add_u32 v{vFA}, s37, v{vFA}")
    lnf = g.new("noffn")
    A(f"s_cmp_lt_u32 {sROLE}, 2"); A(f"s_cbranch_scc1 {lnf}")
    A(f"s_cmp_eq_u32 {sWAVE}, 5"); A(f"s_cselect_b32 s37, 1, 0"); A(f"s_cmp_eq_u32 {sWAVE}, 6"); A(f"s_cselect_b32 s37, 1, s37")
    A("s_cmp_eq_u32 s37, 0"); A(f"s_cbranch_scc1 {lnf}")
    ffn_prep()
    g.lab(lnf)
    A(f"v_lshrrev_b32 v{vYA}, 3, v0"); A(f"s_movk_i32 s38, {YSTR}"); A(f"v_mul_lo_u32 v{vYA}, v{vYA}, s38"); A("v_and_b32 v9, 7, v0"); A("v_lshlrev_b32 v9, 4, v9"); A(f"v_add_u32 v{vYA}, v{vYA}, v9")
    A(f"s_lshl_b32 s37, {sRI}, 7"); A(f"s_add_u32 s37, s37, {YP:#x}"); A(f"v_add_u32 v{vYA}, s37, v{vYA}")
    for i in range(8): A(f"v_mov_b32 v{PA+i}, 0")
    vLW = 52
    A(f"v_lshlrev_b32 v{vLW}, 5, v{vLANE}"); A(f"s_mul_i32 s37, {sWAVE}, 1792"); A(f"v_add_u32 v{vLW}, s37, v{vLW}")
    g.c("hop 1: combine the 16 partials of this wave's 16 dims")
    if dbg == 5: A("s_mov_b32 s92, 47"); tst(47)
    selpoll(g, [(g0, [T+11]), (g1, [T+15])], 9, 10, first_issued=True, sleep=H1SLEEP, dbgbase=48 if dbg == 5 else None)
    tst(18)
    for dst, src, ln in ((T, T+10, 0), (T+4, T+14, 0), (T+1, T+10, 1), (T+5, T+14, 1)):
        A(f"v_mov_b32_dpp v{dst}, v{src} row_newbcast:{ln} row_mask:0xf bank_mask:0x3")
    for dst, src, ln in ((T, T+10, 8), (T+4, T+14, 8), (T+1, T+10, 9), (T+5, T+14, 9)):
        A(f"v_mov_b32_dpp v{dst}, v{src} row_newbcast:{ln} row_mask:0xf bank_mask:0xc")
    A(f"v_max_f32 v9, v{T}, v{T+4}"); g.nop(2)
    allreduce_high(g, 9, 10, op="v_max_f32")
    A(f"v_sub_f32 v{T}, v{T}, v9"); A(f"v_sub_f32 v{T+4}, v{T+4}, v9")
    A(f"v_mul_f32 v{T}, {sC}, v{T}"); A(f"v_mul_f32 v{T+4}, {sC}, v{T+4}")
    A(f"v_exp_f32 v{T}, v{T}"); A(f"v_exp_f32 v{T+4}, v{T+4}"); g.nop(1)
    A(f"v_mul_f32 v{T+16}, v{T}, v{T+1}"); A(f"v_mul_f32 v{T+17}, v{T}, v{T+8}"); A(f"v_mul_f32 v{T+18}, v{T}, v{T+9}")
    A(f"v_fmac_f32 v{T+16}, v{T+4}, v{T+5}"); A(f"v_fmac_f32 v{T+17}, v{T+4}, v{T+12}"); A(f"v_fmac_f32 v{T+18}, v{T+4}, v{T+13}")
    g.nop(2)
    allreduce_high(g, [T+16, T+17, T+18], [T+19, T+20, T+21])
    A(f"v_rcp_f32 v{T+16}, v{T+16}"); g.nop(1)
    A(f"v_mul_f32 v{T+17}, v{T+17}, v{T+16}"); A(f"v_mul_f32 v{T+18}, v{T+18}, v{T+16}")
    A(f"v_cvt_pk_bf16_f32 v{T+20}, v{T+17}, v{T+18}"); g.nop(1)
    for i in range(8): A(f"v_readlane_b32 s{64+i}, v{T+20}, {i}")
    g.nop(1)
    tst(19)
    g.c("wo product for this wave's 16 rows (lanes < 56: 8 columns each)")
    for i in range(8):
        for e in range(4):
            A(f"v_dot2c_f32_bf16 v{PA+2*e}, s{64+i}, v{R0+8*i+e}")
            A(f"v_dot2c_f32_bf16 v{PA+2*e+1}, s{64+i}, v{R0+8*i+4+e}")
    A("s_mov_b32 exec_lo, -1"); A("s_mov_b32 exec_hi, 0x00ffffff"); g.nop(2)
    A(f"ds_write_b128 v{vLW}, v[{PA}:{PA+3}] offset:{L_YW}"); A(f"ds_write_b128 v{vLW}, v[{PA+4}:{PA+7}] offset:{L_YW+16}")
    A("s_mov_b64 exec, -1")
    A("s_waitcnt lgkmcnt(0)")
    A("s_barrier")
    tst(20)
    A(f"s_cmp_gt_u32 {sWAVE}, 3"); A("s_cbranch_scc1 L_ysent")
    A("v_lshlrev_b32 v8, 3, v0")
    for w in range(8): A(f"ds_read_b64 v[{T+2*w}:{T+2*w+1}], v8 offset:{L_YW+1792*w}")
    A(f"v_mov_b32 v{T+18}, 0"); A(f"v_mov_b32 v{T+19}, {sTAG}")
    A("v_cmp_gt_u32 vcc, 224, v0")
    A("s_waitcnt lgkmcnt(0)")
    for st in (4, 2, 1):
        for i in range(st): A(f"v_pk_add_f32 v[{T+2*i}:{T+2*i+1}], v[{T+2*i}:{T+2*i+1}], v[{T+2*(i+st)}:{T+2*(i+st)+1}]")
    A(f"v_mov_b32 v{T+16}, v{T}"); A(f"v_mov_b32 v{T+17}, v{T+1}")
    A("s_and_saveexec_b64 s[50:51], vcc")
    lstore(f"buffer_store_dwordx4 v[{T+16}:{T+19}], v{vYA}, {sWS}, 0 offen")
    A("s_mov_b64 exec, -1")
    tst(21)
    g.lab("L_ysent")
    A(f"s_cmp_lt_u32 {sROLE}, 2"); A("s_cbranch_scc1 L_end")
    def red16(a_, b_, t_):
        g.nop(2)
        A(f"v_permlane32_swap_b32 v{a_}, v{b_}"); g.nop(1)
        A(f"v_add_f32 v{a_}, v{a_}, v{b_}")
        A(f"v_mov_b32 v{t_}, v{a_}"); g.nop(2)
        A(f"v_permlane16_swap_b32 v{a_}, v{t_}"); g.nop(1)
        A(f"v_add_f32 v{a_}, v{a_}, v{t_}"); g.nop(2)
        dpp(g, "v_add_f32", a_, a_, a_, "row_ror:8"); g.nop(1)
    A(f"s_cmp_eq_u32 {sWAVE}, 5"); A("s_cbranch_scc1 L_a_ln")
    A(f"s_cmp_eq_u32 {sWAVE}, 6"); A("s_cbranch_scc1 L_yred")
    ffn_prep()
    A("s_branch L_a_wait")
    g.lab("L_yred")
    g.c("wave 6: reduce the 32 y partials of 16 columns -> h, publish")
    YG = T
    A(f"v_lshlrev_b32 v7, 4, v{vLANE}")
    A(f"s_mul_i32 s37, {sRI}, {YSTR}"); A(f"s_add_u32 s37, s37, {YP:#x}"); A("v_add_u32 v7, s37, v7")
    A(f"v_and_b32 v8, 7, v{vLANE}"); A("v_lshlrev_b32 v8, 1, v8"); A(f"v_lshrrev_b32 v11, 5, v{vLANE}"); A("v_add_u32 v8, v8, v11"); A("v_lshlrev_b32 v8, 2, v8")
    A(f"v_lshlrev_b32 v11, 3, v{vLANE}")
    A(f"s_lshl_b32 s46, {sRI}, 6"); A(f"s_add_u32 s46, s46, {HG:#x}")
    def mky(k):
        return lambda: A(f"buffer_load_dwordx4 v[{YG+4*k}:{YG+4*k+3}], v7, {sWS}, 0 offen{(' offset:%d' % (1024*k)) if k else ''} sc1")
    if dbg == 5: A("s_mov_b32 s92, 31"); tst(31)
    selpoll(g, [(mky(k), [YG+4*k+3]) for k in range(4)], 9, 10, dbgbase=32 if dbg == 5 else None)
    tst(22)
    A(f"v_pk_add_f32 v[{YG}:{YG+1}], v[{YG}:{YG+1}], v[{YG+4}:{YG+5}]"); A(f"v_pk_add_f32 v[{YG+8}:{YG+9}], v[{YG+8}:{YG+9}], v[{YG+12}:{YG+13}]")
    A(f"v_pk_add_f32 v[{YG}:{YG+1}], v[{YG}:{YG+1}], v[{YG+8}:{YG+9}]")
    red16(YG, YG+1, 9)
    bf16r(g, YG, YG)
    A(f"v_add_f32 v{YG}, v{YG}, v{vXH}")
    bf16r(g, YG, YG)
    A(f"v_mov_b32 v9, v{YG}"); A(f"v_mov_b32 v10, v{YG}")
    A(f"v_mov_b32 v{T+5}, {sTAG}"); A(f"v_mov_b32 v{T+7}, {sTAG}")
    A("v_permlane32_swap_b32 v9, v10"); g.nop(1)
    A(f"v_lshrrev_b32 v{T+4}, 16, v9"); A(f"v_or_b32 v{T+4}, v{T+4}, v10"); g.nop(2)
    A(f"v_mov_b32_dpp v{T+6}, v{T+4} quad_perm:[1,0,3,2] row_mask:0xf bank_mask:0xf")
    A("s_mov_b64 exec, 0x55")
    lstore(f"buffer_store_dwordx4 v[{T+4}:{T+7}], v11, {sWS}, s46 offen")
    A("s_mov_b32 exec_lo, 0xff"); A("s_mov_b32 exec_hi, 0xff")
    A(f"ds_write_b32 v8, v{YG} offset:{L_HV}")
    A("s_mov_b64 exec, -1")
    tst(24)
    A("s_branch L_a_wait")
    g.lab("L_a_ln")
    g.c("wave 5: gather h, layernorm, write xln pairs")
    A(f"v_lshlrev_b32 v7, 4, v{vLANE}"); A(f"v_add_u32 v7, {HG:#x}, v7")
    for i in range(8): A(f"v_mov_b32 v{T+i}, {sTAG}")
    A("s_mov_b32 exec_lo, -1"); A("s_mov_b32 exec_hi, 0x00ffffff")
    def hg_loads():
        A(f"buffer_load_dwordx4 v[{T}:{T+3}], v7, {sWS}, 0 offen sc1")
        A(f"buffer_load_dwordx4 v[{T+4}:{T+7}], v7, {sWS}, 0 offen offset:896 sc1")
    poll(g, hg_loads, [T+1, T+3, T+5, T+7], 9, 10)
    A("s_mov_b64 exec, -1")
    tst(25)
    A("s_mov_b32 s44, -1"); A("s_mov_b32 s45, 0x00ffffff")
    PK = [T, T+2, T+4, T+6]
    layernorm_pk(g, PK, T+8, [7, 8, 9, 10, 11, 3], "s[44:45]")
    A("s_mov_b64 exec, s[44:45]")
    for p in range(4):
        A(f"ds_write_b16 v{XA[2*p]}, v{PK[p]} offset:{L_XP}")
        A(f"ds_write_b16_d16_hi v{XA[2*p+1]}, v{PK[p]} offset:{L_XP}")
    A("s_mov_b64 exec, -1")
    g.lab("L_a_wait")
    A(f"v_lshrrev_b32 v7, 3, v{vLANE}"); A("v_lshlrev_b32 v7, 2, v7"); A(f"s_lshl_b32 s37, {sWAVE}, 7"); A("v_add_u32 v7, s37, v7")
    for i in range(8): A(f"v_mov_b32 v{AC+i}, 0")
    A("s_waitcnt lgkmcnt(0)")
    A("s_barrier")
    tst(26)
    for jj in range(4): A(f"ds_read_b32 v{XPR+jj}, v7 offset:{L_XP + 32*jj}")
    A(f"v_lshlrev_b32 v10, 2, v{vLANE}"); A(f"s_lshl_b32 s37, {sWAVE}, 8"); A("v_add_u32 v11, s37, v10")
    A("s_waitcnt lgkmcnt(0)")
    for jj in range(4):
        for i in range(4):
            A(f"v_dot2c_f32_bf16 v{AC+2*i}, v{W1R+8*jj+i}, v{XPR+jj}")
            A(f"v_dot2c_f32_bf16 v{AC+2*i+1}, v{W1R+8*jj+4+i}, v{XPR+jj}")
    r = reduce_scatter(g, [AC+i for i in range(8)], [32, 16, 8])[0]
    A(f"ds_write_b32 v11, v{r} offset:{L_AP}")
    A(f"v_and_b32 v8, 7, v{vLANE}"); A("v_lshlrev_b32 v8, 4, v8"); A(f"v_lshrrev_b32 v9, 3, v{vLANE}"); A("v_lshlrev_b32 v9, 1, v9"); A("v_add_u32 v8, v8, v9")
    A(f"s_lshr_b32 s37, {sWAVE}, 2"); A("s_lshl_b32 s37, s37, 6"); A("v_mov_b32 v9, s37")
    A("s_waitcnt lgkmcnt(0)")
    A("s_barrier")
    tst(27)
    for w in range(8): A(f"ds_read_b32 v{AC+w}, v10 offset:{L_AP + 256*w}")
    A(f"v_mov_b32 v{T+2}, 0"); A(f"v_mov_b32 v{T+3}, {sTAG}")
    A(f"v_cmp_gt_u32 vcc, 224, v{vC}")
    A("s_waitcnt lgkmcnt(0)")
    for st in (4, 2, 1):
        for i in range(st): A(f"v_add_f32 v{AC+i}, v{AC+i}, v{AC+i+st}")
    bf16r(g, AC, AC)
    A(f"v_add_f32 v{AC}, v{AC}, v{vB1}")
    bf16r(g, AC, AC)
    A(f"v_max_f32 v{AC}, 0, v{AC}")
    A(f"v_mul_f32 v{AC}, v{AC}, v{AC}")
    A(f"v_cvt_pk_bf16_f32 v{AC}, v{AC}, v{AC}")
    A(f"ds_write_b16 v8, v{AC} offset:{L_AL}")
    A("s_waitcnt lgkmcnt(0)")
    for i in range(4): A(f"ds_read_b128 v[{APR+4*i}:{APR+4*i+3}], v9 offset:{L_AL + 16*i}")
    for i in range(8): A(f"v_mov_b32 v{AC+i}, 0")
    A("s_waitcnt lgkmcnt(0)")
    for i in range(16):
        A(f"v_dot2c_f32_bf16 v{AC+(i&3)}, v{W2R+2*i}, v{APR+i}")
        A(f"v_dot2c_f32_bf16 v{AC+4+(i&3)}, v{W2R+2*i+1}, v{APR+i}")
    A("s_and_saveexec_b64 s[50:51], vcc"); g.nop(2)
    A(f"v_add_f32 v{AC}, v{AC}, v{AC+1}"); A(f"v_add_f32 v{AC+2}, v{AC+2}, v{AC+3}"); A(f"v_add_f32 v{AC+4}, v{AC+4}, v{AC+5}"); A(f"v_add_f32 v{AC+6}, v{AC+6}, v{AC+7}")
    A(f"v_add_f32 v{T}, v{AC}, v{AC+2}"); A(f"v_add_f32 v{T+1}, v{AC+4}, v{AC+6}")
    A("s_cbranch_execz L_a_nost")
    lstore(f"buffer_store_dwordx4 v[{T}:{T+3}], v{vFA}, {sWS}, 0 offen")
    g.lab("L_a_nost")
    A("s_mov_b64 exec, -1")
    tst(28)
    A(f"s_cmp_lg_u32 {sWAVE}, 7"); A("s_cbranch_scc1 L_end")
    g.c("wave 7: final reduce of the 56 partials for 16 columns")
    FG = R0
    A(f"v_lshlrev_b32 v7, 4, v{vLANE}")
    A(f"s_mul_i32 s37, {sRI}, {FSTR}"); A(f"s_add_u32 s37, s37, {FP:#x}"); A("v_add_u32 v7, s37, v7")
    A("s_movk_i32 s43, 0x1000")
    A(f"v_and_b32 v8, 7, v{vLANE}"); A("v_lshlrev_b32 v8, 1, v8"); A(f"v_lshrrev_b32 v11, 5, v{vLANE}"); A("v_add_u32 v8, v8, v11")
    A(f"v_lshlrev_b32 v11, 2, v8"); A(f"ds_read_b32 v{T+8}, v11 offset:{L_HV}")
    A(f"v_lshlrev_b32 v{T+9}, 1, v8")
    srd(g, 16, 84, 896)
    def mkf(k):
        so = "0" if k < 4 else "s43"
        off = f" offset:{1024*(k&3)}" if (k & 3) else ""
        return lambda: A(f"buffer_load_dwordx4 v[{FG+4*k}:{FG+4*k+3}], v7, {sWS}, {so} offen{off} sc1")
    if dbg == 5: A("s_mov_b32 s92, 39"); tst(30)
    selpoll(g, [(mkf(k), [FG+4*k+3]) for k in range(7)], 9, 10, dbgbase=40 if dbg == 5 else None)
    tst(29)
    def pka(x, y): A(f"v_pk_add_f32 v[{x}:{x+1}], v[{x}:{x+1}], v[{y}:{y+1}]")
    pka(FG, FG+4); pka(FG+8, FG+12); pka(FG+16, FG+20)
    pka(FG, FG+8); pka(FG+16, FG+24)
    pka(FG, FG+16)
    red16(FG, FG+1, 9)
    bf16r(g, FG, FG)
    A(f"v_add_f32 v{FG}, v{FG}, v{vB2}")
    bf16r(g, FG, FG)
    A("s_waitcnt lgkmcnt(0)")
    A(f"v_add_f32 v{FG}, v{FG}, v{T+8}")
    A(f"v_cvt_pk_bf16_f32 v{FG}, v{FG}, v{FG}")
    A(f"s_lshl_b32 s37, {sRI}, 5")
    A("s_mov_b32 exec_lo, 0xff"); A("s_mov_b32 exec_hi, 0xff")
    A(f"buffer_store_short v{FG}, v{T+9}, {sT1}, s37 offen")
    A(f"s_cmp_lg_u32 {sRI}, 0"); A("s_cbranch_scc1 L_end")
    A(f"s_add_u32 s38, {sEP}, 1"); A("v_mov_b32 v8, s38"); A("v_mov_b32 v9, 0")
    A("s_mov_b64 exec, 1")
    A(f"buffer_store_dword v8, v9, {sWS}, 0 offen sc1")
    g.lab("L_end")
    if dbg == 4:
        A("s_mov_b64 exec, -1")
        stamp(9)
    if dbg and dbg != 4:
        A("s_mov_b64 exec, -1")
        stamp(9)
        if dbg not in (3, 5): A("s_mov_b64 exec, 0xffff")
        A(f"s_lshl_b32 s37, s2, 3"); A(f"s_add_u32 s37, s37, {sWAVE}"); A(f"s_lshl_b32 s37, s37, {8 if dbg in (3, 5) else 6}"); A(f"s_add_u32 s37, s37, {DBG:#x}")
        A(f"v_lshlrev_b32 v7, 2, v{vLANE}")
        A(f"buffer_store_dword v{vSTAMP}, v7, {sWS}, s37 offen")
    g.lab("L_exit")
    A("s_endpgm")
    if GNT:
        for i, l in enumerate(g.L):
            if l.rstrip().endswith("sc1"):
                if "buffer_store" in l and (GNT & 1): g.L[i] = l + " nt"
                if "buffer_load" in l and (GNT & 2): g.L[i] = l + " nt"
    hdr = open("cdna_kernels/" + NAME + ".s.ref").read().split("\n")
    head = []
    for l in hdr:
        if l.startswith("; @launch"): head.append(f"; @launch grid=(256,1,1) block=(512,1,1) lds={LDS_BYTES}")
        elif l.startswith(";"): head.append(l)
        else: break
    return "\n".join(head) + f"""
.amdgcn_target "amdgcn-amd-amdhsa--gfx950"
.text
.globl {NAME}_kernel
.p2align 8
.type {NAME}_kernel,@function
{NAME}_kernel:
""" + "\n".join(g.L) + f"""
.section .rodata,"a"
.p2align 6
.amdhsa_kernel {NAME}_kernel
  .amdhsa_next_free_vgpr 256
  .amdhsa_next_free_sgpr 102
  .amdhsa_accum_offset 256
  .amdhsa_group_segment_fixed_size 0
  .amdhsa_kernarg_size 104
  .amdhsa_user_sgpr_count 2
  .amdhsa_user_sgpr_kernarg_segment_ptr 1
  .amdhsa_system_sgpr_workgroup_id_x 1
  .amdhsa_float_denorm_mode_32 3
.end_amdhsa_kernel
"""
if __name__ == "__main__":
    out = sys.argv[1] if len(sys.argv) > 1 else "k/v3.s"
    kw = {}
    for a in sys.argv[2:]:
        k, v = a.split("="); kw[k] = int(v)
    open(out, "w").write(generate(**kw))
    open(out.replace(".s", "_dbg.s"), "w").write(generate(dbg=1, **kw))
    open(out.replace(".s", "_lt.s"), "w").write(generate(dbg=2, **kw))
    open(out.replace(".s", "_st.s"), "w").write(generate(dbg=3, **kw))
    open(out.replace(".s", "_hb.s"), "w").write(generate(dbg=4, **kw))
    open(out.replace(".s", "_tl.s"), "w").write(generate(dbg=5, **kw))
    print("wrote", out)
```

```python
import struct, sys, math
NAME = "sequential_preLN__mha_block_cached__dense_activation_squared_relu__decode"
def f2u(x): return struct.unpack("<I", struct.pack("<f", x))[0]
CSC = f2u(0.0625 * math.log2(math.e)); EPS = f2u(1e-5); INVN = f2u(1.0 / 448.0); NEG_BIG = f2u(-3.0e38)

EPOCH = 0x0
ST = 0x200000
OP = 0x10000
HG = 0x98000
FP = 0x9A000
XG = 0x9800
QP = 0xD0000
YSTR = 4096 + 128
FSTR = 7168 + 128
YP = 0x100000
CNT = 0x1E8000
DBG = 0x300000
L_Q = 0x0; L_TAG = 0x200; L_ST = 0x400; L_OB = 0x480; L_CL = 0x4C0; L_HV = 0x600; L_AL = 0x500; L_O = 0x800; L_HP = 0x2800
L_XP = 0x2A00
L_X = 0x3000
L_AP = 0x3800
L_YW = 0x4000; L_W1 = 0x8000; L_W2 = 0x16000
LDS_BYTES = 0x26000

DOC = '''; ---------------------------------------------------------------------------------------------
;  * the first 22 items per workgroup are assigned statically, the rest is claimed from a per-head counter
;  * hand-offs between workgroups use 16-B granules {payload, tag}; the tag is derived from an epoch word
;  * tail: every workgroup publishes (o partial, max, sum); 32 role workgroups (id % 8 == 0) combine the
; ---------------------------------------------------------------------------------------------
'''

class Gen:
    def __init__(self): self.L = []; self.uid = 0
    def A(self, s): self.L.append("    " + s)
    def lab(self, s): self.L.append(s + ":")
    def c(self, s): self.L.append("    ; " + s)
    def new(self, p): self.uid += 1; return f"L_{p}_{self.uid}"
    def nop(self, n):
        if n > 0: self.A(f"s_nop {n-1}")

sKS = "s[4:7]"; sVS = "s[8:11]"; sWS = "s[12:15]"; sT1 = "s[16:19]"; sT2 = "s[20:23]"
sWAVE = "s24"; sH = "s25"; sS = "s26"; sTAG = "s27"; sEP = "s28"; sBASE = "s29"; sBUD = "s30"
sLAM = "s31"; sZ = "s32"; sC = "s33"; sSTEP = "s34"; sROLE = "s35"; sRI = "s36"
sGO = "s70"; sI0 = "s71"; sLIM = "s74"; sDC = "s75"; sBASE0 = "s59"; sMK = {2: ("s60", "s61"), 3: ("s62", "s63")}; sMC = {2: ("s76", "s77"), 3: ("s78", "s79")}
sNXT = "s52"; sV2 = "s53"; sV3 = "s54"; sLAM0 = "s55"; sROT = "s56"
vLANE = 1; vOFF = 2; vM = 4; vMC = 5; vL = 6
Q = 16; ACC = 32; RING = 96; TMP = 224
vXH = 64; vB2 = 65; vB1 = 66; vSTAMP = 251
sLOC = "s57"
R0 = RING
D = 4

def srd(g, dst, lo, nbytes):
    g.A(f"s_mov_b32 s{dst}, s{lo}"); g.A(f"s_mov_b32 s{dst+1}, s{lo+1}")
    g.A(f"s_mov_b32 s{dst+2}, {nbytes:#x}"); g.A(f"s_mov_b32 s{dst+3}, 0x20000")
def bf16r(g, dst, src, tmp=None):
    tmp = dst if tmp is None else tmp
    g.A(f"v_cvt_pk_bf16_f32 v{tmp}, v{src}, v{src}")
    g.A(f"v_and_b32 v{dst}, 0xffff0000, v{tmp}")
def dpp(g, op, dst, src0, src1, ctrl, rm=0xf, bm=0xf):
    g.A(f"{op}_dpp v{dst}, v{src0}, v{src1} {ctrl} row_mask:{rm:#x} bank_mask:{bm:#x}")
def wave_sum2(g, a, b, sa, sb):
    g.nop(2)
    for ctrl in ("row_ror:8", "row_ror:4", "row_ror:2", "row_ror:1"):
        dpp(g, "v_add_f32", a, a, a, ctrl); dpp(g, "v_add_f32", b, b, b, ctrl); g.nop(1)
    dpp(g, "v_add_f32", a, a, a, "row_bcast:15", rm=0xa); dpp(g, "v_add_f32", b, b, b, "row_bcast:15", rm=0xa); g.nop(1)
    dpp(g, "v_add_f32", a, a, a, "row_bcast:31", rm=0xc); dpp(g, "v_add_f32", b, b, b, "row_bcast:31", rm=0xc); g.nop(1)
    g.A(f"v_readlane_b32 {sa}, v{a}, 63"); g.A(f"v_readlane_b32 {sb}, v{b}, 63")
    g.nop(2)
def layernorm(g, vals, t, masked=None):
    c, s1, s2, y, mean, rs = t[:6]
    g.A(f"v_readfirstlane_b32 s37, v{vals[0]}")
    g.A(f"v_mov_b32 v{s1}, 0"); g.A(f"v_mov_b32 v{s2}, 0")
    if masked: g.A(f"s_mov_b64 exec, {masked}")
    for v in vals:
        g.A(f"v_subrev_f32 v{y}, s37, v{v}")
        g.A(f"v_add_f32 v{s1}, v{s1}, v{y}")
        g.A(f"v_fmac_f32 v{s2}, v{y}, v{y}")
    if masked: g.A("s_mov_b64 exec, -1")
    wave_sum2(g, s1, s2, "s38", "s39")
    g.A(f"s_mov_b32 s40, {INVN:#x}")
    g.A(f"v_mul_f32 v{y}, s38, v{rs}") if False else None
    g.A(f"v_mov_b32 v{y}, s38"); g.A(f"v_mov_b32 v{s2}, s39")
    g.A(f"v_mul_f32 v{y}, s40, v{y}"); g.A(f"v_mul_f32 v{s2}, s40, v{s2}")
    g.A(f"v_add_f32 v{mean}, s37, v{y}")
    g.A(f"v_fma_f32 v{s2}, -v{y}, v{y}, v{s2}")
    g.A(f"v_max_f32 v{s2}, 0, v{s2}")
    bf16r(g, mean, mean)
    bf16r(g, s2, s2)
    g.A(f"v_add_f32 v{s2}, {EPS:#x}, v{s2}")
    bf16r(g, s2, s2)
    g.A(f"v_sqrt_f32 v{s2}, v{s2}")
    for v in vals: g.A(f"v_sub_f32 v{v}, v{v}, v{mean}")
    bf16r(g, s2, s2)
    g.A(f"v_rcp_f32 v{rs}, v{s2}")
    for v in vals: bf16r(g, v, v)
    for v in vals:
        g.A(f"v_mul_f32 v{y}, v{v}, v{rs}")
        g.A(f"v_fma_f32 v{v}, -v{y}, v{s2}, v{v}")
        g.A(f"v_fma_f32 v{v}, v{v}, v{rs}, v{y}")
    for v in vals: bf16r(g, v, v)
def layernorm_pk(g, pk, w, t, masked):
    c, s1, s2, y, mean, rs = t[:6]
    for i in range(4):
        g.A(f"v_lshlrev_b32 v{w+2*i}, 16, v{pk[i]}"); g.A(f"v_and_b32 v{w+2*i+1}, 0xffff0000, v{pk[i]}")
    g.A(f"v_readfirstlane_b32 s37, v{w}")
    g.A(f"v_mov_b32 v{s1}, 0"); g.A(f"v_mov_b32 v{s2}, 0")
    g.A(f"s_mov_b64 exec, {masked}")
    for i in range(8):
        g.A(f"v_subrev_f32 v{y}, s37, v{w+i}")
        g.A(f"v_add_f32 v{s1}, v{s1}, v{y}")
        g.A(f"v_fmac_f32 v{s2}, v{y}, v{y}")
    g.A("s_mov_b64 exec, -1")
    wave_sum2(g, s1, s2, "s38", "s39")
    g.A(f"s_mov_b32 s40, {INVN:#x}")
    g.A(f"v_mov_b32 v{y}, s38"); g.A(f"v_mov_b32 v{s2}, s39")
    g.A(f"v_mul_f32 v{y}, s40, v{y}"); g.A(f"v_mul_f32 v{s2}, s40, v{s2}")
    g.A(f"v_add_f32 v{mean}, s37, v{y}")
    g.A(f"v_fma_f32 v{s2}, -v{y}, v{y}, v{s2}")
    g.A(f"v_cvt_pk_bf16_f32 v{mean}, v{mean}, v{mean}")
    g.A(f"v_max_f32 v{s2}, 0, v{s2}")
    g.A(f"v_and_b32 v{mean}, 0xffff0000, v{mean}")
    bf16r(g, s2, s2)
    g.A(f"v_add_f32 v{s2}, {EPS:#x}, v{s2}")
    for i in range(0, 4): g.A(f"v_sub_f32 v{w+i}, v{w+i}, v{mean}")
    bf16r(g, s2, s2)
    g.A(f"v_sqrt_f32 v{s2}, v{s2}")
    for i in range(4, 8): g.A(f"v_sub_f32 v{w+i}, v{w+i}, v{mean}")
    bf16r(g, s2, s2)
    g.A(f"v_rcp_f32 v{rs}, v{s2}")
    for i in range(4): g.A(f"v_cvt_pk_bf16_f32 v{pk[i]}, v{w+2*i}, v{w+2*i+1}")
    for i in range(4):
        g.A(f"v_lshlrev_b32 v{w+2*i}, 16, v{pk[i]}"); g.A(f"v_and_b32 v{w+2*i+1}, 0xffff0000, v{pk[i]}")
    for i in range(8): g.A(f"v_mul_f32 v{w+8+i}, v{w+i}, v{rs}")
    for i in range(8): g.A(f"v_fma_f32 v{w+i}, -v{w+8+i}, v{s2}, v{w+i}")
    for i in range(8): g.A(f"v_fma_f32 v{w+i}, v{w+i}, v{rs}, v{w+8+i}")
    for i in range(4): g.A(f"v_cvt_pk_bf16_f32 v{pk[i]}, v{w+2*i}, v{w+2*i+1}")
def reduce_scatter(g, regs, stages, pre=3):
    regs = list(regs)
    g.nop(pre)
    for st in stages:
        h = len(regs) // 2
        lo, hi = regs[:h], regs[h:]
        if st in (32, 16):
            for a, b in zip(lo, hi): g.A(f"v_permlane{st}_swap_b32 v{a}, v{b}")
            g.nop(1 if h > 1 else 2)
            if h >= 2 and lo[0] % 2 == 0 and hi[0] % 2 == 0 and lo == list(range(lo[0], lo[0] + h)) and hi == list(range(hi[0], hi[0] + h)):
                for j in range(0, h, 2): g.A(f"v_pk_add_f32 v[{lo[j]}:{lo[j]+1}], v[{lo[j]}:{lo[j]+1}], v[{hi[j]}:{hi[j]+1}]")
                g.nop(2)
            else:
                for a, b in zip(lo, hi): g.A(f"v_add_f32 v{a}, v{a}, v{b}")
                g.nop(max(0, 2 - (h - 1 - h // 2)))
        elif st == 8:
            for a, b in zip(lo, hi): dpp(g, "v_add_f32", a, a, a, "row_ror:8", bm=0x3)
            for a, b in zip(lo, hi): dpp(g, "v_add_f32", a, b, b, "row_ror:8", bm=0xc)
            g.nop(2)
        elif st == 4:
            for a, b in zip(lo, hi): dpp(g, "v_add_f32", a, a, a, "row_shl:4", bm=0x5)
            for a, b in zip(lo, hi): dpp(g, "v_add_f32", a, b, b, "row_shr:4", bm=0xa)
            g.nop(2)
        regs = lo
    return regs
def allreduce_low(g, r, bits, op="v_add_f32"):
    for b in bits:
        ctrl = {0: "quad_perm:[1,0,3,2]", 1: "quad_perm:[2,3,0,1]", 2: "row_half_mirror"}[b]
        dpp(g, op, r, r, r, ctrl); g.nop(2)
def allreduce_high(g, regs, tmps, op="v_add_f32"):
    if not isinstance(regs, list): regs = [regs]; tmps = [tmps]
    n = len(regs)
    for r in regs: dpp(g, op, r, r, r, "row_ror:8")
    for st in (16, 32):
        for r, t in zip(regs, tmps): g.A(f"v_mov_b32 v{t}, v{r}")
        g.nop(max(0, 3 - n) if n > 1 else 2)
        for r, t in zip(regs, tmps): g.A(f"v_permlane{st}_swap_b32 v{r}, v{t}")
        g.nop(1)
        for r, t in zip(regs, tmps): g.A(f"{op} v{r}, v{r}, v{t}")
    g.nop(2)
def poll(g, emit_loads, tagregs, t0, t1, sleep=0):
    lp = g.new("poll"); ok = g.new("ok")
    g.lab(lp)
    emit_loads()
    g.A("s_waitcnt vmcnt(0)")
    g.A(f"v_xor_b32 v{t0}, {sTAG}, v{tagregs[0]}")
    for t in tagregs[1:]:
        g.A(f"v_xor_b32 v{t1}, {sTAG}, v{t}")
        g.A(f"v_or_b32 v{t0}, v{t0}, v{t1}")
    g.A(f"v_cmp_ne_u32 vcc, 0, v{t0}")
    g.A(f"s_cbranch_vccz {ok}")
    if sleep: g.A(f"s_sleep {sleep}")
    g.A(f"s_sub_u32 {sBUD}, {sBUD}, 1")
    g.A(f"s_cbranch_scc0 {lp}")
    g.A(f"s_mov_b32 {sBUD}, 0")
    g.lab(ok)
def selpoll(g, groups, t0, t1, sflags="s49", first_issued=False, sleep=0, dbgbase=None):
    n = len(groups)
    lp = g.new("sp"); ok = g.new("spok"); chk = g.new("spchk")
    g.A(f"s_mov_b32 {sflags}, {(1 << n) - 1}")
    if first_issued: g.A(f"s_branch {chk}")
    g.lab(lp)
    for i, (ld, tags) in enumerate(groups):
        sk = g.new("sk")
        g.A(f"s_bitcmp1_b32 {sflags}, {i}"); g.A(f"s_cbranch_scc0 {sk}")
        ld()
        g.lab(sk)
    g.lab(chk)
    g.A("s_waitcnt vmcnt(0)")
    if dbgbase is not None:
        g.A("s_memrealtime s[90:91]"); g.A("s_waitcnt lgkmcnt(0)")
        g.A("s_add_u32 s92, s92, 1"); g.A(f"s_min_u32 m0, s92, {dbgbase+7}"); g.A("s_nop 0")
        g.A(f"v_writelane_b32 v{vSTAMP}, s90, m0")
    for i, (ld, tags) in enumerate(groups):
        sk = g.new("sc")
        g.A(f"s_bitcmp1_b32 {sflags}, {i}"); g.A(f"s_cbranch_scc0 {sk}")
        if len(tags) == 1:
            g.A(f"v_cmp_ne_u32 vcc, {sTAG}, v{tags[0]}")
        else:
            g.A(f"v_xor_b32 v{t0}, {sTAG}, v{tags[0]}")
            for t in tags[1:]:
                g.A(f"v_xor_b32 v{t1}, {sTAG}, v{t}"); g.A(f"v_or_b32 v{t0}, v{t0}, v{t1}")
            g.A(f"v_cmp_ne_u32 vcc, 0, v{t0}")
        g.A(f"s_cbranch_vccnz {sk}")
        g.A(f"s_bitset0_b32 {sflags}, {i}")
        g.lab(sk)
    g.A(f"s_cmp_eq_u32 {sflags}, 0"); g.A(f"s_cbranch_scc1 {ok}")
    if sleep: g.A(f"s_sleep {sleep}")
    g.A(f"s_sub_u32 {sBUD}, {sBUD}, 1")
    g.A(f"s_cbranch_scc0 {lp}")
    g.A(f"s_mov_b32 {sBUD}, 0")
    g.lab(ok)
def pipepoll(g, n, emit_load, final, setA, setB, tagoffs, t0, scratch, stagger, first_in_final=False, sflags="s49"):
    done = g.new("ppd"); lp = g.new("ppl")
    def check(base, copy):
        for i in range(n):
            sk = g.new("pc")
            g.A(f"s_bitcmp1_b32 {sflags}, {i}"); g.A(f"s_cbranch_scc0 {sk}")
            r = base + 4*i
            if len(tagoffs) == 1:
                g.A(f"v_cmp_ne_u32 vcc, {sTAG}, v{r+tagoffs[0]}")
            else:
                g.A(f"v_xor_b32 v{t0}, {sTAG}, v{r+tagoffs[0]}"); g.A(f"v_xor_b32 v{t0+1}, {sTAG}, v{r+tagoffs[1]}")
                g.A(f"v_or_b32 v{t0}, v{t0}, v{t0+1}"); g.A(f"v_cmp_ne_u32 vcc, 0, v{t0}")
            g.A(f"s_cbranch_vccnz {sk}")
            g.A(f"s_bitset0_b32 {sflags}, {i}")
            if copy:
                for e in range(4):
                    if e not in tagoffs: g.A(f"v_mov_b32 v{final+4*i+e}, v{r+e}")
            g.lab(sk)
    def issue(base):
        for i in range(n):
            dm = g.new("pi"); nx = g.new("pn")
            g.A(f"s_bitcmp1_b32 {sflags}, {i}"); g.A(f"s_cbranch_scc0 {dm}")
            emit_load(i, base + 4*i); g.A(f"s_branch {nx}")
            g.lab(dm)
            g.A("s_mov_b64 exec, 1"); g.A(f"buffer_load_dword v{scratch}, v{scratch+1}, {sWS}, 0 offen"); g.A("s_mov_b64 exec, -1")
            g.lab(nx)
    g.A(f"s_mov_b32 {sflags}, {(1 << n) - 1}")
    g.A(f"v_mov_b32 v{scratch+1}, 0x7ff00000")
    if first_in_final:
        g.A("s_waitcnt vmcnt(0)")
        check(final, False)
        g.A(f"s_cmp_eq_u32 {sflags}, 0"); g.A(f"s_cbranch_scc1 {done}")
    issue(setA)
    if stagger: g.A(f"s_sleep {stagger}")
    g.lab(lp)
    issue(setB)
    g.A(f"s_waitcnt vmcnt({n})")
    check(setA, True)
    g.A(f"s_cmp_eq_u32 {sflags}, 0"); g.A(f"s_cbranch_scc1 {done}")
    issue(setA)
    g.A(f"s_waitcnt vmcnt({n})")
    check(setB, True)
    g.A(f"s_cmp_eq_u32 {sflags}, 0"); g.A(f"s_cbranch_scc1 {done}")
    g.A(f"s_sub_u32 {sBUD}, {sBUD}, 1")
    g.A(f"s_cbranch_scc0 {lp}")
    g.A(f"s_mov_b32 {sBUD}, 0")
    g.lab(done)
def perm_pair(g, a, b, tmp):
    g.A(f"v_perm_b32 v{tmp}, v{b}, v{a}, s41")
    g.A(f"v_perm_b32 v{b}, v{b}, v{a}, s42")
    g.A(f"v_mov_b32 v{a}, v{tmp}")

def generate(dbg=False, WPM=0, LP=3, SK=0, DD=1, B0=1, TLBW=0, X5=1, ADF=0, HALF=0, RWX=16, ROT=72, BAR=1, H1SLEEP=0, PACE=4, NS=21, COMP=14, QPRE=3, PRE=4, QD=0, H1N=14, CPF=16, CPFN=3, SD=0, NOCOMP=0, FAKE=0, LOOK=1, CSTR=4352, AFL=2, GNT=0, TOUCH=0, NOLOC=0, TPF=0, PT=3, PTD=0, PP=3, PPS1=5, PPS2=7):
    g = Gen(); A = g.A
    HF = 512 - HALF
    NIT = HF + 2*HALF
    def stepstamp():
        if dbg == 3:
            A("s_memrealtime s[90:91]"); A("s_waitcnt lgkmcnt(0)")
            A("s_add_u32 s92, s92, 1"); A("s_min_u32 m0, s92, 63"); A("s_nop 0")
            A(f"v_writelane_b32 v{vSTAMP}, s90, m0")
    def hstamp(slot, cond_id, wave=0):
        if dbg == 4:
            l = g.new("hs")
            A(f"s_cmp_lg_u32 s2, {cond_id}"); A(f"s_cbranch_scc1 {l}")
            A(f"s_cmp_lg_u32 {sWAVE}, {wave}"); A(f"s_cbranch_scc1 {l}")
            A("s_memrealtime s[90:91]"); A("s_waitcnt lgkmcnt(0)")
            A("s_mov_b32 s96, s86"); A("s_mov_b32 s97, s87"); A("s_mov_b32 s98, 256"); A("s_mov_b32 s99, 0x20000")
            A(f"v_mov_b32 v252, s90"); A(f"v_mov_b32 v253, {4*slot}")
            A("s_mov_b64 s[92:93], exec"); A("s_mov_b64 exec, 1")
            A("buffer_store_dword v252, v253, s[96:99], 0 offen")
            A("s_mov_b64 exec, s[92:93]")
            g.lab(l)
    def tst(i):
        if dbg == 5:
            A("s_memrealtime s[90:91]"); A("s_waitcnt lgkmcnt(0)")
            A(f"v_writelane_b32 v{vSTAMP}, s90, {i}")
    def code_pf(wave, lab_from, lab_to, n, vd):
        l = g.new("cpf"); lp = g.new("cpc")
        A(f"s_cmp_lg_u32 {sWAVE}, {wave}"); A(f"s_cbranch_scc1 {l}")
        A("s_getpc_b64 s[96:97]")
        g.lab(lp)
        A(f"s_add_u32 s96, s96, {lab_from}-{lp}"); A("s_addc_u32 s97, s97, 0")
        A(f"v_lshlrev_b32 v3, 7, v{vLANE}")
        A(f"s_mov_b32 s98, {lab_to}-{lab_from}")
        le = g.new("cpe")
        for i in range(n):
            A("v_cmp_gt_u32 vcc, s98, v3"); A("s_and_b64 exec, exec, vcc")
            A(f"s_cbranch_execz {le}")
            A(f"global_load_dword v{vd}, v3, s[96:97]")
            A("v_add_u32 v3, 0x2000, v3")
        g.lab(le)
        A("s_mov_b64 exec, -1")
        g.lab(l)
    def stamp(i):
        if dbg == 5:
            if i in (3, 9): tst(i)
            return
        if dbg == 4:
            if i == 2:
                hstamp(2, 0); hstamp(3, 255)
            if i == 3:
                hstamp(4, 0); hstamp(5, 77); hstamp(6, 130); hstamp(7, 255)
            if i == 9:
                hstamp(8, 3); hstamp(9, 0); hstamp(10, 19)
            return
        if dbg == 3 and i in (3, 9):
            A("s_memrealtime s[90:91]"); A("s_waitcnt lgkmcnt(0)")
            A(f"v_writelane_b32 v{vSTAMP}, s90, {i}")
        if dbg == 1 or (dbg == 2 and i in (2, 3, 9, 4, 5)) :
            A("s_memrealtime s[90:91]"); A("s_waitcnt lgkmcnt(0)")
            A(f"v_writelane_b32 v{vSTAMP}, s90, {i}")
    A("s_cmp_ge_u32 s2, 256")
    A("s_cbranch_scc1 L_exit")
    if dbg: A("s_memrealtime s[94:95]")
    A("s_load_dwordx16 s[64:79], s[0:1], 0")
    A("s_load_dwordx8 s[80:87], s[0:1], 64")
    A("s_load_dwordx2 s[88:89], s[0:1], 96")
    A(f"v_and_b32 v{vLANE}, 63, v0")
    if CPF:
        g.c("code prefetch into L2 (wave 7 of the first CPF workgroups)")
        A(f"s_cmp_ge_u32 s2, {CPF}"); A("s_cbranch_scc1 L_nocpf")
        A("v_cmp_lt_u32 vcc, 447, v0"); A("s_cbranch_vccz L_nocpf")
        A("s_getpc_b64 s[96:97]")
        g.lab("L_pc")
        A(f"v_lshlrev_b32 v3, 7, v{vLANE}")
        A("s_mov_b32 s98, L_exit-L_pc")
        for i in range(CPFN):
            A("v_cmp_gt_u32 vcc, s98, v3"); A("s_and_b64 exec, exec, vcc")
            A(f"s_cbranch_execz L_cpfend")
            A(f"global_load_dword v{252+(i&3)}, v3, s[96:97]")
            A("v_add_u32 v3, 0x2000, v3")
        g.lab("L_cpfend")
        A("s_mov_b64 exec, -1")
        g.lab("L_nocpf")
    A("v_lshrrev_b32 v3, 6, v0")
    A(f"v_lshrrev_b32 v7, 3, v{vLANE}")
    A(f"v_readfirstlane_b32 {sWAVE}, v3")
    A("v_lshlrev_b32 v7, 9, v7")
    A(f"v_and_b32 v{vOFF}, 7, v{vLANE}")
    A(f"v_lshlrev_b32 v{vOFF}, 4, v{vOFF}")
    A(f"v_add_u32 v{vOFF}, v{vOFF}, v7")
    A(f"s_lshr_b32 {sH}, s2, 4")
    A(f"s_and_b32 {sS}, s2, 15")
    A(f"s_lshl_b32 {sBASE}, {sH}, 24"); A(f"s_mov_b32 {sBASE0}, {sBASE}")
    A(f"s_mul_i32 {sROT}, {sH}, {ROT}")
    if WPM == 0: A(f"s_mov_b32 {sLAM0}, {sWAVE}")
    else:
        if WPM == 1: A(f"s_add_u32 {sLAM0}, {sWAVE}, {sS}")
        if WPM == 2: A(f"s_add_u32 {sLAM0}, {sWAVE}, {sH}")
        if WPM == 3: A(f"s_add_u32 {sLAM0}, {sWAVE}, {sH}"); A(f"s_add_u32 {sLAM0}, {sLAM0}, {sS}")
        if WPM == 4: A(f"s_lshr_b32 {sLAM0}, s2, 3"); A(f"s_xor_b32 {sLAM0}, {sLAM0}, {sWAVE}")
        if WPM == 5: A(f"s_lshl_b32 {sLAM0}, {sS}, 1"); A(f"s_add_u32 {sLAM0}, {sLAM0}, {sWAVE}")
        A(f"s_and_b32 {sLAM0}, {sLAM0}, 7")
    A(f"s_mov_b32 {sZ}, 0")
    A(f"s_mov_b32 {sC}, {CSC:#x}")
    A(f"s_mov_b32 {sBUD}, 0x40000")
    A("s_waitcnt lgkmcnt(0)")
    if dbg and dbg != 4: A(f"v_mov_b32 v{vSTAMP}, 0"); A(f"v_writelane_b32 v{vSTAMP}, s94, 0")
    srd(g, 4, 66, 0x10000000); srd(g, 8, 68, 0x10000000); srd(g, 12, 88, 0x40000000)
    hstamp(0, 0); hstamp(1, 255)
    def phys_tile(sitem):
        if LP:
            A(f"s_and_b32 s46, {sitem}, {(1 << LP) - 1}"); A(f"s_lshl_b32 s46, s46, {9 - LP}")
            A(f"s_lshr_b32 s47, {sitem}, {LP}"); A("s_add_u32 s46, s46, s47")
            A(f"s_add_u32 s46, s46, {sROT}")
        else:
            A(f"s_add_u32 s46, {sitem}, {sROT}")
        A("s_and_b32 s46, s46, 511"); A("s_lshl_b32 s46, s46, 3"); A(f"s_add_u32 s46, s46, {sLAM0}"); A("s_lshl_b32 s46, s46, 12")
        A(f"s_add_u32 s46, s46, {sBASE}")
    def tile_addr(vdst):
        A(f"s_mul_i32 s49, {sZ}, {SK}"); A(f"s_add_u32 s49, s49, {sS}"); A("s_and_b32 s49, s49, 15")
        A(f"s_lshl_b32 s47, {sZ}, 4"); A("s_add_u32 s49, s49, s47")
        phys_tile("s49")
        A(f"v_add_u32 v{vdst}, s46, v{vOFF}")
        A(f"s_add_u32 {sZ}, {sZ}, 1")
    def tile_addr_dyn(vdst, smk):
        phys_tile(sNXT)
        A(f"s_cmp_lt_u32 {sNXT}, {NIT}")
        A(f"s_cselect_b32 s46, s46, 0x80000000")
        A(f"s_cselect_b32 {smk[0]}, -1, 1"); A(f"s_cselect_b32 {smk[1]}, -1, 0")
        A(f"v_add_u32 v{vdst}, s46, v{vOFF}")
    def loads(b, srdn, va):
        for j in range(4):
            off = f" offset:{j*128}" if j else ""
            A(f"buffer_load_dwordx4 v[{b+4*j}:{b+4*j+3}], v{va}, {srdn}, 0 offen{off} nt")
    VA = [12, 13, 14, 15]
    KB = [RING + 32*k for k in range(D)]; VB = [RING + 32*k + 16 for k in range(D)]
    if X5:
        KB.append(64); VB.append(80); VA.append(3)
    DP = D + (1 if X5 else 0)
    A(f"s_cmp_lg_u32 {sWAVE}, 0")
    A("s_cbranch_scc1 L_others")
    g.c("wave0: x, epoch, wq partial loads (64 cols x 112 rows)")
    A("s_setprio 3")
    srd(g, 16, 64, 896); srd(g, 20, 70, 448*8192)
    A("v_mov_b32 v8, 0")
    A(f"v_lshlrev_b32 v9, 1, v{vLANE}")
    XR = [88+k for k in range(7)]
    for k in range(7): A(f"buffer_load_ushort v{XR[k]}, v9, {sT1}, 0 offen offset:{128*k} nt")
    A(f"buffer_load_dword v95, v8, {sWS}, 0 offen sc1")
    A(f"s_mul_i32 s44, {sH}, {CSTR}"); A(f"s_add_u32 s44, s44, {CNT:#x}")
    A(f"s_cmp_lg_u32 {sS}, 0"); A("s_cbranch_scc1 L_nozero")
    A("s_mov_b64 exec, 1")
    A(f"buffer_store_dword v8, v8, {sWS}, s44 offen sc1")
    A("s_mov_b64 exec, -1")
    g.lab("L_nozero")
    A("s_and_b32 s43, s2, 3")
    A("s_lshr_b32 s44, s2, 2"); A("s_lshl_b32 s44, s44, 7")
    A(f"s_mul_i32 s45, s43, {112*8192}"); A("s_add_u32 s44, s44, s45")
    A(f"v_lshrrev_b32 v10, 3, v{vLANE}"); A("v_lshlrev_b32 v10, 13, v10")
    A(f"v_and_b32 v11, 7, v{vLANE}"); A("v_lshlrev_b32 v11, 4, v11"); A("v_add3_u32 v10, v10, v11, s44")
    WQ = 32
    for j in range(14):
        A(f"s_mov_b32 s45, {j*8*8192}")
        A(f"buffer_load_dwordx4 v[{WQ+4*j}:{WQ+4*j+3}], v10, {sT2}, s45 offen nt")
    if TOUCH & 2:
        A(f"v_lshlrev_b32 v11, 4, v{vLANE}")
        A(f"s_lshl_b32 s44, {sH}, 13"); A(f"s_add_u32 s44, s44, {QP:#x}")
        for kq in range(8):
            A(f"buffer_load_dwordx4 v[{TMP+20}:{TMP+23}], v11, {sWS}, s44 offen sc1")
            A("s_add_u32 s44, s44, 1024")
    if B0: A("s_barrier")
    g.c("wave0: layernorm(x), q partial")
    A("s_waitcnt vmcnt(15)")
    stamp(13)
    for k in range(7): A(f"v_lshlrev_b32 v{XR[k]}, 16, v{XR[k]}")
    layernorm(g, XR, [TMP, TMP+1, TMP+2, TMP+3, TMP+4, TMP+5])
    A(f"v_lshlrev_b32 v9, 2, v{vLANE}")
    for k in range(7): A(f"ds_write_b32 v9, v{XR[k]} offset:{L_X + 256*k}")
    A("s_mul_i32 s45, s43, 448")
    A(f"v_lshrrev_b32 v9, 3, v{vLANE}"); A("v_lshlrev_b32 v9, 2, v9"); A("v_add_u32 v9, s45, v9")
    A("s_waitcnt lgkmcnt(0)")
    XJ = [TMP + j for j in range(14)]
    for j in range(14): A(f"ds_read_b32 v{XJ[j]}, v9 offset:{L_X + 32*j}")
    A(f"s_waitcnt vmcnt({14 + (8 if TOUCH & 2 else 0)})")
    A(f"v_readfirstlane_b32 {sEP}, v95")
    for i in range(8): A(f"v_mov_b32 v{Q+i}, 0")
    A(f"s_mul_i32 {sTAG}, {sEP}, 0x9E3779B1")
    A(f"s_add_u32 {sTAG}, {sTAG}, 0x85EBCA6B")
    A("s_waitcnt vmcnt(0) lgkmcnt(0)")
    stamp(14)
    for j in range(14):
        xl = TMP + 14 + (j & 1)
        A(f"v_lshrrev_b32 v{xl}, 16, v{XJ[j]}")
        for i in range(4):
            A(f"v_dot2c_f32_bf16 v{Q+2*i}, v{WQ+4*j+i}, v{xl}")
            A(f"v_dot2c_f32_bf16 v{Q+2*i+1}, v{WQ+4*j+i}, v{XJ[j]}")
    r = reduce_scatter(g, [Q+i for i in range(8)], [32, 16, 8])[0]
    A(f"v_mov_b32_dpp v{r+2}, v{r} row_ror:8 row_mask:0xf bank_mask:0xf")
    A(f"v_mov_b32 v{r+1}, {sTAG}"); A(f"v_mov_b32 v{r+3}, {sTAG}")
    A(f"v_and_b32 v9, 7, v{vLANE}"); A("v_lshlrev_b32 v9, 6, v9")
    A(f"v_lshrrev_b32 v11, 3, v{vLANE}"); A("v_lshlrev_b32 v11, 3, v11"); A("v_add_u32 v9, v9, v11")
    A(f"s_lshl_b32 s44, {sH}, 13"); A("s_lshl_b32 s45, s43, 11"); A("s_add_u32 s44, s44, s45")
    A(f"s_lshr_b32 s45, {sS}, 2"); A("s_lshl_b32 s45, s45, 9"); A("s_add_u32 s44, s44, s45"); A(f"s_add_u32 s44, s44, {QP:#x}")
    A("s_mov_b32 exec_lo, 0x00ff00ff"); A("s_mov_b32 exec_hi, 0x00ff00ff")
    A(f"buffer_store_dwordx4 v[{r}:{r+3}], v9, {sWS}, s44 offen sc1")
    A("s_mov_b64 exec, -1")
    stamp(1)
    g.c("wave0: gather q partials of own head")
    A(f"v_lshlrev_b32 v9, 4, v{vLANE}")
    A(f"s_lshl_b32 s44, {sH}, 13"); A(f"s_add_u32 s44, s44, {QP:#x}")
    A("v_add_u32 v9, s44, v9")
    A(f"v_lshlrev_b32 v11, 4, v{vLANE}")
    for i in range(4): A(f"v_mov_b32 v{TMP+16+i}, 0")
    A(f"ds_write_b128 v11, v[{TMP+16}:{TMP+19}] offset:{L_XP}")
    for k in range(QPRE):
        tile_addr(VA[k]); loads(KB[k], sKS, VA[k]); loads(VB[k], sVS, VA[k])
    if QD: A(f"s_sleep {QD}")
    QG = 32
    def q_loads():
        for kq in range(4):
            A(f"s_movk_i32 s45, {kq*2048}")
            for i in range(2):
                off = f" offset:{i*1024}" if i else ""
                A(f"buffer_load_dwordx4 v[{QG+8*kq+4*i}:{QG+8*kq+4*i+3}], v9, {sWS}, s45 offen{off} sc1")
    qtags = [QG+4*m+1 for m in range(8)] + [QG+4*m+3 for m in range(8)]
    q_loads()
    A("s_barrier")
    stamp(12)
    A("s_waitcnt vmcnt(0)")
    A(f"v_xor_b32 v{TMP+5}, {sTAG}, v{qtags[0]}")
    for t in qtags[1:]:
        A(f"v_xor_b32 v{TMP+6}, {sTAG}, v{t}"); A(f"v_or_b32 v{TMP+5}, v{TMP+5}, v{TMP+6}")
    A(f"v_cmp_ne_u32 vcc, 0, v{TMP+5}")
    A("s_cbranch_vccz L_qok")
    A(f"s_sub_u32 {sBUD}, {sBUD}, 1")
    poll(g, q_loads, qtags, TMP+5, TMP+6)
    g.lab("L_qok")
    stamp(10)
    if dbg == 1: A(f"v_writelane_b32 v{vSTAMP}, {sBUD}, 11")
    for i in range(2):
        for e in (0, 2):
            A(f"v_add_f32 v{QG+4*i+e}, v{QG+4*i+e}, v{QG+8+4*i+e}")
            A(f"v_add_f32 v{QG+16+4*i+e}, v{QG+16+4*i+e}, v{QG+24+4*i+e}")
            A(f"v_add_f32 v{QG+4*i+e}, v{QG+4*i+e}, v{QG+16+4*i+e}")
        A(f"v_cvt_pk_bf16_f32 v{TMP+8+i}, v{QG+4*i}, v{QG+4*i+2}")
    A(f"v_lshlrev_b32 v9, 2, v{vLANE}")
    A(f"ds_write_b32 v9, v{TMP+8} offset:{L_Q}")
    A(f"ds_write_b32 v9, v{TMP+9} offset:{L_Q+256}")
    A(f"v_mov_b32 v{TMP+12}, {sTAG}"); A(f"v_mov_b32 v{TMP+13}, {sEP}"); A(f"v_mov_b32 v{TMP+7}, 0")
    A(f"ds_write_b64 v{TMP+7}, v[{TMP+12}:{TMP+13}] offset:{L_TAG}")
    for k in range(QPRE, DP):
        tile_addr(VA[k]); loads(KB[k], sKS, VA[k]); loads(VB[k], sVS, VA[k])
    A("s_setprio 0")
    A("s_waitcnt lgkmcnt(0)")
    A("s_branch L_waitq")
    g.lab("L_others")
    if B0: A("s_barrier")
    if SD: A(f"s_sleep {SD}")
    groups = []
    for k in range(DP): groups += [("K", k), ("V", k)]
    for gi, (kind, k) in enumerate(groups):
        if gi == PRE: A("s_barrier")
        if kind == "K": tile_addr(VA[k]); loads(KB[k], sKS, VA[k])
        else: loads(VB[k], sVS, VA[k])
    if TLBW:
        g.c("warm the address translation of this head's K/V pages through the scalar path (wave TLBW)")
        lw = g.new("tw")
        A(f"s_cmp_lg_u32 {sWAVE}, {TLBW}"); A(f"s_cbranch_scc1 {lw}")
        A(f"s_add_u32 s96, s66, {sBASE}"); A("s_addc_u32 s97, s67, 0")
        A(f"s_add_u32 s98, s68, {sBASE}"); A("s_addc_u32 s99, s69, 0")
        for p in range(8):
            A(f"s_load_dword s100, s[96:97], 0"); A(f"s_load_dword s101, s[98:99], 0")
            A("s_add_u32 s96, s96, 0x200000"); A("s_addc_u32 s97, s97, 0"); A("s_add_u32 s98, s98, 0x200000"); A("s_addc_u32 s99, s99, 0")
        g.lab(lw)
    g.lab("L_waitq")
    A("s_barrier")
    stamp(2)
    if dbg == 5:
        A("s_memtime s[90:91]"); A("s_waitcnt lgkmcnt(0)"); A(f"v_writelane_b32 v{vSTAMP}, s90, 58")
        A("s_memrealtime s[90:91]"); A("s_waitcnt lgkmcnt(0)"); A(f"v_writelane_b32 v{vSTAMP}, s90, 59")
    A(f"v_and_b32 v7, 7, v{vLANE}"); A("v_lshlrev_b32 v7, 4, v7")
    for c in range(4): A(f"ds_read_b128 v[{Q+4*c}:{Q+4*c+3}], v7 offset:{L_Q + 128*c}")
    A("v_mov_b32 v8, 0")
    A(f"ds_read_b64 v[10:11], v8 offset:{L_TAG}")
    for i in range(32): A(f"v_mov_b32 v{ACC+i}, 0")
    A(f"v_mov_b32 v{vM}, {NEG_BIG:#x}"); A(f"v_mov_b32 v{vMC}, {NEG_BIG:#x}"); A(f"v_mov_b32 v{vL}, 0")
    A("s_and_b32 s37, s2, 7"); A(f"s_lshr_b32 {sRI}, s2, 3")
    A(f"s_mov_b32 {sLOC}, 0")
    A("s_cmp_lt_u32 s2, 224"); A("s_cselect_b32 s38, 2, 1")
    A("s_cmp_eq_u32 s37, 0"); A(f"s_cselect_b32 {sROLE}, s38, 0")
    A("s_waitcnt lgkmcnt(0)")
    A(f"v_readfirstlane_b32 {sTAG}, v10"); A(f"v_readfirstlane_b32 {sEP}, v11")
    A(f"s_mov_b32 {sSTEP}, 0")
    if dbg == 3: A("s_mov_b32 s92, 15")
    resc = []
    def body(k, kwait, vwait, issue, pre=None, post=None):
        kb, vb = KB[k], VB[k]
        g.c(f"slot {k} ({issue})")
        if pre: pre()
        stepstamp()
        A(f"s_waitcnt vmcnt({kwait})")
        for r_ in range(4): A(f"v_dot2_f32_bf16 v{7+r_}, v{kb+r_}, v{Q+r_}, 0")
        for r_ in range(4, 16 if not NOCOMP else 4): A(f"v_dot2c_f32_bf16 v{7+(r_&3)}, v{kb+r_}, v{Q+r_}")
        if issue == "static": tile_addr(VA[k]); loads(kb, sKS, VA[k])
        elif issue == "dyn":
            tile_addr_dyn(VA[k], sMK[k])
            A(f"s_mov_b64 exec, s[{sMK[k][0][1:]}:{sMK[k][1][1:]}]"); loads(kb, sKS, VA[k]); A("s_mov_b64 exec, -1")
        else: g.nop(3)
        A("v_add_f32 v7, v7, v8"); A("v_add_f32 v9, v9, v10"); A("v_add_f32 v7, v7, v9"); g.nop(2)
        allreduce_low(g, 7, [0, 1, 2])
        A("v_cvt_pk_bf16_f32 v8, v7, v7")
        A("v_lshlrev_b32 v7, 16, v8")
        if issue == "dyn" and HALF:
            A(f"v_cndmask_b32 v7, v3, v7, s[{sMC[k][0][1:]}:{sMC[k][1][1:]}]")
        A(f"v_cmp_gt_f32 vcc, v7, v{vM}")
        lr, lc = g.new("resc"), g.new("cont")
        A(f"s_cbranch_vccnz {lr}")
        g.lab(lc)
        A(f"v_fma_f32 v8, v7, {sC}, -v{vMC}")
        A("v_exp_f32 v8, v8"); g.nop(1)
        A(f"v_add_f32 v{vL}, v{vL}, v8")
        A("v_cvt_pk_bf16_f32 v9, v8, 0")
        A("v_cvt_pk_bf16_f32 v10, 0, v8")
        A(f"s_waitcnt vmcnt({vwait})")
        for c in range(4 if not NOCOMP else 0):
            for i in range(4):
                A(f"v_dot2c_f32_bf16 v{ACC+8*c+2*i}, v{vb+4*c+i}, v9")
                A(f"v_dot2c_f32_bf16 v{ACC+8*c+2*i+1}, v{vb+4*c+i}, v10")
        if issue == "static": loads(vb, sVS, VA[k])
        elif issue == "dyn":
            A(f"s_mov_b64 exec, s[{sMK[k][0][1:]}:{sMK[k][1][1:]}]"); loads(vb, sVS, VA[k]); A("s_mov_b64 exec, -1")
            if HALF: A(f"s_mov_b64 s[{sMC[k][0][1:]}:{sMC[k][1][1:]}], s[{sMK[k][0][1:]}:{sMK[k][1][1:]}]")
        if post: post()
        resc.append((lr, lc))
    if X5:
        g.c("first revolution: five prefetched tiles")
        for k in range(D): body(k, 36, 36, "static", pre=lambda: A("s_barrier"))
        body(4, 36, 32, "none", pre=lambda: A("s_barrier"))
    NREV = (NS - 9) // 4 if X5 else (NS - 4) // 4
    assert (NS - (9 if X5 else 4)) % 4 == 0
    H1, H2 = (4, 8) if X5 else (8, 12)
    g.lab("L_loop")
    for k in range(D):
        body(k, 28, 28, "static", pre=(lambda: A("s_barrier")) if (BAR == 1 or (BAR == 4 and k == 0) or (BAR == 2 and k % 2 == 0)) else None)
    A(f"s_add_u32 {sSTEP}, {sSTEP}, 4")
    A(f"s_cmp_eq_u32 {sSTEP}, {H1}"); A("s_cbranch_scc1 L_wload")
    A(f"s_cmp_eq_u32 {sSTEP}, {H2}"); A("s_cbranch_scc1 L_xgload")
    g.lab("L_loop_back")
    A(f"s_cmp_lt_u32 {sSTEP}, {4*NREV}"); A("s_cbranch_scc1 L_loop")
    g.c("transition: consume slots 0,1 without issue")
    A(f"s_add_u32 s37, {sS}, {16*NS}"); A(f"v_mov_b32 v{TMP}, s37"); A(f"v_mov_b32 v{TMP+1}, 0")
    A(f"ds_write_b32 v{TMP+1}, v{TMP} offset:{L_CL}")
    A(f"s_mov_b32 {sV2}, 1"); A(f"s_mov_b32 {sV3}, 1"); A("s_mov_b32 s58, 0")
    A("s_mov_b64 s[76:77], -1"); A("s_mov_b64 s[78:79], -1"); A(f"v_mov_b32 v3, {NEG_BIG:#x}")
    A(f"s_cmp_eq_u32 {sROLE}, 0"); A(f"s_cselect_b32 {sLIM}, 0, {RWX}"); A(f"s_sub_u32 {sLIM}, {NIT}, {sLIM}"); A(f"s_mov_b32 {sDC}, 0"); A(f"s_mov_b32 {sI0}, 0"); A(f"s_mov_b32 {sGO}, 0")
    A("s_mov_b32 s41, 0x05040100"); A("s_mov_b32 s42, 0x07060302")
    if LOOK == 2: A(f"s_sub_u32 s37, {sS}, 16"); A(f"v_mov_b32 v{TMP+5}, s37")
    A(f"s_mul_i32 s48, {sH}, {CSTR}"); A(f"s_add_u32 s48, s48, {CNT:#x}")
    def xg_check():
        l = g.new("xgs"); l2 = g.new("xgok")
        A(f"s_cmp_eq_u32 {sROLE}, 0"); A(f"s_cbranch_scc1 {l}")
        A("s_mov_b32 exec_lo, -1"); A("s_mov_b32 exec_hi, 0")
        A(f"v_cmp_ne_u32 vcc, {sTAG}, v{TMP+13}")
        A(f"s_cbranch_vccz {l2}")
        A(f"v_lshlrev_b32 v{TMP+14}, 3, v{vLANE}"); A(f"v_add_u32 v{TMP+14}, {XG:#x}, v{TMP+14}")
        poll(g, lambda: A(f"buffer_load_dwordx2 v[{TMP+12}:{TMP+13}], v{TMP+14}, {sWS}, 0 offen sc1"), [TMP+13], TMP+8, TMP+9)
        g.lab(l2)
        A("s_getreg_b32 s37, hwreg(HW_REG_XCC_ID)"); A("s_and_b32 s37, s37, 15")
        A(f"v_cmp_ne_u32 vcc, s37, v{TMP+12}")
        A("s_cmp_eq_u64 vcc, 0"); A(f"s_cselect_b32 {sLOC}, 1, 0")
        if NOLOC: A(f"s_mov_b32 {sLOC}, 0")
        A("s_mov_b64 exec, -1")
        g.lab(l)
    def wo_load():
        l = g.new("wol")
        A("s_waitcnt lgkmcnt(0)")
        A(f"s_cmp_eq_u32 {sROLE}, 0"); A(f"s_cbranch_scc1 {l}")
        srd(g, 16, 72, 4096*896)
        A(f"s_lshl_b32 s37, {sH}, 4"); A(f"s_and_b32 s38, {sS}, 8"); A("s_add_u32 s37, s37, s38"); A(f"s_add_u32 s37, s37, {sWAVE}")
        A(f"s_mul_i32 s37, s37, {16*896}")
        A(f"v_lshlrev_b32 v{TMP+8}, 4, v{vLANE}")
        for i in range(16):
            A(f"buffer_load_dwordx4 v[{R0+4*i}:{R0+4*i+3}], v{TMP+8}, {sT1}, s37 offen nt")
            A("s_add_u32 s37, s37, 896")
        g.lab(l)
    body(0, 28, 24, "none", pre=lambda: A("s_barrier"), post=xg_check)
    body(1, 20, 16, "none", pre=lambda: A("s_barrier"), post=wo_load)
    if DD == 1: body(2, 12, 8, "none", pre=lambda: A("s_barrier"))
    if dbg == 2: stamp(5)
    if TPF & 1: code_pf(6, "L_s0", "L_exit", 2, TMP+20)
    g.lab("L_dyn")
    for k in (2, 3):
        p = k & 1
        sV = sV2 if (k == 2 or DD == 1) else sV3
        RA = [TMP+3, TMP+5]
        def pre(k=k, p=p, sV=sV):
            A("s_barrier")
            A(f"ds_read_b32 v{TMP+2}, v{TMP+1} offset:{L_CL + 4*p}")
            A(f"s_cmp_eq_u32 {sV}, 0"); A("s_cbranch_scc1 L_s0")
            A("s_waitcnt lgkmcnt(0)")
            A(f"v_readfirstlane_b32 {sNXT}, v{TMP+2}")
            l = g.new("noclaim")
            A(f"s_cmp_lg_u32 {sWAVE}, 0"); A(f"s_cbranch_scc1 {l}")
            A(f"s_mov_b32 {sGO}, 0")
            A(f"s_cmp_ge_u32 {sNXT}, {sLIM}"); A(f"s_cbranch_scc1 {l}")
            if ADF:
                la = g.new("ad")
                A(f"s_cmp_eq_u32 {sDC}, 1"); A(f"s_cselect_b32 {sI0}, {sNXT}, {sI0}")
                A(f"s_cmp_lt_u32 {sDC}, 3"); A(f"s_cbranch_scc1 {la}")
                A(f"s_cmp_eq_u32 {sS}, 3"); A(f"s_cbranch_scc1 {la}")
                A(f"s_cmp_eq_u32 {sS}, 12"); A(f"s_cbranch_scc1 {la}")
                A(f"s_sub_u32 s37, {sDC}, 1")
                A(f"s_sub_u32 s38, {sNXT}, {sI0}"); A("s_lshl_b32 s39, s37, 4"); A("s_sub_u32 s38, s38, s39")
                A(f"s_mul_i32 s38, s38, {ADF}")
                A(f"s_sub_u32 s39, {NIT}, {sNXT}"); A("s_mul_i32 s39, s39, s37"); A("s_lshl_b32 s39, s39, 1")
                A("s_cmp_lt_i32 s39, s38"); A(f"s_cbranch_scc1 {l}")
                g.lab(la)
            A(f"s_mov_b32 {sGO}, 1")
            ra = RA[p] if LOOK == 2 else RA[0]
            A(f"v_mov_b32 v{ra}, 1")
            A("s_mov_b64 exec, 1")
            if FAKE in (0, 3): A(f"buffer_atomic_add v{ra}, v{TMP+1}, {sWS}, s48 offen {['sc0', 'sc0 sc1', 'sc0 nt', 'sc0 sc1 nt'][AFL]}")
            elif FAKE == 2: A(f"buffer_load_dword v{ra}, v{TMP+1}, {sWS}, s48 offen sc1")
            A("s_mov_b64 exec, -1")
            g.lab(l)
        def post(k=k, p=p, sV=sV):
            A(f"s_cmp_lt_u32 {sNXT}, {NIT}"); A(f"s_cselect_b32 {sV}, 1, 0")
            if dbg: A(f"s_add_u32 {sSTEP}, {sSTEP}, {sV}")
            if PT & 4:
                lt = g.new("ept")
                A(f"s_cmp_lg_u32 {sWAVE}, 4"); A(f"s_cbranch_scc1 {lt}")
                A(f"s_cmp_lt_u32 {sNXT}, {NIT}"); A(f"s_cbranch_scc1 {lt}")
                A(f"s_cmp_eq_u32 s58, 1"); A(f"s_cbranch_scc1 {lt}")
                A("s_mov_b32 s58, 1")
                A(f"v_lshlrev_b32 v{TMP+8}, 4, v{vLANE}")
                A(f"s_lshl_b32 s38, {sH}, 15"); A(f"s_lshl_b32 s39, {sS}, 11"); A("s_add_u32 s38, s38, s39"); A(f"s_add_u32 s38, s38, {OP:#x}")
                A(f"buffer_load_dwordx4 v[{TMP+20}:{TMP+23}], v{TMP+8}, {sWS}, s38 offen sc1")
                A(f"buffer_load_dwordx4 v[{TMP+20}:{TMP+23}], v{TMP+8}, {sWS}, s38 offen offset:1024 sc1")
                g.lab(lt)
            lp_ = g.new("wop")
            A(f"s_add_u32 {sDC}, {sDC}, 1"); A(f"s_cmp_lg_u32 {sDC}, 2"); A(f"s_cbranch_scc1 {lp_}")
            A(f"s_cmp_eq_u32 {sROLE}, 0"); A(f"s_cbranch_scc1 {lp_}")
            if k == 3:
                for i in range(8):
                    for e in range(4): perm_pair(g, R0+8*i+e, R0+8*i+4+e, 9)
            g.lab(lp_)
            l = g.new("nopub")
            A(f"s_cmp_lg_u32 {sWAVE}, 0"); A(f"s_cbranch_scc1 {l}")
            ra = RA[p^1] if LOOK == 2 else RA[0]
            A(f"s_waitcnt vmcnt({17 if LOOK == 2 else 8})")
            if FAKE: A(f"s_add_u32 s49, {sNXT}, 16"); A(f"v_mov_b32 v{ra}, s49")
            else: A(f"v_add_u32 v{ra}, {16*(NS+LOOK)}, v{ra}")
            A(f"v_mov_b32 v{TMP+4}, 0xffff")
            A(f"s_cmp_eq_u32 {sGO}, 1"); A("s_cselect_b64 vcc, -1, 0")
            A(f"v_cndmask_b32 v{TMP+4}, v{TMP+4}, v{ra}, vcc")
            A("s_mov_b64 exec, 1")
            A(f"ds_write_b32 v{TMP+1}, v{TMP+4} offset:{L_CL + 4*(p^1)}")
            A("s_mov_b64 exec, -1")
            A("s_waitcnt lgkmcnt(0)")
            g.lab(l)
        if DD == 1: body(3, 4, 4, "dyn", pre=pre, post=post)
        else: body(k, 12, 12, "dyn", pre=pre, post=post)
    A("s_branch L_dyn")
    for lr, lc in resc:
        g.lab(lr)
        A("v_mov_b32 v8, v7"); g.nop(2)
        dpp(g, "v_max_f32", 8, 8, 8, "row_ror:8"); g.nop(2)
        dpp(g, "v_max_f32", 8, 8, 8, "row_bcast:15", rm=0xa); g.nop(2)
        dpp(g, "v_max_f32", 8, 8, 8, "row_bcast:31", rm=0xc); g.nop(1)
        A("v_readlane_b32 s47, v8, 63"); g.nop(2)
        A(f"v_max_f32 v9, s47, v{vM}")
        A(f"v_sub_f32 v10, v{vM}, v9")
        A(f"v_mul_f32 v10, {sC}, v10")
        A("v_exp_f32 v10, v10")
        A(f"v_mov_b32 v{vM}, v9")
        A(f"v_mul_f32 v{vMC}, {sC}, v9")
        A(f"v_mul_f32 v{vL}, v10, v{vL}")
        for i in range(32): A(f"v_mul_f32 v{ACC+i}, v10, v{ACC+i}")
        A(f"s_branch {lc}")
    g.lab("L_wload")
    if dbg == 2: stamp(4)
    A(f"s_cmp_eq_u32 {sROLE}, 0"); A("s_cbranch_scc1 L_loop_back")
    A(f"s_cmp_eq_u32 {sROLE}, 1"); A("s_cbranch_scc1 L_xgpub")
    g.c("role WG: w1[:, 64a..+64) (wave w rows 56w + 8j + (l>>3), chunk l&7), w2 rows 64a + 8w + j, b1, x, b2, xcc granule")
    srd(g, 16, 76, 448*3584); srd(g, 20, 80, 1792*896)
    A(f"v_lshrrev_b32 v{TMP}, 3, v{vLANE}"); A("s_movk_i32 s37, 3584"); A(f"v_mul_lo_u32 v{TMP}, v{TMP}, s37")
    A(f"v_and_b32 v{TMP+1}, 7, v{vLANE}"); A(f"v_lshlrev_b32 v{TMP+1}, 4, v{TMP+1}"); A(f"v_add_u32 v{TMP}, v{TMP}, v{TMP+1}")
    A(f"s_mul_i32 s37, {sWAVE}, {56*3584}"); A(f"s_lshl_b32 s38, {sRI}, 7"); A("s_add_u32 s37, s37, s38")
    A(f"s_mul_i32 s38, {sWAVE}, {7*1024}"); A(f"s_add_u32 s38, s38, {L_W1}")
    for j in range(7):
        A("s_mov_b32 m0, s38"); A("s_nop 0")
        A(f"buffer_load_dwordx4 v{TMP}, {sT1}, s37 offen nt lds")
        A(f"s_add_u32 s37, s37, {8*3584}"); A("s_add_u32 s38, s38, 1024")
    A(f"v_lshlrev_b32 v{TMP+2}, 4, v{vLANE}")
    A(f"s_lshl_b32 s37, {sRI}, 6"); A(f"s_lshl_b32 s38, {sWAVE}, 3"); A("s_add_u32 s37, s37, s38"); A("s_mul_i32 s37, s37, 896")
    A(f"s_lshl_b32 s38, {sWAVE}, 13"); A(f"s_add_u32 s38, s38, {L_W2}")
    for j in range(8):
        A("s_mov_b32 m0, s38"); A("s_nop 0")
        A(f"buffer_load_dwordx4 v{TMP+2}, {sT2}, s37 offen nt lds")
        A("s_add_u32 s37, s37, 896"); A("s_add_u32 s38, s38, 1024")
    srd(g, 16, 78, 1792*2)
    A(f"v_and_b32 v{TMP+1}, 7, v{vLANE}"); A(f"v_lshlrev_b32 v{TMP+1}, 3, v{TMP+1}"); A(f"v_lshrrev_b32 v{TMP+3}, 3, v{vLANE}"); A(f"v_add_u32 v{TMP+1}, v{TMP+1}, v{TMP+3}")
    A(f"v_lshlrev_b32 v{TMP+1}, 1, v{TMP+1}"); A(f"s_lshl_b32 s37, {sRI}, 7"); A(f"v_add_u32 v{TMP+1}, s37, v{TMP+1}")
    A(f"buffer_load_ushort v{vB1}, v{TMP+1}, {sT1}, 0 offen nt")
    srd(g, 16, 64, 896); srd(g, 20, 82, 896)
    A(f"s_lshl_b32 s37, {sRI}, 5")
    A(f"v_and_b32 v{TMP+3}, 7, v{vLANE}"); A(f"v_lshlrev_b32 v{TMP+3}, 1, v{TMP+3}"); A(f"v_lshrrev_b32 v{TMP+4}, 5, v{vLANE}"); A(f"v_add_u32 v{TMP+3}, v{TMP+3}, v{TMP+4}")
    A(f"v_lshlrev_b32 v{TMP+3}, 1, v{TMP+3}"); A(f"v_add_u32 v{TMP+3}, s37, v{TMP+3}")
    A(f"buffer_load_ushort v{vB2}, v{TMP+3}, {sT2}, 0 offen nt")
    A(f"buffer_load_ushort v{vXH}, v{TMP+3}, {sT1}, 0 offen nt")
    g.lab("L_xgpub")
    A(f"s_cmp_lg_u32 {sWAVE}, 0"); A("s_cbranch_scc1 L_loop_back")
    A("s_getreg_b32 s37, hwreg(HW_REG_XCC_ID)"); A("s_and_b32 s37, s37, 15")
    A(f"v_mov_b32 v{TMP+6}, s37"); A(f"v_mov_b32 v{TMP+7}, {sTAG}"); A(f"s_lshl_b32 s37, {sRI}, 3"); A(f"s_add_u32 s37, s37, {XG:#x}"); A(f"v_mov_b32 v{TMP+5}, 0")
    A("s_mov_b64 exec, 1")
    A(f"buffer_store_dwordx2 v[{TMP+6}:{TMP+7}], v{TMP+5}, {sWS}, s37 offen sc1")
    A("s_mov_b64 exec, -1")
    A("s_branch L_loop_back")
    g.lab("L_xgload")
    A(f"s_cmp_eq_u32 {sROLE}, 0"); A("s_cbranch_scc1 L_loop_back")
    A(f"v_lshlrev_b32 v{TMP+14}, 3, v{vLANE}"); A(f"v_add_u32 v{TMP+14}, {XG:#x}, v{TMP+14}")
    A(f"buffer_load_dwordx2 v[{TMP+12}:{TMP+13}], v{TMP+14}, {sWS}, 0 offen sc1")
    A("s_branch L_loop_back")
    g.lab("L_s0")
    stamp(3)
    if dbg and dbg != 4: A(f"v_writelane_b32 v{vSTAMP}, {sSTEP}, 15")
    g.c("S0: in-wave reduce")
    T = TMP
    allreduce_high(g, vL, T)
    reduce_scatter(g, [ACC+i for i in range(32)], [32, 16, 8])
    A(f"v_lshrrev_b32 v7, 4, v{vLANE}"); A("v_lshlrev_b32 v7, 8, v7")
    A(f"v_and_b32 v8, 7, v{vLANE}"); A("v_lshlrev_b32 v8, 5, v8")
    A(f"v_bfe_u32 v9, v{vLANE}, 3, 1"); A("v_lshlrev_b32 v9, 4, v9")
    A("v_add3_u32 v7, v7, v8, v9")
    A(f"s_lshl_b32 s37, {sWAVE}, 10"); A("v_add_u32 v7, s37, v7")
    A(f"ds_write_b128 v7, v[{ACC}:{ACC+3}] offset:{L_O}")
    A(f"v_mov_b32 v8, v{vM}"); A(f"v_mov_b32 v9, v{vL}")
    A(f"s_lshl_b32 s37, {sWAVE}, 3"); A("v_mov_b32 v10, s37")
    A(f"ds_write_b64 v10, v[8:9] offset:{L_ST}")
    A("s_mov_b32 s41, 0x05040100"); A("s_mov_b32 s42, 0x07060302")
    A("s_waitcnt vmcnt(0) lgkmcnt(0)")
    A("s_barrier")
    tst(16)
    A(f"s_cmp_gt_u32 {sWAVE}, 1"); A("s_cbranch_scc1 L_rw")
    g.c("waves 0-1: cross-wave combine + publish (thread t: dims 2t, 2t+1)")
    OW = 68
    A("v_mov_b32 v7, 0")
    for i in range(4): A(f"ds_read_b128 v[{T+4*i}:{T+4*i+3}], v7 offset:{L_ST+16*i}")
    A("v_lshlrev_b32 v8, 3, v0")
    for w in range(8): A(f"ds_read_b64 v[{OW+2*w}:{OW+2*w+1}], v8 offset:{L_O+1024*w}")
    A("s_waitcnt lgkmcnt(8)")
    A(f"v_max3_f32 v9, v{T}, v{T+2}, v{T+4}"); A(f"v_max3_f32 v10, v{T+6}, v{T+8}, v{T+10}"); A(f"v_max3_f32 v9, v9, v{T+12}, v{T+14}"); A(f"v_max_f32 v9, v9, v10")
    A(f"v_mul_f32 v11, {sC}, v9")
    for w in range(8): A(f"v_fma_f32 v{T+2*w}, v{T+2*w}, {sC}, -v11")
    for w in range(8): A(f"v_exp_f32 v{T+2*w}, v{T+2*w}")
    A("v_lshrrev_b32 v7, 3, v0"); A("v_lshlrev_b32 v7, 11, v7")
    A("v_and_b32 v8, 7, v0"); A("v_cmp_eq_u32 vcc, 0, v8"); A("v_lshlrev_b32 v8, 4, v8"); A("v_add_u32 v7, v7, v8")
    A(f"s_lshl_b32 s37, {sH}, 15"); A(f"s_lshl_b32 s38, {sS}, 7"); A("s_add_u32 s37, s37, s38"); A(f"s_add_u32 s37, s37, {OP:#x}")
    PG = 84
    A(f"v_mov_b32 v{PG+3}, {sTAG}")
    A("s_waitcnt lgkmcnt(0)")
    A(f"v_mul_f32 v{PG}, v{T}, v{OW}"); A(f"v_mul_f32 v{PG+1}, v{T}, v{OW+1}"); A(f"v_mul_f32 v10, v{T}, v{T+1}")
    for w in range(1, 8):
        A(f"v_fmac_f32 v{PG}, v{T+2*w}, v{OW+2*w}"); A(f"v_fmac_f32 v{PG+1}, v{T+2*w}, v{OW+2*w+1}"); A(f"v_fmac_f32 v10, v{T+2*w}, v{T+2*w+1}")
    A(f"v_cndmask_b32 v{PG+2}, v10, v9, vcc")
    A(f"buffer_store_dwordx4 v[{PG}:{PG+3}], v7, {sWS}, s37 offen sc1")
    tst(17)
    if dbg == 5: A("s_waitcnt vmcnt(0)"); tst(61)
    g.lab("L_rw")
    A(f"s_cmp_eq_u32 {sROLE}, 0"); A("s_cbranch_scc1 L_end")
    def lstore(text):
        l1, l2 = g.new("ls"), g.new("ls")
        A(f"s_cmp_eq_u32 {sLOC}, 0"); A(f"s_cbranch_scc1 {l1}")
        A(text); A(f"s_branch {l2}")
        g.lab(l1); A(text + " sc1"); g.lab(l2)
    g.c("first gather round of this wave's 16-dim slice, pre-touch of later hand-off lines, weight preparation")
    vOA = 50
    A(f"v_lshlrev_b32 v{vOA}, 4, v{vLANE}")
    A(f"s_and_b32 s39, {sS}, 8"); A(f"s_add_u32 s39, s39, {sWAVE}"); A("s_lshl_b32 s39, s39, 11")
    A(f"s_lshl_b32 s38, {sH}, 15"); A("s_add_u32 s38, s38, s39"); A(f"s_add_u32 s38, s38, {OP:#x}")
    A(f"v_add_u32 v{vOA}, s38, v{vOA}")
    def g0(): A(f"buffer_load_dwordx4 v[{T+8}:{T+11}], v{vOA}, {sWS}, 0 offen sc1")
    def g1(): A(f"buffer_load_dwordx4 v[{T+12}:{T+15}], v{vOA}, {sWS}, 0 offen offset:1024 sc1")
    g0(); g1()
    if PT:
        lpt = g.new("pt"); l7 = g.new("pt7"); l5 = g.new("pt5"); l6 = g.new("pt6")
        A(f"s_cmp_lt_u32 {sROLE}, 2"); A(f"s_cbranch_scc1 {lpt}")
        A(f"v_lshlrev_b32 v7, 4, v{vLANE}")
        DM = 88
        A(f"s_cmp_lg_u32 {sWAVE}, 7"); A(f"s_cbranch_scc1 {l7}")
        A(f"s_mul_i32 s37, {sRI}, {FSTR}"); A(f"s_add_u32 s37, s37, {FP:#x}")
        for k in range(7):
            A(f"buffer_load_dwordx4 v[{DM}:{DM+3}], v7, {sWS}, s37 offen sc1"); A("s_add_u32 s37, s37, 1024")
        g.lab(l7)
        A(f"s_cmp_lg_u32 {sWAVE}, 5"); A(f"s_cbranch_scc1 {l5}")
        A(f"s_mov_b32 s37, {HG:#x}")
        A(f"buffer_load_dwordx4 v[{DM}:{DM+3}], v7, {sWS}, s37 offen sc1"); A(f"buffer_load_dwordx4 v[{DM}:{DM+3}], v7, {sWS}, s37 offen offset:1024 sc1")
        g.lab(l5)
        A(f"s_cmp_lg_u32 {sWAVE}, 6"); A(f"s_cbranch_scc1 {l6}")
        A(f"s_mul_i32 s37, {sRI}, {YSTR}"); A(f"s_add_u32 s37, s37, {YP:#x}")
        for k in range(4):
            A(f"buffer_load_dwordx4 v[{DM}:{DM+3}], v7, {sWS}, s37 offen sc1"); A("s_add_u32 s37, s37, 1024")
        g.lab(l6)
        g.lab(lpt)
    W1R = R0 + 64; W2R = R0 + 96; XPR = 68; APR = 72; AC = 88; XA = [ACC + i for i in range(8)]; PA = ACC + 8
    vFA = 48; vC = 49; vYA = 51
    def ffn_prep():
        A(f"v_lshlrev_b32 v7, 4, v{vLANE}"); A(f"s_mul_i32 s37, {sWAVE}, {7*1024}"); A("v_add_u32 v7, s37, v7")
        for j in range(7): A(f"ds_read_b128 v[{W1R+4*j}:{W1R+4*j+3}], v7 offset:{L_W1 + 1024*j}")
        for i in range(4): A(f"v_mov_b32 v{W1R+28+i}, 0")
        A(f"s_and_b32 s37, {sWAVE}, 3"); A("s_lshl_b32 s37, s37, 8"); A(f"s_lshr_b32 s38, {sWAVE}, 2"); A("s_lshl_b32 s38, s38, 15"); A("s_add_u32 s37, s37, s38"); A(f"s_add_u32 s37, s37, {L_W2}")
        A(f"v_lshlrev_b32 v8, 2, v{vLANE}"); A("v_add_u32 v8, s37, v8")
        for i in range(16): A(f"ds_read2st64_b32 v[{W2R+2*i}:{W2R+2*i+1}], v8 offset0:{8*i} offset1:{8*i+4}")
        for r_ in (vXH, vB2, vB1): A(f"v_lshlrev_b32 v{r_}, 16, v{r_}")
        for k in range(2):
            for e in range(4):
                x = XA[4*k+e]
                A(f"v_lshlrev_b32 v{x}, 2, v{vLANE}"); A(f"v_add_u32 v{x}, {4*56*k + e}, v{x}")
                A("s_movk_i32 s37, 1171"); A(f"v_mul_u32_u24 v9, s37, v{x}"); A("v_lshrrev_b32 v9, 16, v9")
                A(f"v_mul_u32_u24 v10, 56, v9"); A(f"v_sub_u32 v10, v{x}, v10")
                A(f"v_lshrrev_b32 v11, 4, v10"); A(f"v_lshl_add_u32 v9, v9, 2, v11")
                A("v_and_b32 v11, 7, v10"); A("v_lshl_add_u32 v9, v9, 3, v11")
                A("v_bfe_u32 v11, v10, 3, 1"); A("v_lshlrev_b32 v11, 1, v11"); A(f"v_lshl_add_u32 v{x}, v9, 2, v11")
        A("s_waitcnt lgkmcnt(0)")
        for jj in range(4):
            for i in range(4): perm_pair(g, W1R+8*jj+i, W1R+8*jj+4+i, 9)
        for i in range(16): perm_pair(g, W2R+2*i, W2R+2*i+1, 9)
        A(f"s_and_b32 s37, {sWAVE}, 3"); A("s_lshl_b32 s37, s37, 6"); A(f"v_add_u32 v{vC}, s37, v{vLANE}")
        A(f"v_lshrrev_b32 v{vFA}, 3, v{vC}"); A(f"s_movk_i32 s38, {FSTR}"); A(f"v_mul_lo_u32 v{vFA}, v{vFA}, s38"); A(f"v_and_b32 v9, 7, v{vC}"); A("v_lshlrev_b32 v9, 4, v9"); A(f"v_add_u32 v{vFA}, v{vFA}, v9")
        A(f"s_lshl_b32 s37, {sRI}, 1"); A(f"s_lshr_b32 s38, {sWAVE}, 2"); A("s_add_u32 s37, s37, s38"); A("s_lshl_b32 s37, s37, 7"); A(f"s_add_u32 s37, s37, {FP:#x}"); A(f"v_add_u32 v{vFA}, s37, v{vFA}")
    lnf = g.new("noffn")
    A(f"s_cmp_lt_u32 {sROLE}, 2"); A(f"s_cbranch_scc1 {lnf}")
    A(f"s_cmp_eq_u32 {sWAVE}, 5"); A(f"s_cselect_b32 s37, 1, 0"); A(f"s_cmp_eq_u32 {sWAVE}, 6"); A(f"s_cselect_b32 s37, 1, s37")
    A("s_cmp_eq_u32 s37, 0"); A(f"s_cbranch_scc1 {lnf}")
    ffn_prep()
    g.lab(lnf)
    A(f"v_lshrrev_b32 v{vYA}, 3, v0"); A(f"s_movk_i32 s38, {YSTR}"); A(f"v_mul_lo_u32 v{vYA}, v{vYA}, s38"); A("v_and_b32 v9, 7, v0"); A("v_lshlrev_b32 v9, 4, v9"); A(f"v_add_u32 v{vYA}, v{vYA}, v9")
    A(f"s_lshl_b32 s37, {sRI}, 7"); A(f"s_add_u32 s37, s37, {YP:#x}"); A(f"v_add_u32 v{vYA}, s37, v{vYA}")
    for i in range(8): A(f"v_mov_b32 v{PA+i}, 0")
    vLW = 52
    A(f"v_lshlrev_b32 v{vLW}, 5, v{vLANE}"); A(f"s_mul_i32 s37, {sWAVE}, 1792"); A(f"v_add_u32 v{vLW}, s37, v{vLW}")
    g.c("hop 1: combine the 16 partials of this wave's 16 dims")
    if dbg == 5: A("s_mov_b32 s92, 47"); tst(47)
    selpoll(g, [(g0, [T+11]), (g1, [T+15])], 9, 10, first_issued=True, sleep=H1SLEEP, dbgbase=48 if dbg == 5 else None)
    tst(18)
    for dst, src, ln in ((T, T+10, 0), (T+4, T+14, 0), (T+1, T+10, 1), (T+5, T+14, 1)):
        A(f"v_mov_b32_dpp v{dst}, v{src} row_newbcast:{ln} row_mask:0xf bank_mask:0x3")
    for dst, src, ln in ((T, T+10, 8), (T+4, T+14, 8), (T+1, T+10, 9), (T+5, T+14, 9)):
        A(f"v_mov_b32_dpp v{dst}, v{src} row_newbcast:{ln} row_mask:0xf bank_mask:0xc")
    A(f"v_max_f32 v9, v{T}, v{T+4}"); g.nop(2)
    allreduce_high(g, 9, 10, op="v_max_f32")
    A(f"v_sub_f32 v{T}, v{T}, v9"); A(f"v_sub_f32 v{T+4}, v{T+4}, v9")
    A(f"v_mul_f32 v{T}, {sC}, v{T}"); A(f"v_mul_f32 v{T+4}, {sC}, v{T+4}")
    A(f"v_exp_f32 v{T}, v{T}"); A(f"v_exp_f32 v{T+4}, v{T+4}"); g.nop(1)
    A(f"v_mul_f32 v{T+16}, v{T}, v{T+1}"); A(f"v_mul_f32 v{T+17}, v{T}, v{T+8}"); A(f"v_mul_f32 v{T+18}, v{T}, v{T+9}")
    A(f"v_fmac_f32 v{T+16}, v{T+4}, v{T+5}"); A(f"v_fmac_f32 v{T+17}, v{T+4}, v{T+12}"); A(f"v_fmac_f32 v{T+18}, v{T+4}, v{T+13}")
    g.nop(2)
    allreduce_high(g, [T+16, T+17, T+18], [T+19, T+20, T+21])
    A(f"v_rcp_f32 v{T+16}, v{T+16}"); g.nop(1)
    A(f"v_mul_f32 v{T+17}, v{T+17}, v{T+16}"); A(f"v_mul_f32 v{T+18}, v{T+18}, v{T+16}")
    A(f"v_cvt_pk_bf16_f32 v{T+20}, v{T+17}, v{T+18}"); g.nop(1)
    for i in range(8): A(f"v_readlane_b32 s{64+i}, v{T+20}, {i}")
    g.nop(1)
    tst(19)
    g.c("wo product for this wave's 16 rows (lanes < 56: 8 columns each)")
    for i in range(8):
        for e in range(4):
            A(f"v_dot2c_f32_bf16 v{PA+2*e}, s{64+i}, v{R0+8*i+e}")
            A(f"v_dot2c_f32_bf16 v{PA+2*e+1}, s{64+i}, v{R0+8*i+4+e}")
    A("s_mov_b32 exec_lo, -1"); A("s_mov_b32 exec_hi, 0x00ffffff"); g.nop(2)
    A(f"ds_write_b128 v{vLW}, v[{PA}:{PA+3}] offset:{L_YW}"); A(f"ds_write_b128 v{vLW}, v[{PA+4}:{PA+7}] offset:{L_YW+16}")
    A("s_mov_b64 exec, -1")
    A("s_waitcnt lgkmcnt(0)")
    A("s_barrier")
    tst(20)
    A(f"s_cmp_gt_u32 {sWAVE}, 3"); A("s_cbranch_scc1 L_ysent")
    A("v_lshlrev_b32 v8, 3, v0")
    for w in range(8): A(f"ds_read_b64 v[{T+2*w}:{T+2*w+1}], v8 offset:{L_YW+1792*w}")
    A(f"v_mov_b32 v{T+18}, 0"); A(f"v_mov_b32 v{T+19}, {sTAG}")
    A("v_cmp_gt_u32 vcc, 224, v0")
    A("s_waitcnt lgkmcnt(0)")
    for st in (4, 2, 1):
        for i in range(st): A(f"v_pk_add_f32 v[{T+2*i}:{T+2*i+1}], v[{T+2*i}:{T+2*i+1}], v[{T+2*(i+st)}:{T+2*(i+st)+1}]")
    A(f"v_mov_b32 v{T+16}, v{T}"); A(f"v_mov_b32 v{T+17}, v{T+1}")
    A("s_and_saveexec_b64 s[50:51], vcc")
    lstore(f"buffer_store_dwordx4 v[{T+16}:{T+19}], v{vYA}, {sWS}, 0 offen")
    A("s_mov_b64 exec, -1")
    tst(21)
    g.lab("L_ysent")
    A(f"s_cmp_lt_u32 {sROLE}, 2"); A("s_cbranch_scc1 L_end")
    def red16(a_, b_, t_):
        g.nop(2)
        A(f"v_permlane32_swap_b32 v{a_}, v{b_}"); g.nop(1)
        A(f"v_add_f32 v{a_}, v{a_}, v{b_}")
        A(f"v_mov_b32 v{t_}, v{a_}"); g.nop(2)
        A(f"v_permlane16_swap_b32 v{a_}, v{t_}"); g.nop(1)
        A(f"v_add_f32 v{a_}, v{a_}, v{t_}"); g.nop(2)
        dpp(g, "v_add_f32", a_, a_, a_, "row_ror:8"); g.nop(1)
    A(f"s_cmp_eq_u32 {sWAVE}, 5"); A("s_cbranch_scc1 L_a_ln")
    A(f"s_cmp_eq_u32 {sWAVE}, 6"); A("s_cbranch_scc1 L_yred")
    ffn_prep()
    A("s_branch L_a_wait")
    g.lab("L_yred")
    g.c("wave 6: reduce the 32 y partials of 16 columns -> h, publish")
    YG = T
    A(f"v_lshlrev_b32 v7, 4, v{vLANE}")
    A(f"s_mul_i32 s37, {sRI}, {YSTR}"); A(f"s_add_u32 s37, s37, {YP:#x}"); A("v_add_u32 v7, s37, v7")
    A(f"v_and_b32 v8, 7, v{vLANE}"); A("v_lshlrev_b32 v8, 1, v8"); A(f"v_lshrrev_b32 v11, 5, v{vLANE}"); A("v_add_u32 v8, v8, v11"); A("v_lshlrev_b32 v8, 2, v8")
    A(f"v_lshlrev_b32 v11, 3, v{vLANE}")
    A(f"s_lshl_b32 s46, {sRI}, 6"); A(f"s_add_u32 s46, s46, {HG:#x}")
    def mky(k):
        return lambda: A(f"buffer_load_dwordx4 v[{YG+4*k}:{YG+4*k+3}], v7, {sWS}, 0 offen{(' offset:%d' % (1024*k)) if k else ''} sc1")
    if dbg == 5: A("s_mov_b32 s92, 31"); tst(31)
    selpoll(g, [(mky(k), [YG+4*k+3]) for k in range(4)], 9, 10, dbgbase=32 if dbg == 5 else None)
    tst(22)
    A(f"v_pk_add_f32 v[{YG}:{YG+1}], v[{YG}:{YG+1}], v[{YG+4}:{YG+5}]"); A(f"v_pk_add_f32 v[{YG+8}:{YG+9}], v[{YG+8}:{YG+9}], v[{YG+12}:{YG+13}]")
    A(f"v_pk_add_f32 v[{YG}:{YG+1}], v[{YG}:{YG+1}], v[{YG+8}:{YG+9}]")
    red16(YG, YG+1, 9)
    bf16r(g, YG, YG)
    A(f"v_add_f32 v{YG}, v{YG}, v{vXH}")
    bf16r(g, YG, YG)
    A(f"v_mov_b32 v9, v{YG}"); A(f"v_mov_b32 v10, v{YG}")
    A(f"v_mov_b32 v{T+5}, {sTAG}"); A(f"v_mov_b32 v{T+7}, {sTAG}")
    A("v_permlane32_swap_b32 v9, v10"); g.nop(1)
    A(f"v_lshrrev_b32 v{T+4}, 16, v9"); A(f"v_or_b32 v{T+4}, v{T+4}, v10"); g.nop(2)
    A(f"v_mov_b32_dpp v{T+6}, v{T+4} quad_perm:[1,0,3,2] row_mask:0xf bank_mask:0xf")
    A("s_mov_b64 exec, 0x55")
    lstore(f"buffer_store_dwordx4 v[{T+4}:{T+7}], v11, {sWS}, s46 offen")
    A("s_mov_b32 exec_lo, 0xff"); A("s_mov_b32 exec_hi, 0xff")
    A(f"ds_write_b32 v8, v{YG} offset:{L_HV}")
    A("s_mov_b64 exec, -1")
    tst(24)
    A("s_branch L_a_wait")
    g.lab("L_a_ln")
    g.c("wave 5: gather h, layernorm, write xln pairs")
    A(f"v_lshlrev_b32 v7, 4, v{vLANE}"); A(f"v_add_u32 v7, {HG:#x}, v7")
    for i in range(8): A(f"v_mov_b32 v{T+i}, {sTAG}")
    A("s_mov_b32 exec_lo, -1"); A("s_mov_b32 exec_hi, 0x00ffffff")
    def hg_loads():
        A(f"buffer_load_dwordx4 v[{T}:{T+3}], v7, {sWS}, 0 offen sc1")
        A(f"buffer_load_dwordx4 v[{T+4}:{T+7}], v7, {sWS}, 0 offen offset:896 sc1")
    poll(g, hg_loads, [T+1, T+3, T+5, T+7], 9, 10)
    A("s_mov_b64 exec, -1")
    tst(25)
    A("s_mov_b32 s44, -1"); A("s_mov_b32 s45, 0x00ffffff")
    PK = [T, T+2, T+4, T+6]
    layernorm_pk(g, PK, T+8, [7, 8, 9, 10, 11, 3], "s[44:45]")
    A("s_mov_b64 exec, s[44:45]")
    for p in range(4):
        A(f"ds_write_b16 v{XA[2*p]}, v{PK[p]} offset:{L_XP}")
        A(f"ds_write_b16_d16_hi v{XA[2*p+1]}, v{PK[p]} offset:{L_XP}")
    A("s_mov_b64 exec, -1")
    g.lab("L_a_wait")
    A(f"v_lshrrev_b32 v7, 3, v{vLANE}"); A("v_lshlrev_b32 v7, 2, v7"); A(f"s_lshl_b32 s37, {sWAVE}, 7"); A("v_add_u32 v7, s37, v7")
    for i in range(8): A(f"v_mov_b32 v{AC+i}, 0")
    A("s_waitcnt lgkmcnt(0)")
    A("s_barrier")
    tst(26)
    for jj in range(4): A(f"ds_read_b32 v{XPR+jj}, v7 offset:{L_XP + 32*jj}")
    A(f"v_lshlrev_b32 v10, 2, v{vLANE}"); A(f"s_lshl_b32 s37, {sWAVE}, 8"); A("v_add_u32 v11, s37, v10")
    A("s_waitcnt lgkmcnt(0)")
    for jj in range(4):
        for i in range(4):
            A(f"v_dot2c_f32_bf16 v{AC+2*i}, v{W1R+8*jj+i}, v{XPR+jj}")
            A(f"v_dot2c_f32_bf16 v{AC+2*i+1}, v{W1R+8*jj+4+i}, v{XPR+jj}")
    r = reduce_scatter(g, [AC+i for i in range(8)], [32, 16, 8])[0]
    A(f"ds_write_b32 v11, v{r} offset:{L_AP}")
    A(f"v_and_b32 v8, 7, v{vLANE}"); A("v_lshlrev_b32 v8, 4, v8"); A(f"v_lshrrev_b32 v9, 3, v{vLANE}"); A("v_lshlrev_b32 v9, 1, v9"); A("v_add_u32 v8, v8, v9")
    A(f"s_lshr_b32 s37, {sWAVE}, 2"); A("s_lshl_b32 s37, s37, 6"); A("v_mov_b32 v9, s37")
    A("s_waitcnt lgkmcnt(0)")
    A("s_barrier")
    tst(27)
    for w in range(8): A(f"ds_read_b32 v{AC+w}, v10 offset:{L_AP + 256*w}")
    A(f"v_mov_b32 v{T+2}, 0"); A(f"v_mov_b32 v{T+3}, {sTAG}")
    A(f"v_cmp_gt_u32 vcc, 224, v{vC}")
    A("s_waitcnt lgkmcnt(0)")
    for st in (4, 2, 1):
        for i in range(st): A(f"v_add_f32 v{AC+i}, v{AC+i}, v{AC+i+st}")
    bf16r(g, AC, AC)
    A(f"v_add_f32 v{AC}, v{AC}, v{vB1}")
    bf16r(g, AC, AC)
    A(f"v_max_f32 v{AC}, 0, v{AC}")
    A(f"v_mul_f32 v{AC}, v{AC}, v{AC}")
    A(f"v_cvt_pk_bf16_f32 v{AC}, v{AC}, v{AC}")
    A(f"ds_write_b16 v8, v{AC} offset:{L_AL}")
    A("s_waitcnt lgkmcnt(0)")
    for i in range(4): A(f"ds_read_b128 v[{APR+4*i}:{APR+4*i+3}], v9 offset:{L_AL + 16*i}")
    for i in range(8): A(f"v_mov_b32 v{AC+i}, 0")
    A("s_waitcnt lgkmcnt(0)")
    for i in range(16):
        A(f"v_dot2c_f32_bf16 v{AC+(i&3)}, v{W2R+2*i}, v{APR+i}")
        A(f"v_dot2c_f32_bf16 v{AC+4+(i&3)}, v{W2R+2*i+1}, v{APR+i}")
    A("s_and_saveexec_b64 s[50:51], vcc"); g.nop(2)
    A(f"v_add_f32 v{AC}, v{AC}, v{AC+1}"); A(f"v_add_f32 v{AC+2}, v{AC+2}, v{AC+3}"); A(f"v_add_f32 v{AC+4}, v{AC+4}, v{AC+5}"); A(f"v_add_f32 v{AC+6}, v{AC+6}, v{AC+7}")
    A(f"v_add_f32 v{T}, v{AC}, v{AC+2}"); A(f"v_add_f32 v{T+1}, v{AC+4}, v{AC+6}")
    A("s_cbranch_execz L_a_nost")
    lstore(f"buffer_store_dwordx4 v[{T}:{T+3}], v{vFA}, {sWS}, 0 offen")
    g.lab("L_a_nost")
    A("s_mov_b64 exec, -1")
    tst(28)
    A(f"s_cmp_lg_u32 {sWAVE}, 7"); A("s_cbranch_scc1 L_end")
    g.c("wave 7: final reduce of the 56 partials for 16 columns")
    FG = R0
    A(f"v_lshlrev_b32 v7, 4, v{vLANE}")
    A(f"s_mul_i32 s37, {sRI}, {FSTR}"); A(f"s_add_u32 s37, s37, {FP:#x}"); A("v_add_u32 v7, s37, v7")
    A("s_movk_i32 s43, 0x1000")
    A(f"v_and_b32 v8, 7, v{vLANE}"); A("v_lshlrev_b32 v8, 1, v8"); A(f"v_lshrrev_b32 v11, 5, v{vLANE}"); A("v_add_u32 v8, v8, v11")
    A(f"v_lshlrev_b32 v11, 2, v8"); A(f"ds_read_b32 v{T+8}, v11 offset:{L_HV}")
    A(f"v_lshlrev_b32 v{T+9}, 1, v8")
    srd(g, 16, 84, 896)
    def mkf(k):
        so = "0" if k < 4 else "s43"
        off = f" offset:{1024*(k&3)}" if (k & 3) else ""
        return lambda: A(f"buffer_load_dwordx4 v[{FG+4*k}:{FG+4*k+3}], v7, {sWS}, {so} offen{off} sc1")
    if dbg == 5: A("s_mov_b32 s92, 39"); tst(30)
    selpoll(g, [(mkf(k), [FG+4*k+3]) for k in range(7)], 9, 10, dbgbase=40 if dbg == 5 else None)
    tst(29)
    def pka(x, y): A(f"v_pk_add_f32 v[{x}:{x+1}], v[{x}:{x+1}], v[{y}:{y+1}]")
    pka(FG, FG+4); pka(FG+8, FG+12); pka(FG+16, FG+20)
    pka(FG, FG+8); pka(FG+16, FG+24)
    pka(FG, FG+16)
    red16(FG, FG+1, 9)
    bf16r(g, FG, FG)
    A(f"v_add_f32 v{FG}, v{FG}, v{vB2}")
    bf16r(g, FG, FG)
    A("s_waitcnt lgkmcnt(0)")
    A(f"v_add_f32 v{FG}, v{FG}, v{T+8}")
    A(f"v_cvt_pk_bf16_f32 v{FG}, v{FG}, v{FG}")
    A(f"s_lshl_b32 s37, {sRI}, 5")
    A("s_mov_b32 exec_lo, 0xff"); A("s_mov_b32 exec_hi, 0xff")
    A(f"buffer_store_short v{FG}, v{T+9}, {sT1}, s37 offen")
    A(f"s_cmp_lg_u32 {sRI}, 0"); A("s_cbranch_scc1 L_end")
    A(f"s_add_u32 s38, {sEP}, 1"); A("v_mov_b32 v8, s38"); A("v_mov_b32 v9, 0")
    A("s_mov_b64 exec, 1")
    A(f"buffer_store_dword v8, v9, {sWS}, 0 offen sc1")
    g.lab("L_end")
    if dbg == 4:
        A("s_mov_b64 exec, -1")
        stamp(9)
    if dbg and dbg != 4:
        A("s_mov_b64 exec, -1")
        stamp(9)
        if dbg not in (3, 5): A("s_mov_b64 exec, 0xffff")
        A(f"s_lshl_b32 s37, s2, 3"); A(f"s_add_u32 s37, s37, {sWAVE}"); A(f"s_lshl_b32 s37, s37, {8 if dbg in (3, 5) else 6}"); A(f"s_add_u32 s37, s37, {DBG:#x}")
        A(f"v_lshlrev_b32 v7, 2, v{vLANE}")
        A(f"buffer_store_dword v{vSTAMP}, v7, {sWS}, s37 offen")
    g.lab("L_exit")
    A("s_endpgm")
    if GNT:
        for i, l in enumerate(g.L):
            if l.rstrip().endswith("sc1"):
                if "buffer_store" in l and (GNT & 1): g.L[i] = l + " nt"
                if "buffer_load" in l and (GNT & 2): g.L[i] = l + " nt"
    hdr = open("cdna_kernels/" + NAME + ".s.ref").read().split("\n")
    head = []
    for l in hdr:
        if l.startswith("; @launch"): head.append(f"; @launch grid=(256,1,1) block=(512,1,1) lds={LDS_BYTES}")
        elif l.startswith(";"): head.append(l)
        else: break
    return "\n".join(head) + f"""
.amdgcn_target "amdgcn-amd-amdhsa--gfx950"
.text
.globl {NAME}_kernel
.p2align 8
.type {NAME}_kernel,@function
{NAME}_kernel:
""" + DOC + "\n".join(g.L) + f"""
.section .rodata,"a"
.p2align 6
.amdhsa_kernel {NAME}_kernel
  .amdhsa_next_free_vgpr 256
  .amdhsa_next_free_sgpr 102
  .amdhsa_accum_offset 256
  .amdhsa_group_segment_fixed_size 0
  .amdhsa_kernarg_size 104
  .amdhsa_user_sgpr_count 2
  .amdhsa_user_sgpr_kernarg_segment_ptr 1
  .amdhsa_system_sgpr_workgroup_id_x 1
  .amdhsa_float_denorm_mode_32 3
.end_amdhsa_kernel
"""
if __name__ == "__main__":
    out = sys.argv[1] if len(sys.argv) > 1 else "k/v3.s"
    kw = {}
    for a in sys.argv[2:]:
        k, v = a.split("="); kw[k] = int(v)
    open(out, "w").write(generate(**kw))
    open(out.replace(".s", "_dbg.s"), "w").write(generate(dbg=1, **kw))
    open(out.replace(".s", "_lt.s"), "w").write(generate(dbg=2, **kw))
    open(out.replace(".s", "_st.s"), "w").write(generate(dbg=3, **kw))
    open(out.replace(".s", "_hb.s"), "w").write(generate(dbg=4, **kw))
    open(out.replace(".s", "_tl.s"), "w").write(generate(dbg=5, **kw))
    print("wrote", out)
```

```python
import struct, sys, math
NAME = "sequential_preLN__mha_block_cached__dense_activation_squared_relu__decode"
def f2u(x): return struct.unpack("<I", struct.pack("<f", x))[0]
CSC = f2u(0.0625 * math.log2(math.e)); EPS = f2u(1e-5); INVN = f2u(1.0 / 448.0); NEG_BIG = f2u(-3.0e38)

EPOCH = 0x0
ST = 0x200000
OP = 0x10000
HG = 0x98000
FP = 0x9A000
XG = 0x9800
QP = 0xD0000
YSTR = 4096 + 128
FSTR = 7168 + 128
YP = 0x100000
CNT = 0x1E8000
DBG = 0x300000
L_Q = 0x0; L_TAG = 0x200; L_ST = 0x400; L_OB = 0x480; L_CL = 0x4C0; L_HV = 0x600; L_AL = 0x500; L_O = 0x800; L_HP = 0x2800
L_XP = 0x2A00
L_X = 0x3000
L_AP = 0x3800
L_YW = 0x4000; L_W1 = 0x8000; L_W2 = 0x16000
LDS_BYTES = 0x26000

DOC = '''; ---------------------------------------------------------------------------------------------
;  * the first 22 items per workgroup are assigned statically, the rest is claimed from a per-head counter
;  * hand-offs between workgroups use 16-B granules {payload, tag}; the tag is derived from an epoch word
;  * tail: every workgroup publishes (o partial, max, sum); 32 role workgroups (id % 8 == 0) combine the
; ---------------------------------------------------------------------------------------------
'''

class Gen:
    def __init__(self): self.L = []; self.uid = 0
    def A(self, s): self.L.append("    " + s)
    def lab(self, s): self.L.append(s + ":")
    def c(self, s): self.L.append("    ; " + s)
    def new(self, p): self.uid += 1; return f"L_{p}_{self.uid}"
    def nop(self, n):
        if n > 0: self.A(f"s_nop {n-1}")

sKS = "s[4:7]"; sVS = "s[8:11]"; sWS = "s[12:15]"; sT1 = "s[16:19]"; sT2 = "s[20:23]"
sWAVE = "s24"; sH = "s25"; sS = "s26"; sTAG = "s27"; sEP = "s28"; sBASE = "s29"; sBUD = "s30"
sLAM = "s31"; sZ = "s32"; sC = "s33"; sSTEP = "s34"; sROLE = "s35"; sRI = "s36"
sGO = "s70"; sI0 = "s71"; sLIM = "s74"; sDC = "s75"; sBASE0 = "s59"; sMK = {2: ("s60", "s61"), 3: ("s62", "s63")}; sMC = {2: ("s76", "s77"), 3: ("s78", "s79")}
sNXT = "s52"; sV2 = "s53"; sV3 = "s54"; sLAM0 = "s55"; sROT = "s56"
vLANE = 1; vOFF = 2; vM = 4; vMC = 5; vL = 6
Q = 16; ACC = 32; RING = 96; TMP = 224
vXH = 64; vB2 = 65; vB1 = 66; vSTAMP = 251
sLOC = "s57"
R0 = RING
D = 4

def srd(g, dst, lo, nbytes):
    g.A(f"s_mov_b32 s{dst}, s{lo}"); g.A(f"s_mov_b32 s{dst+1}, s{lo+1}")
    g.A(f"s_mov_b32 s{dst+2}, {nbytes:#x}"); g.A(f"s_mov_b32 s{dst+3}, 0x20000")
def bf16r(g, dst, src, tmp=None):
    tmp = dst if tmp is None else tmp
    g.A(f"v_cvt_pk_bf16_f32 v{tmp}, v{src}, v{src}")
    g.A(f"v_and_b32 v{dst}, 0xffff0000, v{tmp}")
def dpp(g, op, dst, src0, src1, ctrl, rm=0xf, bm=0xf):
    g.A(f"{op}_dpp v{dst}, v{src0}, v{src1} {ctrl} row_mask:{rm:#x} bank_mask:{bm:#x}")
def wave_sum2(g, a, b, sa, sb):
    g.nop(2)
    for ctrl in ("row_ror:8", "row_ror:4", "row_ror:2", "row_ror:1"):
        dpp(g, "v_add_f32", a, a, a, ctrl); dpp(g, "v_add_f32", b, b, b, ctrl); g.nop(1)
    dpp(g, "v_add_f32", a, a, a, "row_bcast:15", rm=0xa); dpp(g, "v_add_f32", b, b, b, "row_bcast:15", rm=0xa); g.nop(1)
    dpp(g, "v_add_f32", a, a, a, "row_bcast:31", rm=0xc); dpp(g, "v_add_f32", b, b, b, "row_bcast:31", rm=0xc); g.nop(1)
    g.A(f"v_readlane_b32 {sa}, v{a}, 63"); g.A(f"v_readlane_b32 {sb}, v{b}, 63")
    g.nop(2)
def layernorm(g, vals, t, masked=None):
    c, s1, s2, y, mean, rs = t[:6]
    g.A(f"v_readfirstlane_b32 s37, v{vals[0]}")
    g.A(f"v_mov_b32 v{s1}, 0"); g.A(f"v_mov_b32 v{s2}, 0")
    if masked: g.A(f"s_mov_b64 exec, {masked}")
    for v in vals:
        g.A(f"v_subrev_f32 v{y}, s37, v{v}")
        g.A(f"v_add_f32 v{s1}, v{s1}, v{y}")
        g.A(f"v_fmac_f32 v{s2}, v{y}, v{y}")
    if masked: g.A("s_mov_b64 exec, -1")
    wave_sum2(g, s1, s2, "s38", "s39")
    g.A(f"s_mov_b32 s40, {INVN:#x}")
    g.A(f"v_mul_f32 v{y}, s38, v{rs}") if False else None
    g.A(f"v_mov_b32 v{y}, s38"); g.A(f"v_mov_b32 v{s2}, s39")
    g.A(f"v_mul_f32 v{y}, s40, v{y}"); g.A(f"v_mul_f32 v{s2}, s40, v{s2}")
    g.A(f"v_add_f32 v{mean}, s37, v{y}")
    g.A(f"v_fma_f32 v{s2}, -v{y}, v{y}, v{s2}")
    g.A(f"v_max_f32 v{s2}, 0, v{s2}")
    bf16r(g, mean, mean)
    bf16r(g, s2, s2)
    g.A(f"v_add_f32 v{s2}, {EPS:#x}, v{s2}")
    bf16r(g, s2, s2)
    g.A(f"v_sqrt_f32 v{s2}, v{s2}")
    for v in vals: g.A(f"v_sub_f32 v{v}, v{v}, v{mean}")
    bf16r(g, s2, s2)
    g.A(f"v_rcp_f32 v{rs}, v{s2}")
    for v in vals: bf16r(g, v, v)
    for v in vals:
        g.A(f"v_mul_f32 v{y}, v{v}, v{rs}")
        g.A(f"v_fma_f32 v{v}, -v{y}, v{s2}, v{v}")
        g.A(f"v_fma_f32 v{v}, v{v}, v{rs}, v{y}")
    for v in vals: bf16r(g, v, v)
def layernorm_pk(g, pk, w, t, masked):
    c, s1, s2, y, mean, rs = t[:6]
    for i in range(4):
        g.A(f"v_lshlrev_b32 v{w+2*i}, 16, v{pk[i]}"); g.A(f"v_and_b32 v{w+2*i+1}, 0xffff0000, v{pk[i]}")
    g.A(f"v_readfirstlane_b32 s37, v{w}")
    g.A(f"v_mov_b32 v{s1}, 0"); g.A(f"v_mov_b32 v{s2}, 0")
    g.A(f"s_mov_b64 exec, {masked}")
    for i in range(8):
        g.A(f"v_subrev_f32 v{y}, s37, v{w+i}")
        g.A(f"v_add_f32 v{s1}, v{s1}, v{y}")
        g.A(f"v_fmac_f32 v{s2}, v{y}, v{y}")
    g.A("s_mov_b64 exec, -1")
    wave_sum2(g, s1, s2, "s38", "s39")
    g.A(f"s_mov_b32 s40, {INVN:#x}")
    g.A(f"v_mov_b32 v{y}, s38"); g.A(f"v_mov_b32 v{s2}, s39")
    g.A(f"v_mul_f32 v{y}, s40, v{y}"); g.A(f"v_mul_f32 v{s2}, s40, v{s2}")
    g.A(f"v_add_f32 v{mean}, s37, v{y}")
    g.A(f"v_fma_f32 v{s2}, -v{y}, v{y}, v{s2}")
    g.A(f"v_cvt_pk_bf16_f32 v{mean}, v{mean}, v{mean}")
    g.A(f"v_max_f32 v{s2}, 0, v{s2}")
    g.A(f"v_and_b32 v{mean}, 0xffff0000, v{mean}")
    bf16r(g, s2, s2)
    g.A(f"v_add_f32 v{s2}, {EPS:#x}, v{s2}")
    for i in range(0, 4): g.A(f"v_sub_f32 v{w+i}, v{w+i}, v{mean}")
    bf16r(g, s2, s2)
    g.A(f"v_sqrt_f32 v{s2}, v{s2}")
    for i in range(4, 8): g.A(f"v_sub_f32 v{w+i}, v{w+i}, v{mean}")
    bf16r(g, s2, s2)
    g.A(f"v_rcp_f32 v{rs}, v{s2}")
    for i in range(4): g.A(f"v_cvt_pk_bf16_f32 v{pk[i]}, v{w+2*i}, v{w+2*i+1}")
    for i in range(4):
        g.A(f"v_lshlrev_b32 v{w+2*i}, 16, v{pk[i]}"); g.A(f"v_and_b32 v{w+2*i+1}, 0xffff0000, v{pk[i]}")
    for i in range(8): g.A(f"v_mul_f32 v{w+8+i}, v{w+i}, v{rs}")
    for i in range(8): g.A(f"v_fma_f32 v{w+i}, -v{w+8+i}, v{s2}, v{w+i}")
    for i in range(8): g.A(f"v_fma_f32 v{w+i}, v{w+i}, v{rs}, v{w+8+i}")
    for i in range(4): g.A(f"v_cvt_pk_bf16_f32 v{pk[i]}, v{w+2*i}, v{w+2*i+1}")
def reduce_scatter(g, regs, stages, pre=3):
    regs = list(regs)
    g.nop(pre)
    for st in stages:
        h = len(regs) // 2
        lo, hi = regs[:h], regs[h:]
        if st in (32, 16):
            for a, b in zip(lo, hi): g.A(f"v_permlane{st}_swap_b32 v{a}, v{b}")
            g.nop(1 if h > 1 else 2)
            if h >= 2 and lo[0] % 2 == 0 and hi[0] % 2 == 0 and lo == list(range(lo[0], lo[0] + h)) and hi == list(range(hi[0], hi[0] + h)):
                for j in range(0, h, 2): g.A(f"v_pk_add_f32 v[{lo[j]}:{lo[j]+1}], v[{lo[j]}:{lo[j]+1}], v[{hi[j]}:{hi[j]+1}]")
                g.nop(2)
            else:
                for a, b in zip(lo, hi): g.A(f"v_add_f32 v{a}, v{a}, v{b}")
                g.nop(max(0, 2 - (h - 1 - h // 2)))
        elif st == 8:
            for a, b in zip(lo, hi): dpp(g, "v_add_f32", a, a, a, "row_ror:8", bm=0x3)
            for a, b in zip(lo, hi): dpp(g, "v_add_f32", a, b, b, "row_ror:8", bm=0xc)
            g.nop(2)
        elif st == 4:
            for a, b in zip(lo, hi): dpp(g, "v_add_f32", a, a, a, "row_shl:4", bm=0x5)
            for a, b in zip(lo, hi): dpp(g, "v_add_f32", a, b, b, "row_shr:4", bm=0xa)
            g.nop(2)
        regs = lo
    return regs
def allreduce_low(g, r, bits, op="v_add_f32"):
    for b in bits:
        ctrl = {0: "quad_perm:[1,0,3,2]", 1: "quad_perm:[2,3,0,1]", 2: "row_half_mirror"}[b]
        dpp(g, op, r, r, r, ctrl); g.nop(2)
def allreduce_high(g, regs, tmps, op="v_add_f32"):
    if not isinstance(regs, list): regs = [regs]; tmps = [tmps]
    n = len(regs)
    for r in regs: dpp(g, op, r, r, r, "row_ror:8")
    for st in (16, 32):
        for r, t in zip(regs, tmps): g.A(f"v_mov_b32 v{t}, v{r}")
        g.nop(max(0, 3 - n) if n > 1 else 2)
        for r, t in zip(regs, tmps): g.A(f"v_permlane{st}_swap_b32 v{r}, v{t}")
        g.nop(1)
        for r, t in zip(regs, tmps): g.A(f"{op} v{r}, v{r}, v{t}")
    g.nop(2)
def poll(g, emit_loads, tagregs, t0, t1, sleep=0):
    lp = g.new("poll"); ok = g.new("ok")
    g.lab(lp)
    emit_loads()
    g.A("s_waitcnt vmcnt(0)")
    g.A(f"v_xor_b32 v{t0}, {sTAG}, v{tagregs[0]}")
    for t in tagregs[1:]:
        g.A(f"v_xor_b32 v{t1}, {sTAG}, v{t}")
        g.A(f"v_or_b32 v{t0}, v{t0}, v{t1}")
    g.A(f"v_cmp_ne_u32 vcc, 0, v{t0}")
    g.A(f"s_cbranch_vccz {ok}")
    if sleep: g.A(f"s_sleep {sleep}")
    g.A(f"s_sub_u32 {sBUD}, {sBUD}, 1")
    g.A(f"s_cbranch_scc0 {lp}")
    g.A(f"s_mov_b32 {sBUD}, 0")
    g.lab(ok)
def selpoll(g, groups, t0, t1, sflags="s49", first_issued=False, sleep=0, dbgbase=None):
    n = len(groups)
    lp = g.new("sp"); ok = g.new("spok"); chk = g.new("spchk")
    g.A(f"s_mov_b32 {sflags}, {(1 << n) - 1}")
    if first_issued: g.A(f"s_branch {chk}")
    g.lab(lp)
    for i, (ld, tags) in enumerate(groups):
        sk = g.new("sk")
        g.A(f"s_bitcmp1_b32 {sflags}, {i}"); g.A(f"s_cbranch_scc0 {sk}")
        ld()
        g.lab(sk)
    g.lab(chk)
    g.A("s_waitcnt vmcnt(0)")
    if dbgbase is not None:
        g.A("s_memrealtime s[90:91]"); g.A("s_waitcnt lgkmcnt(0)")
        g.A("s_add_u32 s92, s92, 1"); g.A(f"s_min_u32 m0, s92, {dbgbase+7}"); g.A("s_nop 0")
        g.A(f"v_writelane_b32 v{vSTAMP}, s90, m0")
    for i, (ld, tags) in enumerate(groups):
        sk = g.new("sc")
        g.A(f"s_bitcmp1_b32 {sflags}, {i}"); g.A(f"s_cbranch_scc0 {sk}")
        if len(tags) == 1:
            g.A(f"v_cmp_ne_u32 vcc, {sTAG}, v{tags[0]}")
        else:
            g.A(f"v_xor_b32 v{t0}, {sTAG}, v{tags[0]}")
            for t in tags[1:]:
                g.A(f"v_xor_b32 v{t1}, {sTAG}, v{t}"); g.A(f"v_or_b32 v{t0}, v{t0}, v{t1}")
            g.A(f"v_cmp_ne_u32 vcc, 0, v{t0}")
        g.A(f"s_cbranch_vccnz {sk}")
        g.A(f"s_bitset0_b32 {sflags}, {i}")
        g.lab(sk)
    g.A(f"s_cmp_eq_u32 {sflags}, 0"); g.A(f"s_cbranch_scc1 {ok}")
    if sleep: g.A(f"s_sleep {sleep}")
    g.A(f"s_sub_u32 {sBUD}, {sBUD}, 1")
    g.A(f"s_cbranch_scc0 {lp}")
    g.A(f"s_mov_b32 {sBUD}, 0")
    g.lab(ok)
def pipepoll(g, n, emit_load, final, setA, setB, tagoffs, t0, scratch, stagger, first_in_final=False, sflags="s49"):
    done = g.new("ppd"); lp = g.new("ppl")
    def check(base, copy):
        for i in range(n):
            sk = g.new("pc")
            g.A(f"s_bitcmp1_b32 {sflags}, {i}"); g.A(f"s_cbranch_scc0 {sk}")
            r = base + 4*i
            if len(tagoffs) == 1:
                g.A(f"v_cmp_ne_u32 vcc, {sTAG}, v{r+tagoffs[0]}")
            else:
                g.A(f"v_xor_b32 v{t0}, {sTAG}, v{r+tagoffs[0]}"); g.A(f"v_xor_b32 v{t0+1}, {sTAG}, v{r+tagoffs[1]}")
                g.A(f"v_or_b32 v{t0}, v{t0}, v{t0+1}"); g.A(f"v_cmp_ne_u32 vcc, 0, v{t0}")
            g.A(f"s_cbranch_vccnz {sk}")
            g.A(f"s_bitset0_b32 {sflags}, {i}")
            if copy:
                for e in range(4):
                    if e not in tagoffs: g.A(f"v_mov_b32 v{final+4*i+e}, v{r+e}")
            g.lab(sk)
    def issue(base):
        for i in range(n):
            dm = g.new("pi"); nx = g.new("pn")
            g.A(f"s_bitcmp1_b32 {sflags}, {i}"); g.A(f"s_cbranch_scc0 {dm}")
            emit_load(i, base + 4*i); g.A(f"s_branch {nx}")
            g.lab(dm)
            g.A("s_mov_b64 exec, 1"); g.A(f"buffer_load_dword v{scratch}, v{scratch+1}, {sWS}, 0 offen"); g.A("s_mov_b64 exec, -1")
            g.lab(nx)
    g.A(f"s_mov_b32 {sflags}, {(1 << n) - 1}")
    g.A(f"v_mov_b32 v{scratch+1}, 0x7ff00000")
    if first_in_final:
        g.A("s_waitcnt vmcnt(0)")
        check(final, False)
        g.A(f"s_cmp_eq_u32 {sflags}, 0"); g.A(f"s_cbranch_scc1 {done}")
    issue(setA)
    if stagger: g.A(f"s_sleep {stagger}")
    g.lab(lp)
    issue(setB)
    g.A(f"s_waitcnt vmcnt({n})")
    check(setA, True)
    g.A(f"s_cmp_eq_u32 {sflags}, 0"); g.A(f"s_cbranch_scc1 {done}")
    issue(setA)
    g.A(f"s_waitcnt vmcnt({n})")
    check(setB, True)
    g.A(f"s_cmp_eq_u32 {sflags}, 0"); g.A(f"s_cbranch_scc1 {done}")
    g.A(f"s_sub_u32 {sBUD}, {sBUD}, 1")
    g.A(f"s_cbranch_scc0 {lp}")
    g.A(f"s_mov_b32 {sBUD}, 0")
    g.lab(done)
def perm_pair(g, a, b, tmp):
    g.A(f"v_perm_b32 v{tmp}, v{b}, v{a}, s41")
    g.A(f"v_perm_b32 v{b}, v{b}, v{a}, s42")
    g.A(f"v_mov_b32 v{a}, v{tmp}")

def generate(dbg=False, WPM=0, LP=3, SK=0, DD=1, B0=1, TLBW=0, X5=1, ADF=0, HALF=0, RWX=16, ROT=72, BAR=1, H1SLEEP=0, PACE=4, NS=21, COMP=14, QPRE=3, PRE=4, QD=0, H1N=14, CPF=16, CPFN=3, SD=0, NOCOMP=0, FAKE=0, LOOK=1, CSTR=4352, AFL=2, GNT=0, TOUCH=0, NOLOC=0, TPF=0, PT=3, PTD=0, PP=3, PPS1=5, PPS2=7):
    g = Gen(); A = g.A
    HF = 512 - HALF
    NIT = HF + 2*HALF
    def stepstamp():
        if dbg == 3:
            A("s_memrealtime s[90:91]"); A("s_waitcnt lgkmcnt(0)")
            A("s_add_u32 s92, s92, 1"); A("s_min_u32 m0, s92, 63"); A("s_nop 0")
            A(f"v_writelane_b32 v{vSTAMP}, s90, m0")
    def hstamp(slot, cond_id, wave=0):
        if dbg == 4:
            l = g.new("hs")
            A(f"s_cmp_lg_u32 s2, {cond_id}"); A(f"s_cbranch_scc1 {l}")
            A(f"s_cmp_lg_u32 {sWAVE}, {wave}"); A(f"s_cbranch_scc1 {l}")
            A("s_memrealtime s[90:91]"); A("s_waitcnt lgkmcnt(0)")
            A("s_mov_b32 s96, s86"); A("s_mov_b32 s97, s87"); A("s_mov_b32 s98, 256"); A("s_mov_b32 s99, 0x20000")
            A(f"v_mov_b32 v252, s90"); A(f"v_mov_b32 v253, {4*slot}")
            A("s_mov_b64 s[92:93], exec"); A("s_mov_b64 exec, 1")
            A("buffer_store_dword v252, v253, s[96:99], 0 offen")
            A("s_mov_b64 exec, s[92:93]")
            g.lab(l)
    def tst(i):
        if dbg == 5:
            A("s_memrealtime s[90:91]"); A("s_waitcnt lgkmcnt(0)")
            A(f"v_writelane_b32 v{vSTAMP}, s90, {i}")
    def code_pf(wave, lab_from, lab_to, n, vd):
        l = g.new("cpf"); lp = g.new("cpc")
        A(f"s_cmp_lg_u32 {sWAVE}, {wave}"); A(f"s_cbranch_scc1 {l}")
        A("s_getpc_b64 s[96:97]")
        g.lab(lp)
        A(f"s_add_u32 s96, s96, {lab_from}-{lp}"); A("s_addc_u32 s97, s97, 0")
        A(f"v_lshlrev_b32 v3, 7, v{vLANE}")
        A(f"s_mov_b32 s98, {lab_to}-{lab_from}")
        le = g.new("cpe")
        for i in range(n):
            A("v_cmp_gt_u32 vcc, s98, v3"); A("s_and_b64 exec, exec, vcc")
            A(f"s_cbranch_execz {le}")
            A(f"global_load_dword v{vd}, v3, s[96:97]")
            A("v_add_u32 v3, 0x2000, v3")
        g.lab(le)
        A("s_mov_b64 exec, -1")
        g.lab(l)
    def stamp(i):
        if dbg == 5:
            if i in (3, 9): tst(i)
            return
        if dbg == 4:
            if i == 2:
                hstamp(2, 0); hstamp(3, 255)
            if i == 3:
                hstamp(4, 0); hstamp(5, 77); hstamp(6, 130); hstamp(7, 255)
            if i == 9:
                hstamp(8, 3); hstamp(9, 0); hstamp(10, 19)
            return
        if dbg == 3 and i in (3, 9):
            A("s_memrealtime s[90:91]"); A("s_waitcnt lgkmcnt(0)")
            A(f"v_writelane_b32 v{vSTAMP}, s90, {i}")
        if dbg == 1 or (dbg == 2 and i in (2, 3, 9, 4, 5)) :
            A("s_memrealtime s[90:91]"); A("s_waitcnt lgkmcnt(0)")
            A(f"v_writelane_b32 v{vSTAMP}, s90, {i}")
    A("s_cmp_ge_u32 s2, 256")
    A("s_cbranch_scc1 L_exit")
    if dbg: A("s_memrealtime s[94:95]")
    A("s_load_dwordx16 s[64:79], s[0:1], 0")
    A("s_load_dwordx8 s[80:87], s[0:1], 64")
    A("s_load_dwordx2 s[88:89], s[0:1], 96")
    A(f"v_and_b32 v{vLANE}, 63, v0")
    if CPF:
        g.c("code prefetch into L2 (wave 7 of the first CPF workgroups)")
        A(f"s_cmp_ge_u32 s2, {CPF}"); A("s_cbranch_scc1 L_nocpf")
        A("v_cmp_lt_u32 vcc, 447, v0"); A("s_cbranch_vccz L_nocpf")
        A("s_getpc_b64 s[96:97]")
        g.lab("L_pc")
        A(f"v_lshlrev_b32 v3, 7, v{vLANE}")
        A("s_mov_b32 s98, L_exit-L_pc")
        for i in range(CPFN):
            A("v_cmp_gt_u32 vcc, s98, v3"); A("s_and_b64 exec, exec, vcc")
            A(f"s_cbranch_execz L_cpfend")
            A(f"global_load_dword v{252+(i&3)}, v3, s[96:97]")
            A("v_add_u32 v3, 0x2000, v3")
        g.lab("L_cpfend")
        A("s_mov_b64 exec, -1")
        g.lab("L_nocpf")
    A("v_lshrrev_b32 v3, 6, v0")
    A(f"v_lshrrev_b32 v7, 3, v{vLANE}")
    A(f"v_readfirstlane_b32 {sWAVE}, v3")
    A("v_lshlrev_b32 v7, 9, v7")
    A(f"v_and_b32 v{vOFF}, 7, v{vLANE}")
    A(f"v_lshlrev_b32 v{vOFF}, 4, v{vOFF}")
    A(f"v_add_u32 v{vOFF}, v{vOFF}, v7")
    A(f"s_lshr_b32 {sH}, s2, 4")
    A(f"s_and_b32 {sS}, s2, 15")
    A(f"s_lshl_b32 {sBASE}, {sH}, 24"); A(f"s_mov_b32 {sBASE0}, {sBASE}")
    A(f"s_mul_i32 {sROT}, {sH}, {ROT}")
    if WPM == 0: A(f"s_mov_b32 {sLAM0}, {sWAVE}")
    else:
        if WPM == 1: A(f"s_add_u32 {sLAM0}, {sWAVE}, {sS}")
        if WPM == 2: A(f"s_add_u32 {sLAM0}, {sWAVE}, {sH}")
        if WPM == 3: A(f"s_add_u32 {sLAM0}, {sWAVE}, {sH}"); A(f"s_add_u32 {sLAM0}, {sLAM0}, {sS}")
        if WPM == 4: A(f"s_lshr_b32 {sLAM0}, s2, 3"); A(f"s_xor_b32 {sLAM0}, {sLAM0}, {sWAVE}")
        if WPM == 5: A(f"s_lshl_b32 {sLAM0}, {sS}, 1"); A(f"s_add_u32 {sLAM0}, {sLAM0}, {sWAVE}")
        A(f"s_and_b32 {sLAM0}, {sLAM0}, 7")
    A(f"s_mov_b32 {sZ}, 0")
    A(f"s_mov_b32 {sC}, {CSC:#x}")
    A(f"s_mov_b32 {sBUD}, 0x40000")
    A("s_waitcnt lgkmcnt(0)")
    if dbg and dbg != 4: A(f"v_mov_b32 v{vSTAMP}, 0"); A(f"v_writelane_b32 v{vSTAMP}, s94, 0")
    srd(g, 4, 66, 0x10000000); srd(g, 8, 68, 0x10000000); srd(g, 12, 88, 0x40000000)
    hstamp(0, 0); hstamp(1, 255)
    def phys_tile(sitem):
        if LP:
            A(f"s_and_b32 s46, {sitem}, {(1 << LP) - 1}"); A(f"s_lshl_b32 s46, s46, {9 - LP}")
            A(f"s_lshr_b32 s47, {sitem}, {LP}"); A("s_add_u32 s46, s46, s47")
            A(f"s_add_u32 s46, s46, {sROT}")
        else:
            A(f"s_add_u32 s46, {sitem}, {sROT}")
        A("s_and_b32 s46, s46, 511"); A("s_lshl_b32 s46, s46, 3"); A(f"s_add_u32 s46, s46, {sLAM0}"); A("s_lshl_b32 s46, s46, 12")
        A(f"s_add_u32 s46, s46, {sBASE}")
    def tile_addr(vdst):
        A(f"s_mul_i32 s49, {sZ}, {SK}"); A(f"s_add_u32 s49, s49, {sS}"); A("s_and_b32 s49, s49, 15")
        A(f"s_lshl_b32 s47, {sZ}, 4"); A("s_add_u32 s49, s49, s47")
        phys_tile("s49")
        A(f"v_add_u32 v{vdst}, s46, v{vOFF}")
        A(f"s_add_u32 {sZ}, {sZ}, 1")
    def tile_addr_dyn(vdst, smk):
        phys_tile(sNXT)
        A(f"s_cmp_lt_u32 {sNXT}, {NIT}")
        A(f"s_cselect_b32 s46, s46, 0x80000000")
        A(f"s_cselect_b32 {smk[0]}, -1, 1"); A(f"s_cselect_b32 {smk[1]}, -1, 0")
        A(f"v_add_u32 v{vdst}, s46, v{vOFF}")
    def loads(b, srdn, va):
        for j in range(4):
            off = f" offset:{j*128}" if j else ""
            A(f"buffer_load_dwordx4 v[{b+4*j}:{b+4*j+3}], v{va}, {srdn}, 0 offen{off} nt")
    VA = [12, 13, 14, 15]
    KB = [RING + 32*k for k in range(D)]; VB = [RING + 32*k + 16 for k in range(D)]
    if X5:
        KB.append(64); VB.append(80); VA.append(3)
    DP = D + (1 if X5 else 0)
    A(f"s_cmp_lg_u32 {sWAVE}, 0")
    A("s_cbranch_scc1 L_others")
    g.c("wave0: x, epoch, wq partial loads (64 cols x 112 rows)")
    A("s_setprio 3")
    srd(g, 16, 64, 896); srd(g, 20, 70, 448*8192)
    A("v_mov_b32 v8, 0")
    A(f"v_lshlrev_b32 v9, 1, v{vLANE}")
    XR = [88+k for k in range(7)]
    for k in range(7): A(f"buffer_load_ushort v{XR[k]}, v9, {sT1}, 0 offen offset:{128*k} nt")
    A(f"buffer_load_dword v95, v8, {sWS}, 0 offen sc1")
    A(f"s_mul_i32 s44, {sH}, {CSTR}"); A(f"s_add_u32 s44, s44, {CNT:#x}")
    A(f"s_cmp_lg_u32 {sS}, 0"); A("s_cbranch_scc1 L_nozero")
    A("s_mov_b64 exec, 1")
    A(f"buffer_store_dword v8, v8, {sWS}, s44 offen sc1")
    A("s_mov_b64 exec, -1")
    g.lab("L_nozero")
    A("s_and_b32 s43, s2, 3")
    A("s_lshr_b32 s44, s2, 2"); A("s_lshl_b32 s44, s44, 7")
    A(f"s_mul_i32 s45, s43, {112*8192}"); A("s_add_u32 s44, s44, s45")
    A(f"v_lshrrev_b32 v10, 3, v{vLANE}"); A("v_lshlrev_b32 v10, 13, v10")
    A(f"v_and_b32 v11, 7, v{vLANE}"); A("v_lshlrev_b32 v11, 4, v11"); A("v_add3_u32 v10, v10, v11, s44")
    WQ = 32
    for j in range(14):
        A(f"s_mov_b32 s45, {j*8*8192}")
        A(f"buffer_load_dwordx4 v[{WQ+4*j}:{WQ+4*j+3}], v10, {sT2}, s45 offen nt")
    if TOUCH & 2:
        A(f"v_lshlrev_b32 v11, 4, v{vLANE}")
        A(f"s_lshl_b32 s44, {sH}, 13"); A(f"s_add_u32 s44, s44, {QP:#x}")
        for kq in range(8):
            A(f"buffer_load_dwordx4 v[{TMP+20}:{TMP+23}], v11, {sWS}, s44 offen sc1")
            A("s_add_u32 s44, s44, 1024")
    if B0: A("s_barrier")
    g.c("wave0: layernorm(x), q partial")
    A("s_waitcnt vmcnt(15)")
    stamp(13)
    for k in range(7): A(f"v_lshlrev_b32 v{XR[k]}, 16, v{XR[k]}")
    layernorm(g, XR, [TMP, TMP+1, TMP+2, TMP+3, TMP+4, TMP+5])
    A(f"v_lshlrev_b32 v9, 2, v{vLANE}")
    for k in range(7): A(f"ds_write_b32 v9, v{XR[k]} offset:{L_X + 256*k}")
    A("s_mul_i32 s45, s43, 448")
    A(f"v_lshrrev_b32 v9, 3, v{vLANE}"); A("v_lshlrev_b32 v9, 2, v9"); A("v_add_u32 v9, s45, v9")
    A("s_waitcnt lgkmcnt(0)")
    XJ = [TMP + j for j in range(14)]
    for j in range(14): A(f"ds_read_b32 v{XJ[j]}, v9 offset:{L_X + 32*j}")
    A(f"s_waitcnt vmcnt({14 + (8 if TOUCH & 2 else 0)})")
    A(f"v_readfirstlane_b32 {sEP}, v95")
    for i in range(8): A(f"v_mov_b32 v{Q+i}, 0")
    A(f"s_mul_i32 {sTAG}, {sEP}, 0x9E3779B1")
    A(f"s_add_u32 {sTAG}, {sTAG}, 0x85EBCA6B")
    A("s_waitcnt vmcnt(0) lgkmcnt(0)")
    stamp(14)
    for j in range(14):
        xl = TMP + 14 + (j & 1)
        A(f"v_lshrrev_b32 v{xl}, 16, v{XJ[j]}")
        for i in range(4):
            A(f"v_dot2c_f32_bf16 v{Q+2*i}, v{WQ+4*j+i}, v{xl}")
            A(f"v_dot2c_f32_bf16 v{Q+2*i+1}, v{WQ+4*j+i}, v{XJ[j]}")
    r = reduce_scatter(g, [Q+i for i in range(8)], [32, 16, 8])[0]
    A(f"v_mov_b32_dpp v{r+2}, v{r} row_ror:8 row_mask:0xf bank_mask:0xf")
    A(f"v_mov_b32 v{r+1}, {sTAG}"); A(f"v_mov_b32 v{r+3}, {sTAG}")
    A(f"v_and_b32 v9, 7, v{vLANE}"); A("v_lshlrev_b32 v9, 6, v9")
    A(f"v_lshrrev_b32 v11, 3, v{vLANE}"); A("v_lshlrev_b32 v11, 3, v11"); A("v_add_u32 v9, v9, v11")
    A(f"s_lshl_b32 s44, {sH}, 13"); A("s_lshl_b32 s45, s43, 11"); A("s_add_u32 s44, s44, s45")
    A(f"s_lshr_b32 s45, {sS}, 2"); A("s_lshl_b32 s45, s45, 9"); A("s_add_u32 s44, s44, s45"); A(f"s_add_u32 s44, s44, {QP:#x}")
    A("s_mov_b32 exec_lo, 0x00ff00ff"); A("s_mov_b32 exec_hi, 0x00ff00ff")
    A(f"buffer_store_dwordx4 v[{r}:{r+3}], v9, {sWS}, s44 offen sc1")
    A("s_mov_b64 exec, -1")
    stamp(1)
    g.c("wave0: gather q partials of own head")
    A(f"v_lshlrev_b32 v9, 4, v{vLANE}")
    A(f"s_lshl_b32 s44, {sH}, 13"); A(f"s_add_u32 s44, s44, {QP:#x}")
    A("v_add_u32 v9, s44, v9")
    A(f"v_lshlrev_b32 v11, 4, v{vLANE}")
    for i in range(4): A(f"v_mov_b32 v{TMP+16+i}, 0")
    A(f"ds_write_b128 v11, v[{TMP+16}:{TMP+19}] offset:{L_XP}")
    for k in range(QPRE):
        tile_addr(VA[k]); loads(KB[k], sKS, VA[k]); loads(VB[k], sVS, VA[k])
    if QD: A(f"s_sleep {QD}")
    QG = 32
    def q_loads():
        for kq in range(4):
            A(f"s_movk_i32 s45, {kq*2048}")
            for i in range(2):
                off = f" offset:{i*1024}" if i else ""
                A(f"buffer_load_dwordx4 v[{QG+8*kq+4*i}:{QG+8*kq+4*i+3}], v9, {sWS}, s45 offen{off} sc1")
    qtags = [QG+4*m+1 for m in range(8)] + [QG+4*m+3 for m in range(8)]
    q_loads()
    A("s_barrier")
    stamp(12)
    A("s_waitcnt vmcnt(0)")
    A(f"v_xor_b32 v{TMP+5}, {sTAG}, v{qtags[0]}")
    for t in qtags[1:]:
        A(f"v_xor_b32 v{TMP+6}, {sTAG}, v{t}"); A(f"v_or_b32 v{TMP+5}, v{TMP+5}, v{TMP+6}")
    A(f"v_cmp_ne_u32 vcc, 0, v{TMP+5}")
    A("s_cbranch_vccz L_qok")
    A(f"s_sub_u32 {sBUD}, {sBUD}, 1")
    poll(g, q_loads, qtags, TMP+5, TMP+6)
    g.lab("L_qok")
    stamp(10)
    if dbg == 1: A(f"v_writelane_b32 v{vSTAMP}, {sBUD}, 11")
    for i in range(2):
        for e in (0, 2):
            A(f"v_add_f32 v{QG+4*i+e}, v{QG+4*i+e}, v{QG+8+4*i+e}")
            A(f"v_add_f32 v{QG+16+4*i+e}, v{QG+16+4*i+e}, v{QG+24+4*i+e}")
            A(f"v_add_f32 v{QG+4*i+e}, v{QG+4*i+e}, v{QG+16+4*i+e}")
        A(f"v_cvt_pk_bf16_f32 v{TMP+8+i}, v{QG+4*i}, v{QG+4*i+2}")
    A(f"v_lshlrev_b32 v9, 2, v{vLANE}")
    A(f"ds_write_b32 v9, v{TMP+8} offset:{L_Q}")
    A(f"ds_write_b32 v9, v{TMP+9} offset:{L_Q+256}")
    A(f"v_mov_b32 v{TMP+12}, {sTAG}"); A(f"v_mov_b32 v{TMP+13}, {sEP}"); A(f"v_mov_b32 v{TMP+7}, 0")
    A(f"ds_write_b64 v{TMP+7}, v[{TMP+12}:{TMP+13}] offset:{L_TAG}")
    for k in range(QPRE, DP):
        tile_addr(VA[k]); loads(KB[k], sKS, VA[k]); loads(VB[k], sVS, VA[k])
    A("s_setprio 0")
    A("s_waitcnt lgkmcnt(0)")
    A("s_branch L_waitq")
    g.lab("L_others")
    if B0: A("s_barrier")
    if SD: A(f"s_sleep {SD}")
    groups = []
    for k in range(DP): groups += [("K", k), ("V", k)]
    for gi, (kind, k) in enumerate(groups):
        if gi == PRE: A("s_barrier")
        if kind == "K": tile_addr(VA[k]); loads(KB[k], sKS, VA[k])
        else: loads(VB[k], sVS, VA[k])
    if TLBW:
        g.c("warm the address translation of this head's K/V pages through the scalar path (wave TLBW)")
        lw = g.new("tw")
        A(f"s_cmp_lg_u32 {sWAVE}, {TLBW}"); A(f"s_cbranch_scc1 {lw}")
        A(f"s_add_u32 s96, s66, {sBASE}"); A("s_addc_u32 s97, s67, 0")
        A(f"s_add_u32 s98, s68, {sBASE}"); A("s_addc_u32 s99, s69, 0")
        for p in range(8):
            A(f"s_load_dword s100, s[96:97], 0"); A(f"s_load_dword s101, s[98:99], 0")
            A("s_add_u32 s96, s96, 0x200000"); A("s_addc_u32 s97, s97, 0"); A("s_add_u32 s98, s98, 0x200000"); A("s_addc_u32 s99, s99, 0")
        g.lab(lw)
    g.lab("L_waitq")
    A("s_barrier")
    stamp(2)
    if dbg == 5:
        A("s_memtime s[90:91]"); A("s_waitcnt lgkmcnt(0)"); A(f"v_writelane_b32 v{vSTAMP}, s90, 58")
        A("s_memrealtime s[90:91]"); A("s_waitcnt lgkmcnt(0)"); A(f"v_writelane_b32 v{vSTAMP}, s90, 59")
    A(f"v_and_b32 v7, 7, v{vLANE}"); A("v_lshlrev_b32 v7, 4, v7")
    for c in range(4): A(f"ds_read_b128 v[{Q+4*c}:{Q+4*c+3}], v7 offset:{L_Q + 128*c}")
    A("v_mov_b32 v8, 0")
    A(f"ds_read_b64 v[10:11], v8 offset:{L_TAG}")
    for i in range(32): A(f"v_mov_b32 v{ACC+i}, 0")
    A(f"v_mov_b32 v{vM}, {NEG_BIG:#x}"); A(f"v_mov_b32 v{vMC}, {NEG_BIG:#x}"); A(f"v_mov_b32 v{vL}, 0")
    A("s_and_b32 s37, s2, 7"); A(f"s_lshr_b32 {sRI}, s2, 3")
    A(f"s_mov_b32 {sLOC}, 0")
    A("s_cmp_lt_u32 s2, 224"); A("s_cselect_b32 s38, 2, 1")
    A("s_cmp_eq_u32 s37, 0"); A(f"s_cselect_b32 {sROLE}, s38, 0")
    A("s_waitcnt lgkmcnt(0)")
    A(f"v_readfirstlane_b32 {sTAG}, v10"); A(f"v_readfirstlane_b32 {sEP}, v11")
    A(f"s_mov_b32 {sSTEP}, 0")
    if dbg == 3: A("s_mov_b32 s92, 15")
    resc = []
    def body(k, kwait, vwait, issue, pre=None, post=None):
        kb, vb = KB[k], VB[k]
        g.c(f"slot {k} ({issue})")
        if pre: pre()
        stepstamp()
        A(f"s_waitcnt vmcnt({kwait})")
        for r_ in range(4): A(f"v_dot2_f32_bf16 v{7+r_}, v{kb+r_}, v{Q+r_}, 0")
        for r_ in range(4, 16 if not NOCOMP else 4): A(f"v_dot2c_f32_bf16 v{7+(r_&3)}, v{kb+r_}, v{Q+r_}")
        if issue == "static": tile_addr(VA[k]); loads(kb, sKS, VA[k])
        elif issue == "dyn":
            tile_addr_dyn(VA[k], sMK[k])
            A(f"s_mov_b64 exec, s[{sMK[k][0][1:]}:{sMK[k][1][1:]}]"); loads(kb, sKS, VA[k]); A("s_mov_b64 exec, -1")
        else: g.nop(3)
        A("v_add_f32 v7, v7, v8"); A("v_add_f32 v9, v9, v10"); A("v_add_f32 v7, v7, v9"); g.nop(2)
        allreduce_low(g, 7, [0, 1, 2])
        A("v_cvt_pk_bf16_f32 v8, v7, v7")
        A("v_lshlrev_b32 v7, 16, v8")
        if issue == "dyn" and HALF:
            A(f"v_cndmask_b32 v7, v3, v7, s[{sMC[k][0][1:]}:{sMC[k][1][1:]}]")
        A(f"v_cmp_gt_f32 vcc, v7, v{vM}")
        lr, lc = g.new("resc"), g.new("cont")
        A(f"s_cbranch_vccnz {lr}")
        g.lab(lc)
        A(f"v_fma_f32 v8, v7, {sC}, -v{vMC}")
        A("v_exp_f32 v8, v8"); g.nop(1)
        A(f"v_add_f32 v{vL}, v{vL}, v8")
        A("v_cvt_pk_bf16_f32 v9, v8, 0")
        A("v_cvt_pk_bf16_f32 v10, 0, v8")
        A(f"s_waitcnt vmcnt({vwait})")
        for c in range(4 if not NOCOMP else 0):
            for i in range(4):
                A(f"v_dot2c_f32_bf16 v{ACC+8*c+2*i}, v{vb+4*c+i}, v9")
                A(f"v_dot2c_f32_bf16 v{ACC+8*c+2*i+1}, v{vb+4*c+i}, v10")
        if issue == "static": loads(vb, sVS, VA[k])
        elif issue == "dyn":
            A(f"s_mov_b64 exec, s[{sMK[k][0][1:]}:{sMK[k][1][1:]}]"); loads(vb, sVS, VA[k]); A("s_mov_b64 exec, -1")
            if HALF: A(f"s_mov_b64 s[{sMC[k][0][1:]}:{sMC[k][1][1:]}], s[{sMK[k][0][1:]}:{sMK[k][1][1:]}]")
        if post: post()
        resc.append((lr, lc))
    if X5:
        g.c("first revolution: five prefetched tiles")
        for k in range(D): body(k, 36, 36, "static", pre=lambda: A("s_barrier"))
        body(4, 36, 32, "none", pre=lambda: A("s_barrier"))
    NREV = (NS - 9) // 4 if X5 else (NS - 4) // 4
    assert (NS - (9 if X5 else 4)) % 4 == 0
    H1, H2 = (4, 8) if X5 else (8, 12)
    g.lab("L_loop")
    for k in range(D):
        body(k, 28, 28, "static", pre=(lambda: A("s_barrier")) if (BAR == 1 or (BAR == 4 and k == 0) or (BAR == 2 and k % 2 == 0)) else None)
    A(f"s_add_u32 {sSTEP}, {sSTEP}, 4")
    A(f"s_cmp_eq_u32 {sSTEP}, {H1}"); A("s_cbranch_scc1 L_wload")
    A(f"s_cmp_eq_u32 {sSTEP}, {H2}"); A("s_cbranch_scc1 L_xgload")
    g.lab("L_loop_back")
    A(f"s_cmp_lt_u32 {sSTEP}, {4*NREV}"); A("s_cbranch_scc1 L_loop")
    g.c("transition: consume slots 0,1 without issue")
    A(f"s_add_u32 s37, {sS}, {16*NS}"); A(f"v_mov_b32 v{TMP}, s37"); A(f"v_mov_b32 v{TMP+1}, 0")
    A(f"ds_write_b32 v{TMP+1}, v{TMP} offset:{L_CL}")
    A(f"s_mov_b32 {sV2}, 1"); A(f"s_mov_b32 {sV3}, 1"); A("s_mov_b32 s58, 0")
    A("s_mov_b64 s[76:77], -1"); A("s_mov_b64 s[78:79], -1"); A(f"v_mov_b32 v3, {NEG_BIG:#x}")
    A(f"s_cmp_eq_u32 {sROLE}, 0"); A(f"s_cselect_b32 {sLIM}, 0, {RWX}"); A(f"s_sub_u32 {sLIM}, {NIT}, {sLIM}"); A(f"s_mov_b32 {sDC}, 0"); A(f"s_mov_b32 {sI0}, 0"); A(f"s_mov_b32 {sGO}, 0")
    A("s_mov_b32 s41, 0x05040100"); A("s_mov_b32 s42, 0x07060302")
    if LOOK == 2: A(f"s_sub_u32 s37, {sS}, 16"); A(f"v_mov_b32 v{TMP+5}, s37")
    A(f"s_mul_i32 s48, {sH}, {CSTR}"); A(f"s_add_u32 s48, s48, {CNT:#x}")
    def xg_check():
        l = g.new("xgs"); l2 = g.new("xgok")
        A(f"s_cmp_eq_u32 {sROLE}, 0"); A(f"s_cbranch_scc1 {l}")
        A("s_mov_b32 exec_lo, -1"); A("s_mov_b32 exec_hi, 0")
        A(f"v_cmp_ne_u32 vcc, {sTAG}, v{TMP+13}")
        A(f"s_cbranch_vccz {l2}")
        A(f"v_lshlrev_b32 v{TMP+14}, 3, v{vLANE}"); A(f"v_add_u32 v{TMP+14}, {XG:#x}, v{TMP+14}")
        poll(g, lambda: A(f"buffer_load_dwordx2 v[{TMP+12}:{TMP+13}], v{TMP+14}, {sWS}, 0 offen sc1"), [TMP+13], TMP+8, TMP+9)
        g.lab(l2)
        A("s_getreg_b32 s37, hwreg(HW_REG_XCC_ID)"); A("s_and_b32 s37, s37, 15")
        A(f"v_cmp_ne_u32 vcc, s37, v{TMP+12}")
        A("s_cmp_eq_u64 vcc, 0"); A(f"s_cselect_b32 {sLOC}, 1, 0")
        if NOLOC: A(f"s_mov_b32 {sLOC}, 0")
        A("s_mov_b64 exec, -1")
        g.lab(l)
    def wo_load():
        l = g.new("wol")
        A("s_waitcnt lgkmcnt(0)")
        A(f"s_cmp_eq_u32 {sROLE}, 0"); A(f"s_cbranch_scc1 {l}")
        srd(g, 16, 72, 4096*896)
        A(f"s_lshl_b32 s37, {sH}, 4"); A(f"s_and_b32 s38, {sS}, 8"); A("s_add_u32 s37, s37, s38"); A(f"s_add_u32 s37, s37, {sWAVE}")
        A(f"s_mul_i32 s37, s37, {16*896}")
        A(f"v_lshlrev_b32 v{TMP+8}, 4, v{vLANE}")
        for i in range(16):
            A(f"buffer_load_dwordx4 v[{R0+4*i}:{R0+4*i+3}], v{TMP+8}, {sT1}, s37 offen nt")
            A("s_add_u32 s37, s37, 896")
        g.lab(l)
    body(0, 28, 24, "none", pre=lambda: A("s_barrier"), post=xg_check)
    body(1, 20, 16, "none", pre=lambda: A("s_barrier"), post=wo_load)
    if DD == 1: body(2, 12, 8, "none", pre=lambda: A("s_barrier"))
    if dbg == 2: stamp(5)
    if TPF & 1: code_pf(6, "L_s0", "L_exit", 2, TMP+20)
    g.lab("L_dyn")
    for k in (2, 3):
        p = k & 1
        sV = sV2 if (k == 2 or DD == 1) else sV3
        RA = [TMP+3, TMP+5]
        def pre(k=k, p=p, sV=sV):
            A("s_barrier")
            A(f"ds_read_b32 v{TMP+2}, v{TMP+1} offset:{L_CL + 4*p}")
            A(f"s_cmp_eq_u32 {sV}, 0"); A("s_cbranch_scc1 L_s0")
            A("s_waitcnt lgkmcnt(0)")
            A(f"v_readfirstlane_b32 {sNXT}, v{TMP+2}")
            l = g.new("noclaim")
            A(f"s_cmp_lg_u32 {sWAVE}, 0"); A(f"s_cbranch_scc1 {l}")
            A(f"s_mov_b32 {sGO}, 0")
            A(f"s_cmp_ge_u32 {sNXT}, {sLIM}"); A(f"s_cbranch_scc1 {l}")
            if ADF:
                la = g.new("ad")
                A(f"s_cmp_eq_u32 {sDC}, 1"); A(f"s_cselect_b32 {sI0}, {sNXT}, {sI0}")
                A(f"s_cmp_lt_u32 {sDC}, 3"); A(f"s_cbranch_scc1 {la}")
                A(f"s_cmp_eq_u32 {sS}, 3"); A(f"s_cbranch_scc1 {la}")
                A(f"s_cmp_eq_u32 {sS}, 12"); A(f"s_cbranch_scc1 {la}")
                A(f"s_sub_u32 s37, {sDC}, 1")
                A(f"s_sub_u32 s38, {sNXT}, {sI0}"); A("s_lshl_b32 s39, s37, 4"); A("s_sub_u32 s38, s38, s39")
                A(f"s_mul_i32 s38, s38, {ADF}")
                A(f"s_sub_u32 s39, {NIT}, {sNXT}"); A("s_mul_i32 s39, s39, s37"); A("s_lshl_b32 s39, s39, 1")
                A("s_cmp_lt_i32 s39, s38"); A(f"s_cbranch_scc1 {l}")
                g.lab(la)
            A(f"s_mov_b32 {sGO}, 1")
            ra = RA[p] if LOOK == 2 else RA[0]
            A(f"v_mov_b32 v{ra}, 1")
            A("s_mov_b64 exec, 1")
            if FAKE in (0, 3): A(f"buffer_atomic_add v{ra}, v{TMP+1}, {sWS}, s48 offen {['sc0', 'sc0 sc1', 'sc0 nt', 'sc0 sc1 nt'][AFL]}")
            elif FAKE == 2: A(f"buffer_load_dword v{ra}, v{TMP+1}, {sWS}, s48 offen sc1")
            A("s_mov_b64 exec, -1")
            g.lab(l)
        def post(k=k, p=p, sV=sV):
            A(f"s_cmp_lt_u32 {sNXT}, {NIT}"); A(f"s_cselect_b32 {sV}, 1, 0")
            if dbg: A(f"s_add_u32 {sSTEP}, {sSTEP}, {sV}")
            if PT & 4:
                lt = g.new("ept")
                A(f"s_cmp_lg_u32 {sWAVE}, 4"); A(f"s_cbranch_scc1 {lt}")
                A(f"s_cmp_lt_u32 {sNXT}, {NIT}"); A(f"s_cbranch_scc1 {lt}")
                A(f"s_cmp_eq_u32 s58, 1"); A(f"s_cbranch_scc1 {lt}")
                A("s_mov_b32 s58, 1")
                A(f"v_lshlrev_b32 v{TMP+8}, 4, v{vLANE}")
                A(f"s_lshl_b32 s38, {sH}, 15"); A(f"s_lshl_b32 s39, {sS}, 11"); A("s_add_u32 s38, s38, s39"); A(f"s_add_u32 s38, s38, {OP:#x}")
                A(f"buffer_load_dwordx4 v[{TMP+20}:{TMP+23}], v{TMP+8}, {sWS}, s38 offen sc1")
                A(f"buffer_load_dwordx4 v[{TMP+20}:{TMP+23}], v{TMP+8}, {sWS}, s38 offen offset:1024 sc1")
                g.lab(lt)
            lp_ = g.new("wop")
            A(f"s_add_u32 {sDC}, {sDC}, 1"); A(f"s_cmp_lg_u32 {sDC}, 2"); A(f"s_cbranch_scc1 {lp_}")
            A(f"s_cmp_eq_u32 {sROLE}, 0"); A(f"s_cbranch_scc1 {lp_}")
            if k == 3:
                for i in range(8):
                    for e in range(4): perm_pair(g, R0+8*i+e, R0+8*i+4+e, 9)
            g.lab(lp_)
            l = g.new("nopub")
            A(f"s_cmp_lg_u32 {sWAVE}, 0"); A(f"s_cbranch_scc1 {l}")
            ra = RA[p^1] if LOOK == 2 else RA[0]
            A(f"s_waitcnt vmcnt({17 if LOOK == 2 else 8})")
            if FAKE: A(f"s_add_u32 s49, {sNXT}, 16"); A(f"v_mov_b32 v{ra}, s49")
            else: A(f"v_add_u32 v{ra}, {16*(NS+LOOK)}, v{ra}")
            A(f"v_mov_b32 v{TMP+4}, 0xffff")
            A(f"s_cmp_eq_u32 {sGO}, 1"); A("s_cselect_b64 vcc, -1, 0")
            A(f"v_cndmask_b32 v{TMP+4}, v{TMP+4}, v{ra}, vcc")
            A("s_mov_b64 exec, 1")
            A(f"ds_write_b32 v{TMP+1}, v{TMP+4} offset:{L_CL + 4*(p^1)}")
            A("s_mov_b64 exec, -1")
            A("s_waitcnt lgkmcnt(0)")
            g.lab(l)
        if DD == 1: body(3, 4, 4, "dyn", pre=pre, post=post)
        else: body(k, 12, 12, "dyn", pre=pre, post=post)
    A("s_branch L_dyn")
    for lr, lc in resc:
        g.lab(lr)
        A("v_mov_b32 v8, v7"); g.nop(2)
        dpp(g, "v_max_f32", 8, 8, 8, "row_ror:8"); g.nop(2)
        dpp(g, "v_max_f32", 8, 8, 8, "row_bcast:15", rm=0xa); g.nop(2)
        dpp(g, "v_max_f32", 8, 8, 8, "row_bcast:31", rm=0xc); g.nop(1)
        A("v_readlane_b32 s47, v8, 63"); g.nop(2)
        A(f"v_max_f32 v9, s47, v{vM}")
        A(f"v_sub_f32 v10, v{vM}, v9")
        A(f"v_mul_f32 v10, {sC}, v10")
        A("v_exp_f32 v10, v10")
        A(f"v_mov_b32 v{vM}, v9")
        A(f"v_mul_f32 v{vMC}, {sC}, v9")
        A(f"v_mul_f32 v{vL}, v10, v{vL}")
        for i in range(32): A(f"v_mul_f32 v{ACC+i}, v10, v{ACC+i}")
        A(f"s_branch {lc}")
    g.lab("L_wload")
    if dbg == 2: stamp(4)
    A(f"s_cmp_eq_u32 {sROLE}, 0"); A("s_cbranch_scc1 L_loop_back")
    A(f"s_cmp_eq_u32 {sROLE}, 1"); A("s_cbranch_scc1 L_xgpub")
    g.c("role WG: w1[:, 64a..+64) (wave w rows 56w + 8j + (l>>3), chunk l&7), w2 rows 64a + 8w + j, b1, x, b2, xcc granule")
    srd(g, 16, 76, 448*3584); srd(g, 20, 80, 1792*896)
    A(f"v_lshrrev_b32 v{TMP}, 3, v{vLANE}"); A("s_movk_i32 s37, 3584"); A(f"v_mul_lo_u32 v{TMP}, v{TMP}, s37")
    A(f"v_and_b32 v{TMP+1}, 7, v{vLANE}"); A(f"v_lshlrev_b32 v{TMP+1}, 4, v{TMP+1}"); A(f"v_add_u32 v{TMP}, v{TMP}, v{TMP+1}")
    A(f"s_mul_i32 s37, {sWAVE}, {56*3584}"); A(f"s_lshl_b32 s38, {sRI}, 7"); A("s_add_u32 s37, s37, s38")
    A(f"s_mul_i32 s38, {sWAVE}, {7*1024}"); A(f"s_add_u32 s38, s38, {L_W1}")
    for j in range(7):
        A("s_mov_b32 m0, s38"); A("s_nop 0")
        A(f"buffer_load_dwordx4 v{TMP}, {sT1}, s37 offen nt lds")
        A(f"s_add_u32 s37, s37, {8*3584}"); A("s_add_u32 s38, s38, 1024")
    A(f"v_lshlrev_b32 v{TMP+2}, 4, v{vLANE}")
    A(f"s_lshl_b32 s37, {sRI}, 6"); A(f"s_lshl_b32 s38, {sWAVE}, 3"); A("s_add_u32 s37, s37, s38"); A("s_mul_i32 s37, s37, 896")
    A(f"s_lshl_b32 s38, {sWAVE}, 13"); A(f"s_add_u32 s38, s38, {L_W2}")
    for j in range(8):
        A("s_mov_b32 m0, s38"); A("s_nop 0")
        A(f"buffer_load_dwordx4 v{TMP+2}, {sT2}, s37 offen nt lds")
        A("s_add_u32 s37, s37, 896"); A("s_add_u32 s38, s38, 1024")
    srd(g, 16, 78, 1792*2)
    A(f"v_and_b32 v{TMP+1}, 7, v{vLANE}"); A(f"v_lshlrev_b32 v{TMP+1}, 3, v{TMP+1}"); A(f"v_lshrrev_b32 v{TMP+3}, 3, v{vLANE}"); A(f"v_add_u32 v{TMP+1}, v{TMP+1}, v{TMP+3}")
    A(f"v_lshlrev_b32 v{TMP+1}, 1, v{TMP+1}"); A(f"s_lshl_b32 s37, {sRI}, 7"); A(f"v_add_u32 v{TMP+1}, s37, v{TMP+1}")
    A(f"buffer_load_ushort v{vB1}, v{TMP+1}, {sT1}, 0 offen nt")
    srd(g, 16, 64, 896); srd(g, 20, 82, 896)
    A(f"s_lshl_b32 s37, {sRI}, 5")
    A(f"v_and_b32 v{TMP+3}, 7, v{vLANE}"); A(f"v_lshlrev_b32 v{TMP+3}, 1, v{TMP+3}"); A(f"v_lshrrev_b32 v{TMP+4}, 5, v{vLANE}"); A(f"v_add_u32 v{TMP+3}, v{TMP+3}, v{TMP+4}")
    A(f"v_lshlrev_b32 v{TMP+3}, 1, v{TMP+3}"); A(f"v_add_u32 v{TMP+3}, s37, v{TMP+3}")
    A(f"buffer_load_ushort v{vB2}, v{TMP+3}, {sT2}, 0 offen nt")
    A(f"buffer_load_ushort v{vXH}, v{TMP+3}, {sT1}, 0 offen nt")
    g.lab("L_xgpub")
    A(f"s_cmp_lg_u32 {sWAVE}, 0"); A("s_cbranch_scc1 L_loop_back")
    A("s_getreg_b32 s37, hwreg(HW_REG_XCC_ID)"); A("s_and_b32 s37, s37, 15")
    A(f"v_mov_b32 v{TMP+6}, s37"); A(f"v_mov_b32 v{TMP+7}, {sTAG}"); A(f"s_lshl_b32 s37, {sRI}, 3"); A(f"s_add_u32 s37, s37, {XG:#x}"); A(f"v_mov_b32 v{TMP+5}, 0")
    A("s_mov_b64 exec, 1")
    A(f"buffer_store_dwordx2 v[{TMP+6}:{TMP+7}], v{TMP+5}, {sWS}, s37 offen sc1")
    A("s_mov_b64 exec, -1")
    A("s_branch L_loop_back")
    g.lab("L_xgload")
    A(f"s_cmp_eq_u32 {sROLE}, 0"); A("s_cbranch_scc1 L_loop_back")
    A(f"v_lshlrev_b32 v{TMP+14}, 3, v{vLANE}"); A(f"v_add_u32 v{TMP+14}, {XG:#x}, v{TMP+14}")
    A(f"buffer_load_dwordx2 v[{TMP+12}:{TMP+13}], v{TMP+14}, {sWS}, 0 offen sc1")
    A("s_branch L_loop_back")
    g.lab("L_s0")
    stamp(3)
    if dbg and dbg != 4: A(f"v_writelane_b32 v{vSTAMP}, {sSTEP}, 15")
    g.c("S0: in-wave reduce")
    T = TMP
    allreduce_high(g, vL, T)
    reduce_scatter(g, [ACC+i for i in range(32)], [32, 16, 8])
    A(f"v_lshrrev_b32 v7, 4, v{vLANE}"); A("v_lshlrev_b32 v7, 8, v7")
    A(f"v_and_b32 v8, 7, v{vLANE}"); A("v_lshlrev_b32 v8, 5, v8")
    A(f"v_bfe_u32 v9, v{vLANE}, 3, 1"); A("v_lshlrev_b32 v9, 4, v9")
    A("v_add3_u32 v7, v7, v8, v9")
    A(f"s_lshl_b32 s37, {sWAVE}, 10"); A("v_add_u32 v7, s37, v7")
    A(f"ds_write_b128 v7, v[{ACC}:{ACC+3}] offset:{L_O}")
    A(f"v_mov_b32 v8, v{vM}"); A(f"v_mov_b32 v9, v{vL}")
    A(f"s_lshl_b32 s37, {sWAVE}, 3"); A("v_mov_b32 v10, s37")
    A(f"ds_write_b64 v10, v[8:9] offset:{L_ST}")
    A("s_mov_b32 s41, 0x05040100"); A("s_mov_b32 s42, 0x07060302")
    A("s_waitcnt vmcnt(0) lgkmcnt(0)")
    A("s_barrier")
    tst(16)
    A(f"s_cmp_gt_u32 {sWAVE}, 1"); A("s_cbranch_scc1 L_rw")
    g.c("waves 0-1: cross-wave combine + publish (thread t: dims 2t, 2t+1)")
    OW = 68
    A("v_mov_b32 v7, 0")
    for i in range(4): A(f"ds_read_b128 v[{T+4*i}:{T+4*i+3}], v7 offset:{L_ST+16*i}")
    A("v_lshlrev_b32 v8, 3, v0")
    for w in range(8): A(f"ds_read_b64 v[{OW+2*w}:{OW+2*w+1}], v8 offset:{L_O+1024*w}")
    A("s_waitcnt lgkmcnt(8)")
    A(f"v_max3_f32 v9, v{T}, v{T+2}, v{T+4}"); A(f"v_max3_f32 v10, v{T+6}, v{T+8}, v{T+10}"); A(f"v_max3_f32 v9, v9, v{T+12}, v{T+14}"); A(f"v_max_f32 v9, v9, v10")
    A(f"v_mul_f32 v11, {sC}, v9")
    for w in range(8): A(f"v_fma_f32 v{T+2*w}, v{T+2*w}, {sC}, -v11")
    for w in range(8): A(f"v_exp_f32 v{T+2*w}, v{T+2*w}")
    A("v_lshrrev_b32 v7, 3, v0"); A("v_lshlrev_b32 v7, 11, v7")
    A("v_and_b32 v8, 7, v0"); A("v_cmp_eq_u32 vcc, 0, v8"); A("v_lshlrev_b32 v8, 4, v8"); A("v_add_u32 v7, v7, v8")
    A(f"s_lshl_b32 s37, {sH}, 15"); A(f"s_lshl_b32 s38, {sS}, 7"); A("s_add_u32 s37, s37, s38"); A(f"s_add_u32 s37, s37, {OP:#x}")
    PG = 84
    A(f"v_mov_b32 v{PG+3}, {sTAG}")
    A("s_waitcnt lgkmcnt(0)")
    A(f"v_mul_f32 v{PG}, v{T}, v{OW}"); A(f"v_mul_f32 v{PG+1}, v{T}, v{OW+1}"); A(f"v_mul_f32 v10, v{T}, v{T+1}")
    for w in range(1, 8):
        A(f"v_fmac_f32 v{PG}, v{T+2*w}, v{OW+2*w}"); A(f"v_fmac_f32 v{PG+1}, v{T+2*w}, v{OW+2*w+1}"); A(f"v_fmac_f32 v10, v{T+2*w}, v{T+2*w+1}")
    A(f"v_cndmask_b32 v{PG+2}, v10, v9, vcc")
    A(f"buffer_store_dwordx4 v[{PG}:{PG+3}], v7, {sWS}, s37 offen sc1")
    tst(17)
    if dbg == 5: A("s_waitcnt vmcnt(0)"); tst(61)
    g.lab("L_rw")
    A(f"s_cmp_eq_u32 {sROLE}, 0"); A("s_cbranch_scc1 L_end")
    def lstore(text):
        l1, l2 = g.new("ls"), g.new("ls")
        A(f"s_cmp_eq_u32 {sLOC}, 0"); A(f"s_cbranch_scc1 {l1}")
        A(text); A(f"s_branch {l2}")
        g.lab(l1); A(text + " sc1"); g.lab(l2)
    g.c("first gather round of this wave's 16-dim slice, pre-touch of later hand-off lines, weight preparation")
    vOA = 50
    A(f"v_lshlrev_b32 v{vOA}, 4, v{vLANE}")
    A(f"s_and_b32 s39, {sS}, 8"); A(f"s_add_u32 s39, s39, {sWAVE}"); A("s_lshl_b32 s39, s39, 11")
    A(f"s_lshl_b32 s38, {sH}, 15"); A("s_add_u32 s38, s38, s39"); A(f"s_add_u32 s38, s38, {OP:#x}")
    A(f"v_add_u32 v{vOA}, s38, v{vOA}")
    def g0(): A(f"buffer_load_dwordx4 v[{T+8}:{T+11}], v{vOA}, {sWS}, 0 offen sc1")
    def g1(): A(f"buffer_load_dwordx4 v[{T+12}:{T+15}], v{vOA}, {sWS}, 0 offen offset:1024 sc1")
    g0(); g1()
    if PT:
        lpt = g.new("pt"); l7 = g.new("pt7"); l5 = g.new("pt5"); l6 = g.new("pt6")
        A(f"s_cmp_lt_u32 {sROLE}, 2"); A(f"s_cbranch_scc1 {lpt}")
        A(f"v_lshlrev_b32 v7, 4, v{vLANE}")
        DM = 88
        A(f"s_cmp_lg_u32 {sWAVE}, 7"); A(f"s_cbranch_scc1 {l7}")
        A(f"s_mul_i32 s37, {sRI}, {FSTR}"); A(f"s_add_u32 s37, s37, {FP:#x}")
        for k in range(7):
            A(f"buffer_load_dwordx4 v[{DM}:{DM+3}], v7, {sWS}, s37 offen sc1"); A("s_add_u32 s37, s37, 1024")
        g.lab(l7)
        A(f"s_cmp_lg_u32 {sWAVE}, 5"); A(f"s_cbranch_scc1 {l5}")
        A(f"s_mov_b32 s37, {HG:#x}")
        A(f"buffer_load_dwordx4 v[{DM}:{DM+3}], v7, {sWS}, s37 offen sc1"); A(f"buffer_load_dwordx4 v[{DM}:{DM+3}], v7, {sWS}, s37 offen offset:1024 sc1")
        g.lab(l5)
        A(f"s_cmp_lg_u32 {sWAVE}, 6"); A(f"s_cbranch_scc1 {l6}")
        A(f"s_mul_i32 s37, {sRI}, {YSTR}"); A(f"s_add_u32 s37, s37, {YP:#x}")
        for k in range(4):
            A(f"buffer_load_dwordx4 v[{DM}:{DM+3}], v7, {sWS}, s37 offen sc1"); A("s_add_u32 s37, s37, 1024")
        g.lab(l6)
        g.lab(lpt)
    W1R = R0 + 64; W2R = R0 + 96; XPR = 68; APR = 72; AC = 88; XA = [ACC + i for i in range(8)]; PA = ACC + 8
    vFA = 48; vC = 49; vYA = 51
    def ffn_prep():
        A(f"v_lshlrev_b32 v7, 4, v{vLANE}"); A(f"s_mul_i32 s37, {sWAVE}, {7*1024}"); A("v_add_u32 v7, s37, v7")
        for j in range(7): A(f"ds_read_b128 v[{W1R+4*j}:{W1R+4*j+3}], v7 offset:{L_W1 + 1024*j}")
        for i in range(4): A(f"v_mov_b32 v{W1R+28+i}, 0")
        A(f"s_and_b32 s37, {sWAVE}, 3"); A("s_lshl_b32 s37, s37, 8"); A(f"s_lshr_b32 s38, {sWAVE}, 2"); A("s_lshl_b32 s38, s38, 15"); A("s_add_u32 s37, s37, s38"); A(f"s_add_u32 s37, s37, {L_W2}")
        A(f"v_lshlrev_b32 v8, 2, v{vLANE}"); A("v_add_u32 v8, s37, v8")
        for i in range(16): A(f"ds_read2st64_b32 v[{W2R+2*i}:{W2R+2*i+1}], v8 offset0:{8*i} offset1:{8*i+4}")
        for r_ in (vXH, vB2, vB1): A(f"v_lshlrev_b32 v{r_}, 16, v{r_}")
        for k in range(2):
            for e in range(4):
                x = XA[4*k+e]
                A(f"v_lshlrev_b32 v{x}, 2, v{vLANE}"); A(f"v_add_u32 v{x}, {4*56*k + e}, v{x}")
                A("s_movk_i32 s37, 1171"); A(f"v_mul_u32_u24 v9, s37, v{x}"); A("v_lshrrev_b32 v9, 16, v9")
                A(f"v_mul_u32_u24 v10, 56, v9"); A(f"v_sub_u32 v10, v{x}, v10")
                A(f"v_lshrrev_b32 v11, 4, v10"); A(f"v_lshl_add_u32 v9, v9, 2, v11")
                A("v_and_b32 v11, 7, v10"); A("v_lshl_add_u32 v9, v9, 3, v11")
                A("v_bfe_u32 v11, v10, 3, 1"); A("v_lshlrev_b32 v11, 1, v11"); A(f"v_lshl_add_u32 v{x}, v9, 2, v11")
        A("s_waitcnt lgkmcnt(0)")
        for jj in range(4):
            for i in range(4): perm_pair(g, W1R+8*jj+i, W1R+8*jj+4+i, 9)
        for i in range(16): perm_pair(g, W2R+2*i, W2R+2*i+1, 9)
        A(f"s_and_b32 s37, {sWAVE}, 3"); A("s_lshl_b32 s37, s37, 6"); A(f"v_add_u32 v{vC}, s37, v{vLANE}")
        A(f"v_lshrrev_b32 v{vFA}, 3, v{vC}"); A(f"s_movk_i32 s38, {FSTR}"); A(f"v_mul_lo_u32 v{vFA}, v{vFA}, s38"); A(f"v_and_b32 v9, 7, v{vC}"); A("v_lshlrev_b32 v9, 4, v9"); A(f"v_add_u32 v{vFA}, v{vFA}, v9")
        A(f"s_lshl_b32 s37, {sRI}, 1"); A(f"s_lshr_b32 s38, {sWAVE}, 2"); A("s_add_u32 s37, s37, s38"); A("s_lshl_b32 s37, s37, 7"); A(f"s_add_u32 s37, s37, {FP:#x}"); A(f"v_add_u32 v{vFA}, s37, v{vFA}")
    lnf = g.new("noffn")
    A(f"s_cmp_lt_u32 {sROLE}, 2"); A(f"s_cbranch_scc1 {lnf}")
    A(f"s_cmp_eq_u32 {sWAVE}, 5"); A(f"s_cselect_b32 s37, 1, 0"); A(f"s_cmp_eq_u32 {sWAVE}, 6"); A(f"s_cselect_b32 s37, 1, s37")
    A("s_cmp_eq_u32 s37, 0"); A(f"s_cbranch_scc1 {lnf}")
    ffn_prep()
    g.lab(lnf)
    A(f"v_lshrrev_b32 v{vYA}, 3, v0"); A(f"s_movk_i32 s38, {YSTR}"); A(f"v_mul_lo_u32 v{vYA}, v{vYA}, s38"); A("v_and_b32 v9, 7, v0"); A("v_lshlrev_b32 v9, 4, v9"); A(f"v_add_u32 v{vYA}, v{vYA}, v9")
    A(f"s_lshl_b32 s37, {sRI}, 7"); A(f"s_add_u32 s37, s37, {YP:#x}"); A(f"v_add_u32 v{vYA}, s37, v{vYA}")
    for i in range(8): A(f"v_mov_b32 v{PA+i}, 0")
    vLW = 52
    A(f"v_lshlrev_b32 v{vLW}, 5, v{vLANE}"); A(f"s_mul_i32 s37, {sWAVE}, 1792"); A(f"v_add_u32 v{vLW}, s37, v{vLW}")
    g.c("hop 1: combine the 16 partials of this wave's 16 dims")
    if dbg == 5: A("s_mov_b32 s92, 47"); tst(47)
    selpoll(g, [(g0, [T+11]), (g1, [T+15])], 9, 10, first_issued=True, sleep=H1SLEEP, dbgbase=48 if dbg == 5 else None)
    tst(18)
    for dst, src, ln in ((T, T+10, 0), (T+4, T+14, 0), (T+1, T+10, 1), (T+5, T+14, 1)):
        A(f"v_mov_b32_dpp v{dst}, v{src} row_newbcast:{ln} row_mask:0xf bank_mask:0x3")
    for dst, src, ln in ((T, T+10, 8), (T+4, T+14, 8), (T+1, T+10, 9), (T+5, T+14, 9)):
        A(f"v_mov_b32_dpp v{dst}, v{src} row_newbcast:{ln} row_mask:0xf bank_mask:0xc")
    A(f"v_max_f32 v9, v{T}, v{T+4}"); g.nop(2)
    allreduce_high(g, 9, 10, op="v_max_f32")
    A(f"v_sub_f32 v{T}, v{T}, v9"); A(f"v_sub_f32 v{T+4}, v{T+4}, v9")
    A(f"v_mul_f32 v{T}, {sC}, v{T}"); A(f"v_mul_f32 v{T+4}, {sC}, v{T+4}")
    A(f"v_exp_f32 v{T}, v{T}"); A(f"v_exp_f32 v{T+4}, v{T+4}"); g.nop(1)
    A(f"v_mul_f32 v{T+16}, v{T}, v{T+1}"); A(f"v_mul_f32 v{T+17}, v{T}, v{T+8}"); A(f"v_mul_f32 v{T+18}, v{T}, v{T+9}")
    A(f"v_fmac_f32 v{T+16}, v{T+4}, v{T+5}"); A(f"v_fmac_f32 v{T+17}, v{T+4}, v{T+12}"); A(f"v_fmac_f32 v{T+18}, v{T+4}, v{T+13}")
    g.nop(2)
    allreduce_high(g, [T+16, T+17, T+18], [T+19, T+20, T+21])
    A(f"v_rcp_f32 v{T+16}, v{T+16}"); g.nop(1)
    A(f"v_mul_f32 v{T+17}, v{T+17}, v{T+16}"); A(f"v_mul_f32 v{T+18}, v{T+18}, v{T+16}")
    A(f"v_cvt_pk_bf16_f32 v{T+20}, v{T+17}, v{T+18}"); g.nop(1)
    for i in range(8): A(f"v_readlane_b32 s{64+i}, v{T+20}, {i}")
    g.nop(1)
    tst(19)
    g.c("wo product for this wave's 16 rows (lanes < 56: 8 columns each)")
    for i in range(8):
        for e in range(4):
            A(f"v_dot2c_f32_bf16 v{PA+2*e}, s{64+i}, v{R0+8*i+e}")
            A(f"v_dot2c_f32_bf16 v{PA+2*e+1}, s{64+i}, v{R0+8*i+4+e}")
    A("s_mov_b32 exec_lo, -1"); A("s_mov_b32 exec_hi, 0x00ffffff"); g.nop(2)
    A(f"ds_write_b128 v{vLW}, v[{PA}:{PA+3}] offset:{L_YW}"); A(f"ds_write_b128 v{vLW}, v[{PA+4}:{PA+7}] offset:{L_YW+16}")
    A("s_mov_b64 exec, -1")
    A("s_waitcnt lgkmcnt(0)")
    A("s_barrier")
    tst(20)
    A(f"s_cmp_gt_u32 {sWAVE}, 3"); A("s_cbranch_scc1 L_ysent")
    A("v_lshlrev_b32 v8, 3, v0")
    for w in range(8): A(f"ds_read_b64 v[{T+2*w}:{T+2*w+1}], v8 offset:{L_YW+1792*w}")
    A(f"v_mov_b32 v{T+18}, 0"); A(f"v_mov_b32 v{T+19}, {sTAG}")
    A("v_cmp_gt_u32 vcc, 224, v0")
    A("s_waitcnt lgkmcnt(0)")
    for st in (4, 2, 1):
        for i in range(st): A(f"v_pk_add_f32 v[{T+2*i}:{T+2*i+1}], v[{T+2*i}:{T+2*i+1}], v[{T+2*(i+st)}:{T+2*(i+st)+1}]")
    A(f"v_mov_b32 v{T+16}, v{T}"); A(f"v_mov_b32 v{T+17}, v{T+1}")
    A("s_and_saveexec_b64 s[50:51], vcc")
    lstore(f"buffer_store_dwordx4 v[{T+16}:{T+19}], v{vYA}, {sWS}, 0 offen")
    A("s_mov_b64 exec, -1")
    tst(21)
    g.lab("L_ysent")
    A(f"s_cmp_lt_u32 {sROLE}, 2"); A("s_cbranch_scc1 L_end")
    def red16(a_, b_, t_):
        g.nop(2)
        A(f"v_permlane32_swap_b32 v{a_}, v{b_}"); g.nop(1)
        A(f"v_add_f32 v{a_}, v{a_}, v{b_}")
        A(f"v_mov_b32 v{t_}, v{a_}"); g.nop(2)
        A(f"v_permlane16_swap_b32 v{a_}, v{t_}"); g.nop(1)
        A(f"v_add_f32 v{a_}, v{a_}, v{t_}"); g.nop(2)
        dpp(g, "v_add_f32", a_, a_, a_, "row_ror:8"); g.nop(1)
    A(f"s_cmp_eq_u32 {sWAVE}, 5"); A("s_cbranch_scc1 L_a_ln")
    A(f"s_cmp_eq_u32 {sWAVE}, 6"); A("s_cbranch_scc1 L_yred")
    ffn_prep()
    A("s_branch L_a_wait")
    g.lab("L_yred")
    g.c("wave 6: reduce the 32 y partials of 16 columns -> h, publish")
    YG = T
    A(f"v_lshlrev_b32 v7, 4, v{vLANE}")
    A(f"s_mul_i32 s37, {sRI}, {YSTR}"); A(f"s_add_u32 s37, s37, {YP:#x}"); A("v_add_u32 v7, s37, v7")
    A(f"v_and_b32 v8, 7, v{vLANE}"); A("v_lshlrev_b32 v8, 1, v8"); A(f"v_lshrrev_b32 v11, 5, v{vLANE}"); A("v_add_u32 v8, v8, v11"); A("v_lshlrev_b32 v8, 2, v8")
    A(f"v_lshlrev_b32 v11, 3, v{vLANE}")
    A(f"s_lshl_b32 s46, {sRI}, 6"); A(f"s_add_u32 s46, s46, {HG:#x}")
    def mky(k):
        return lambda: A(f"buffer_load_dwordx4 v[{YG+4*k}:{YG+4*k+3}], v7, {sWS}, 0 offen{(' offset:%d' % (1024*k)) if k else ''} sc1")
    if dbg == 5: A("s_mov_b32 s92, 31"); tst(31)
    selpoll(g, [(mky(k), [YG+4*k+3]) for k in range(4)], 9, 10, dbgbase=32 if dbg == 5 else None)
    tst(22)
    A(f"v_pk_add_f32 v[{YG}:{YG+1}], v[{YG}:{YG+1}], v[{YG+4}:{YG+5}]"); A(f"v_pk_add_f32 v[{YG+8}:{YG+9}], v[{YG+8}:{YG+9}], v[{YG+12}:{YG+13}]")
    A(f"v_pk_add_f32 v[{YG}:{YG+1}], v[{YG}:{YG+1}], v[{YG+8}:{YG+9}]")
    red16(YG, YG+1, 9)
    bf16r(g, YG, YG)
    A(f"v_add_f32 v{YG}, v{YG}, v{vXH}")
    bf16r(g, YG, YG)
    A(f"v_mov_b32 v9, v{YG}"); A(f"v_mov_b32 v10, v{YG}")
    A(f"v_mov_b32 v{T+5}, {sTAG}"); A(f"v_mov_b32 v{T+7}, {sTAG}")
    A("v_permlane32_swap_b32 v9, v10"); g.nop(1)
    A(f"v_lshrrev_b32 v{T+4}, 16, v9"); A(f"v_or_b32 v{T+4}, v{T+4}, v10"); g.nop(2)
    A(f"v_mov_b32_dpp v{T+6}, v{T+4} quad_perm:[1,0,3,2] row_mask:0xf bank_mask:0xf")
    A("s_mov_b64 exec, 0x55")
    lstore(f"buffer_store_dwordx4 v[{T+4}:{T+7}], v11, {sWS}, s46 offen")
    A("s_mov_b32 exec_lo, 0xff"); A("s_mov_b32 exec_hi, 0xff")
    A(f"ds_write_b32 v8, v{YG} offset:{L_HV}")
    A("s_mov_b64 exec, -1")
    tst(24)
    g.c("epoch for the next launch: every workgroup has read the old one long ago (its partials are behind the data just gathered)")
    lep = g.new("ep")
    A(f"s_cmp_lg_u32 {sRI}, 0"); A(f"s_cbranch_scc1 {lep}")
    A(f"s_add_u32 s38, {sEP}, 1"); A("v_mov_b32 v9, s38"); A("v_mov_b32 v10, 0")
    A("s_mov_b64 exec, 1")
    A(f"buffer_store_dword v9, v10, {sWS}, 0 offen sc1")
    A("s_mov_b64 exec, -1")
    g.lab(lep)
    A("s_branch L_a_wait")
    g.lab("L_a_ln")
    g.c("wave 5: gather h, layernorm, write xln pairs")
    A(f"v_lshlrev_b32 v7, 4, v{vLANE}"); A(f"v_add_u32 v7, {HG:#x}, v7")
    for i in range(8): A(f"v_mov_b32 v{T+i}, {sTAG}")
    A("s_mov_b32 exec_lo, -1"); A("s_mov_b32 exec_hi, 0x00ffffff")
    def hg_loads():
        A(f"buffer_load_dwordx4 v[{T}:{T+3}], v7, {sWS}, 0 offen sc1")
        A(f"buffer_load_dwordx4 v[{T+4}:{T+7}], v7, {sWS}, 0 offen offset:896 sc1")
    poll(g, hg_loads, [T+1, T+3, T+5, T+7], 9, 10)
    A("s_mov_b64 exec, -1")
    tst(25)
    A("s_mov_b32 s44, -1"); A("s_mov_b32 s45, 0x00ffffff")
    PK = [T, T+2, T+4, T+6]
    layernorm_pk(g, PK, T+8, [7, 8, 9, 10, 11, 3], "s[44:45]")
    A("s_mov_b64 exec, s[44:45]")
    for p in range(4):
        A(f"ds_write_b16 v{XA[2*p]}, v{PK[p]} offset:{L_XP}")
        A(f"ds_write_b16_d16_hi v{XA[2*p+1]}, v{PK[p]} offset:{L_XP}")
    A("s_mov_b64 exec, -1")
    g.lab("L_a_wait")
    A(f"v_lshrrev_b32 v7, 3, v{vLANE}"); A("v_lshlrev_b32 v7, 2, v7"); A(f"s_lshl_b32 s37, {sWAVE}, 7"); A("v_add_u32 v7, s37, v7")
    for i in range(8): A(f"v_mov_b32 v{AC+i}, 0")
    A("s_waitcnt lgkmcnt(0)")
    A("s_barrier")
    tst(26)
    for jj in range(4): A(f"ds_read_b32 v{XPR+jj}, v7 offset:{L_XP + 32*jj}")
    A(f"v_lshlrev_b32 v10, 2, v{vLANE}"); A(f"s_lshl_b32 s37, {sWAVE}, 8"); A("v_add_u32 v11, s37, v10")
    A("s_waitcnt lgkmcnt(0)")
    for jj in range(4):
        for i in range(4):
            A(f"v_dot2c_f32_bf16 v{AC+2*i}, v{W1R+8*jj+i}, v{XPR+jj}")
            A(f"v_dot2c_f32_bf16 v{AC+2*i+1}, v{W1R+8*jj+4+i}, v{XPR+jj}")
    r = reduce_scatter(g, [AC+i for i in range(8)], [32, 16, 8])[0]
    A(f"ds_write_b32 v11, v{r} offset:{L_AP}")
    A(f"v_and_b32 v8, 7, v{vLANE}"); A("v_lshlrev_b32 v8, 4, v8"); A(f"v_lshrrev_b32 v9, 3, v{vLANE}"); A("v_lshlrev_b32 v9, 1, v9"); A("v_add_u32 v8, v8, v9")
    A(f"s_lshr_b32 s37, {sWAVE}, 2"); A("s_lshl_b32 s37, s37, 6"); A("v_mov_b32 v9, s37")
    A("s_waitcnt lgkmcnt(0)")
    A("s_barrier")
    tst(27)
    for w in range(8): A(f"ds_read_b32 v{AC+w}, v10 offset:{L_AP + 256*w}")
    A(f"v_mov_b32 v{T+2}, 0"); A(f"v_mov_b32 v{T+3}, {sTAG}")
    A(f"v_cmp_gt_u32 vcc, 224, v{vC}")
    A("s_waitcnt lgkmcnt(0)")
    for st in (4, 2, 1):
        for i in range(st): A(f"v_add_f32 v{AC+i}, v{AC+i}, v{AC+i+st}")
    bf16r(g, AC, AC)
    A(f"v_add_f32 v{AC}, v{AC}, v{vB1}")
    bf16r(g, AC, AC)
    A(f"v_max_f32 v{AC}, 0, v{AC}")
    A(f"v_mul_f32 v{AC}, v{AC}, v{AC}")
    A(f"v_cvt_pk_bf16_f32 v{AC}, v{AC}, v{AC}")
    A(f"ds_write_b16 v8, v{AC} offset:{L_AL}")
    A("s_waitcnt lgkmcnt(0)")
    for i in range(4): A(f"ds_read_b128 v[{APR+4*i}:{APR+4*i+3}], v9 offset:{L_AL + 16*i}")
    for i in range(8): A(f"v_mov_b32 v{AC+i}, 0")
    A("s_waitcnt lgkmcnt(0)")
    for i in range(16):
        A(f"v_dot2c_f32_bf16 v{AC+(i&3)}, v{W2R+2*i}, v{APR+i}")
        A(f"v_dot2c_f32_bf16 v{AC+4+(i&3)}, v{W2R+2*i+1}, v{APR+i}")
    A("s_and_saveexec_b64 s[50:51], vcc"); g.nop(2)
    A(f"v_add_f32 v{AC}, v{AC}, v{AC+1}"); A(f"v_add_f32 v{AC+2}, v{AC+2}, v{AC+3}"); A(f"v_add_f32 v{AC+4}, v{AC+4}, v{AC+5}"); A(f"v_add_f32 v{AC+6}, v{AC+6}, v{AC+7}")
    A(f"v_add_f32 v{T}, v{AC}, v{AC+2}"); A(f"v_add_f32 v{T+1}, v{AC+4}, v{AC+6}")
    A("s_cbranch_execz L_a_nost")
    lstore(f"buffer_store_dwordx4 v[{T}:{T+3}], v{vFA}, {sWS}, 0 offen")
    g.lab("L_a_nost")
    A("s_mov_b64 exec, -1")
    tst(28)
    A(f"s_cmp_lg_u32 {sWAVE}, 7"); A("s_cbranch_scc1 L_end")
    g.c("wave 7: final reduce of the 56 partials for 16 columns")
    FG = R0
    A(f"v_lshlrev_b32 v7, 4, v{vLANE}")
    A(f"s_mul_i32 s37, {sRI}, {FSTR}"); A(f"s_add_u32 s37, s37, {FP:#x}"); A("v_add_u32 v7, s37, v7")
    A("s_movk_i32 s43, 0x1000")
    A(f"v_and_b32 v8, 7, v{vLANE}"); A("v_lshlrev_b32 v8, 1, v8"); A(f"v_lshrrev_b32 v11, 5, v{vLANE}"); A("v_add_u32 v8, v8, v11")
    A(f"v_lshlrev_b32 v11, 2, v8"); A(f"ds_read_b32 v{T+8}, v11 offset:{L_HV}")
    A(f"v_lshlrev_b32 v{T+9}, 1, v8")
    srd(g, 16, 84, 896)
    def mkf(k):
        so = "0" if k < 4 else "s43"
        off = f" offset:{1024*(k&3)}" if (k & 3) else ""
        return lambda: A(f"buffer_load_dwordx4 v[{FG+4*k}:{FG+4*k+3}], v7, {sWS}, {so} offen{off} sc1")
    if dbg == 5: A("s_mov_b32 s92, 39"); tst(30)
    selpoll(g, [(mkf(k), [FG+4*k+3]) for k in range(7)], 9, 10, dbgbase=40 if dbg == 5 else None)
    tst(29)
    def pka(x, y): A(f"v_pk_add_f32 v[{x}:{x+1}], v[{x}:{x+1}], v[{y}:{y+1}]")
    pka(FG, FG+4); pka(FG+8, FG+12); pka(FG+16, FG+20)
    pka(FG, FG+8); pka(FG+16, FG+24)
    pka(FG, FG+16)
    red16(FG, FG+1, 9)
    bf16r(g, FG, FG)
    A(f"v_add_f32 v{FG}, v{FG}, v{vB2}")
    bf16r(g, FG, FG)
    A("s_waitcnt lgkmcnt(0)")
    A(f"v_add_f32 v{FG}, v{FG}, v{T+8}")
    A(f"v_cvt_pk_bf16_f32 v{FG}, v{FG}, v{FG}")
    A(f"s_lshl_b32 s37, {sRI}, 5")
    A("s_mov_b32 exec_lo, 0xff"); A("s_mov_b32 exec_hi, 0xff")
    A(f"buffer_store_short v{FG}, v{T+9}, {sT1}, s37 offen")
    g.lab("L_end")
    if dbg == 4:
        A("s_mov_b64 exec, -1")
        stamp(9)
    if dbg and dbg != 4:
        A("s_mov_b64 exec, -1")
        stamp(9)
        if dbg not in (3, 5): A("s_mov_b64 exec, 0xffff")
        A(f"s_lshl_b32 s37, s2, 3"); A(f"s_add_u32 s37, s37, {sWAVE}"); A(f"s_lshl_b32 s37, s37, {8 if dbg in (3, 5) else 6}"); A(f"s_add_u32 s37, s37, {DBG:#x}")
        A(f"v_lshlrev_b32 v7, 2, v{vLANE}")
        A(f"buffer_store_dword v{vSTAMP}, v7, {sWS}, s37 offen")
    g.lab("L_exit")
    A("s_endpgm")
    if GNT:
        for i, l in enumerate(g.L):
            if l.rstrip().endswith("sc1"):
                if "buffer_store" in l and (GNT & 1): g.L[i] = l + " nt"
                if "buffer_load" in l and (GNT & 2): g.L[i] = l + " nt"
    hdr = open("cdna_kernels/" + NAME + ".s.ref").read().split("\n")
    head = []
    for l in hdr:
        if l.startswith("; @launch"): head.append(f"; @launch grid=(256,1,1) block=(512,1,1) lds={LDS_BYTES}")
        elif l.startswith(";"): head.append(l)
        else: break
    return "\n".join(head) + f"""
.amdgcn_target "amdgcn-amd-amdhsa--gfx950"
.text
.globl {NAME}_kernel
.p2align 8
.type {NAME}_kernel,@function
{NAME}_kernel:
""" + DOC + "\n".join(g.L) + f"""
.section .rodata,"a"
.p2align 6
.amdhsa_kernel {NAME}_kernel
  .amdhsa_next_free_vgpr 256
  .amdhsa_next_free_sgpr 102
  .amdhsa_accum_offset 256
  .amdhsa_group_segment_fixed_size 0
  .amdhsa_kernarg_size 104
  .amdhsa_user_sgpr_count 2
  .amdhsa_user_sgpr_kernarg_segment_ptr 1
  .amdhsa_system_sgpr_workgroup_id_x 1
  .amdhsa_float_denorm_mode_32 3
.end_amdhsa_kernel
"""
if __name__ == "__main__":
    out = sys.argv[1] if len(sys.argv) > 1 else "k/v3.s"
    kw = {}
    for a in sys.argv[2:]:
        k, v = a.split("="); kw[k] = int(v)
    open(out, "w").write(generate(**kw))
    open(out.replace(".s", "_dbg.s"), "w").write(generate(dbg=1, **kw))
    open(out.replace(".s", "_lt.s"), "w").write(generate(dbg=2, **kw))
    open(out.replace(".s", "_st.s"), "w").write(generate(dbg=3, **kw))
    open(out.replace(".s", "_hb.s"), "w").write(generate(dbg=4, **kw))
    open(out.replace(".s", "_tl.s"), "w").write(generate(dbg=5, **kw))
    print("wrote", out)
```
